```python
import torch

def _softmax(x, axis=-1):
    return torch.softmax(x, dim=axis)

def _gelu(x):
    return torch.nn.functional.gelu(x, approximate='tanh')

def _silu(x):
    return torch.nn.functional.silu(x)

def _sigmoid(x):
    return torch.sigmoid(x)

def _layernorm(x, axis=-1, eps=1e-05):
    m = x.mean(dim=axis, keepdim=True)
    v = x.var(dim=axis, keepdim=True, unbiased=False)
    return (x - m) / torch.sqrt(v + eps)

def _scatter_add(tgt, idx, src, axis=0):
    return tgt.clone().index_add_(axis, idx, src)

def _segment_sum(src, seg, n):
    out = torch.zeros((n,) + src.shape[1:], dtype=src.dtype)
    return out.index_add_(0, seg, src)

def _pad(x, pw):
    flat = tuple((v for pair in reversed(pw) for v in pair))
    return torch.nn.functional.pad(x, flat)
kernel_name = 'recurrent_scan__memory_aug_recurrent_mem_tr__mixer_s_mlp__prompt'

def setup_inputs():

    _w = lambda a: (lambda t: t.to(torch.bfloat16) if t.is_floating_point() else t)(torch.as_tensor(a))

    def _A_setup():
        B, S, Dm = (1, 2048, 512)
        H, Dh = (32, 128)
        M, seg = (8, 32)
        seg = min(seg, S)
        S = S // seg * seg
        return {'x': _w((lambda *s: torch.randn(*s, dtype=torch.bfloat16) * 0.05)(B, S, Dm)), 'mem0': _w((lambda *s: torch.randn(*s, dtype=torch.bfloat16) * 0.2)(B, M, Dm)), 'Wq': _w((lambda *s: torch.randn(*s, dtype=torch.bfloat16) * 1.6)(Dm, H, Dh) * Dm ** (-0.5)), 'Wk': _w((lambda *s: torch.randn(*s, dtype=torch.bfloat16) * 1.6)(Dm, H, Dh) * Dm ** (-0.5)), 'Wv': _w((lambda *s: torch.randn(*s, dtype=torch.bfloat16) * 0.2)(Dm, H, Dh) * Dm ** (-0.5)), 'Wo': _w((lambda *s: torch.randn(*s, dtype=torch.bfloat16) * 0.2)(H, Dh, Dm) * (H * Dh) ** (-0.5)), 'seg_len': seg}
    _A_in = _A_setup()

    def _B_setup():
        B, S, D, F = (1, 2048, 512, 1376)
        return {'x': _w((lambda *s: torch.randn(*s, dtype=torch.bfloat16) * 0.05)(B, S, D)), 'w1': _w((lambda *s: torch.randn(*s, dtype=torch.bfloat16) * 3.2)(D, D) * D ** (-0.5)), 'w2': _w((lambda *s: torch.randn(*s, dtype=torch.bfloat16) * 3.2)(D, D) * D ** (-0.5)), 'w3': _w((lambda *s: torch.randn(*s, dtype=torch.bfloat16) * 3.2)(D, F) * D ** (-0.5)), 'w4': _w((lambda *s: torch.randn(*s, dtype=torch.bfloat16) * 3.2)(F, D) * F ** (-0.5))}
    _B_in = _B_setup()
    return {'A_x': _A_in['x'], 'A_mem0': _A_in['mem0'], 'A_Wq': _A_in['Wq'], 'A_Wk': _A_in['Wk'], 'A_Wv': _A_in['Wv'], 'A_Wo': _A_in['Wo'], 'A_seg_len': _A_in['seg_len'], 'B_x': _B_in['x'], 'B_w1': _B_in['w1'], 'B_w2': _B_in['w2'], 'B_w3': _B_in['w3'], 'B_w4': _B_in['w4']}

def reference(A_x, A_mem0, A_Wq, A_Wk, A_Wv, A_Wo, A_seg_len, B_x, B_w1, B_w2, B_w3, B_w4):

    def _A_ref(x, mem0, Wq, Wk, Wv, Wo, seg_len):
        B, S, Dm = x.shape
        H, Dh = (Wq.shape[1], Wq.shape[2])
        M = mem0.shape[1]
        scale = Dh ** (-0.5)
        n_seg = S // seg_len
        L = M + seg_len
        idx = torch.arange(L)
        mask = (idx[:, None] < M) | (idx[:, None] >= idx[None, :])
        mem = mem0
        outs = []
        for s in range(n_seg):
            xs = x[:, s * seg_len:(s + 1) * seg_len, :].clone()
            h = torch.concatenate([mem, xs], axis=1)
            q = torch.einsum('btd,dhe->bhte', h, Wq)
            k = torch.einsum('btd,dhe->bhte', h, Wk)
            v = torch.einsum('btd,dhe->bhte', h, Wv)
            scores = torch.einsum('bhqe,bhke->bhqk', q, k) * scale
            scores = torch.where(mask[None, None], scores, -1000000000.0)
            p = _softmax(scores, axis=-1)
            o = torch.einsum('bhqk,bhke->bhqe', p, v)
            o = torch.einsum('bhte,hed->btd', o, Wo)
            mem = o[:, :M, :].clone()
            outs.append(o[:, M:, :])
        return torch.concatenate(outs, axis=1)

    def _B_ref(x, w1, w2, w3, w4):
        B, S, D = x.shape
        h = _gelu(_layernorm(x, axis=-1) @ w1)
        c = D // 4
        g0 = _pad(h[:, :, 0 * c:1 * c], ((0, 0), (1, 0), (0, 0)))[:, :S, :]
        g1 = _pad(h[:, :, 1 * c:2 * c], ((0, 0), (0, 1), (0, 0)))[:, 1:, :]
        g2 = _pad(h[:, :, 2 * c:3 * c], ((0, 0), (2, 0), (0, 0)))[:, :S, :]
        g3 = _pad(h[:, :, 3 * c:], ((0, 0), (0, 2), (0, 0)))[:, 2:, :]
        hs = torch.concatenate([g0, g1, g2, g3], axis=-1) @ w2
        x1 = x + hs
        h2 = _gelu(_layernorm(x1, axis=-1) @ w3) @ w4
        return x1 + h2
    x = A_x
    xn = _layernorm(x, axis=-1)
    s = _A_ref(xn, A_mem0, A_Wq, A_Wk, A_Wv, A_Wo, A_seg_len)
    g = _silu(_B_ref(xn, B_w1, B_w2, B_w3, B_w4))
    return x + s * g
```

```python
import re

REG_RE = re.compile(r'^(-|\|)?(abs\()?([vas])(\d+|\[(\d+):(\d+)\])\)?\|?$')

def regs_of(op):
    op = op.strip()
    if op in ('vcc', 'vcc_lo', 'vcc_hi'): return ['vcc']
    if op in ('exec', 'exec_lo', 'exec_hi'): return ['exec']
    if op == 'm0': return ['m0']
    m = REG_RE.match(op)
    if not m: return []
    k = m.group(3)
    if m.group(5) is not None:
        return [f'{k}{i}' for i in range(int(m.group(5)), int(m.group(6)) + 1)]
    return [f'{k}{int(m.group(4))}']

TRANS = ('v_exp_f32', 'v_log_f32', 'v_rcp_f32', 'v_rsq_f32', 'v_sqrt_f32', 'v_sin_f32', 'v_cos_f32', 'v_rcp_iflag_f32')

class Ins:
    __slots__ = ('text', 'mn', 'ops', 'defs', 'uses', 'kind', 'passes', 'srcc', 'srcab', 'dpp', 'wide_store', 'lds_dma', 'note')
    def __init__(self, text):
        self.text = text
        t = text.split(';')[0].strip()
        self.kind = None; self.defs = []; self.uses = []; self.passes = 0
        self.srcc = []; self.srcab = []; self.dpp = False; self.wide_store = []; self.lds_dma = False
        if t.endswith(':') :
            self.mn = t; self.ops = []; self.kind = 'label'; return
        if t == '' or t.startswith('.'):
            self.mn = t; self.ops = []; self.kind = 'dir'; return
        parts = t.split(None, 1)
        mn = self.mn = parts[0]
        rest = parts[1] if len(parts) > 1 else ''
        ops = []; depth = 0; cur = ''
        for ch in rest:
            if ch in '[(': depth += 1
            if ch in '])': depth -= 1
            if ch == ',' and depth == 0:
                ops.append(cur.strip()); cur = ''
            else: cur += ch
        if cur.strip(): ops.append(cur.strip())
        mods = ''
        if ops:
            last = ops[-1].split(None, 1)
            if len(last) > 1 and not ops[-1].startswith('hwreg') and not mn.startswith('s_waitcnt'):
                ops[-1] = last[0]; mods = last[1]
        self.ops = ops
        R = [regs_of(o) for o in ops]
        flat = lambda l: [x for y in l for x in y]
        if mn.startswith('v_mfma'):
            self.kind = 'mfma'
            self.passes = 8 if '32x32' in mn else 4
            self.defs = R[0]; self.srcab = R[1] + R[2]; self.srcc = R[3]
            self.uses = self.srcab + self.srcc
        elif mn.startswith('v_smfmac'):
            self.kind = 'mfma'
            self.passes = 8 if '32x32' in mn else 4
            self.defs = R[0]; self.srcab = R[1] + R[2] + R[3]; self.srcc = R[0]
            self.uses = self.srcab + self.srcc
        elif mn.startswith('v_'):
            self.kind = 'valu'
            if 'dpp' in mn or 'row_' in mods or 'quad_perm' in mods: self.dpp = True
            if mn.startswith('v_permlane') and 'swap' in mn:
                self.defs = R[0] + R[1]; self.uses = R[0] + R[1]
            elif mn.startswith('v_cmpx'):
                raise ValueError('no cmpx')
            elif mn.startswith(('v_add_co', 'v_sub_co', 'v_subrev_co')):
                self.defs = R[0] + R[1]; self.uses = flat(R[2:])
            elif mn.startswith(('v_addc_co', 'v_subb_co')):
                self.defs = R[0] + R[1]; self.uses = flat(R[2:])
            elif mn.startswith(('v_fmac', 'v_pk_fmac', 'v_dot2c', 'v_writelane')):
                self.defs = R[0]; self.uses = flat(R)
            elif mn == 'v_nop':
                pass
            else:
                self.defs = R[0]; self.uses = flat(R[1:])
                if self.dpp and 'bound_ctrl' not in mods: self.uses = self.uses + R[0]
                if mn.startswith('v_cndmask') and len(ops) == 3: self.uses.append('vcc')
        elif mn.startswith('ds_'):
            self.kind = 'ds'
            if mn.startswith(('ds_read', 'ds_bpermute', 'ds_permute', 'ds_swizzle')) or '_rtn' in mn:
                self.defs = R[0]; self.uses = flat(R[1:])
            else:
                self.uses = flat(R)
        elif mn.startswith(('global_', 'buffer_')):
            self.kind = 'vmem'
            if mn in ('buffer_wbl2', 'buffer_inv'):
                pass
            elif mn.startswith('global_load_lds') or (mn.startswith('buffer_load') and re.search(r'\blds\b', mods)):
                self.lds_dma = True; self.uses = flat(R) + ['m0']
            elif '_load' in mn:
                self.defs = R[0]; self.uses = flat(R[1:])
            elif '_atomic' in mn:
                if 'sc0' in mods.split():
                    if mn.startswith('global_'):
                        self.defs = R[0]; self.uses = flat(R[1:])
                    else:
                        self.defs = R[0]; self.uses = flat(R)
                else: self.uses = flat(R)
            else:
                self.uses = flat(R)
                if mn.endswith(('x3', 'x4')):
                    self.wide_store = R[1] if mn.startswith('global_') else R[0]
        elif mn.startswith(('s_load', 's_buffer_load', 's_memtime', 's_memrealtime')):
            self.kind = 'smem'; self.defs = R[0]; self.uses = flat(R[1:])
        elif mn.startswith('s_'):
            self.kind = 'salu'
            if mn.startswith(('s_cmp', 's_bitcmp', 's_cbranch', 's_branch', 's_waitcnt', 's_nop', 's_barrier', 's_endpgm', 's_sleep', 's_setprio', 's_setreg')):
                self.uses = flat(R)
                if mn.startswith(('s_cbranch', 's_branch', 's_endpgm')): self.kind = 'branch'
            else:
                self.defs = R[0]; self.uses = flat(R[1:])
                if 'saveexec' in mn: self.defs = self.defs + ['exec']; self.uses = self.uses + ['exec']
                if mn.startswith(('s_addk', 's_mulk', 's_cmov')): self.uses = self.uses + R[0]
        else:
            raise ValueError('unknown instruction: ' + text)

    def states(self):
        if self.kind in ('label', 'dir'): return 0
        if self.mn == 's_nop': return int(self.ops[0]) + 1
        return 1

def need_between(p, c):
    n = 0
    pd = set(p.defs)
    if p.kind == 'valu':
        vd = {r for r in pd if r[0] in 'va' and r != 'vcc'}
        sd = pd - vd
        if c.kind == 'mfma' and vd & set(c.uses): n = max(n, 2)
        if c.kind == 'valu':
            if c.mn.startswith('v_permlane') and vd & set(c.uses): n = max(n, 2)
            if c.dpp and vd & set(c.uses): n = max(n, 2)
            if c.mn.startswith(('v_readlane', 'v_readfirstlane')) and vd & set(c.uses): n = max(n, 1)
            if p.mn.startswith(TRANS) and vd & set(c.uses) and not c.mn.startswith(TRANS): n = max(n, 1)
            if p.mn.startswith(TRANS) and vd & set(c.uses): n = max(n, 1)
            if sd & set(c.uses):
                n = max(n, 4 if c.mn.startswith(('v_readlane', 'v_writelane')) else 2)
        if c.kind == 'vmem' and sd & set(c.uses): n = max(n, 5)
        if c.kind in ('salu', 'smem', 'branch') and sd & set(c.uses): n = max(n, 1)
    if p.kind == 'valu' and p.mn.startswith('v_dot') and c.kind in ('valu', 'mfma', 'ds', 'vmem'):
        if pd & (set(c.uses) | set(c.defs)):
            acc_only = c.mn == p.mn and c.defs == p.defs and not (pd & set(regs_of(c.ops[1]) + regs_of(c.ops[2])))
            if not acc_only: n = max(n, 3)
    if p.kind == 'mfma':
        big = p.passes == 8
        if c.kind == 'mfma':
            if pd & set(c.srcab): n = max(n, 12 if big else 8)
            ov = pd & set(c.srcc)
            if ov:
                if list(c.srcc) == list(p.defs) and c.mn == p.mn: pass
                else: n = max(n, 10 if big else 6)
            elif pd & set(c.defs):
                n = max(n, 10 if big else 6)
        elif c.kind in ('valu', 'ds', 'vmem'):
            if pd & (set(c.uses) | set(c.defs)): n = max(n, 12 if big else 8)
            if c.kind == 'valu' and set(p.srcc) & set(c.defs): n = max(n, 7 if big else 3)
    if p.wide_store:
        if set(p.wide_store) & set(c.defs): n = max(n, 2 if c.kind == 'valu' else 1)
    if p.kind == 'salu' and 'm0' in pd and c.lds_dma: n = max(n, 1)
    return n

class Prog:
    def __init__(self):
        self.lines = []
    def __call__(self, text):
        for l in text.split('\n'):
            l = l.strip()
            if l: self.lines.append(l)
        return self
    def raw(self): return self.lines

def _pipe(i):  return 32 if i.passes == 8 else 16
def _hold(i):  return 12 if i.mn.startswith('v_smfmac') and ('16x16x64' in i.mn or '32x32x32' in i.mn) else 8

class State:
    def __init__(self):
        self.lgkm = []; self.vm = []
        self.hist = []
    def copy(self):
        s = State(); s.lgkm = list(self.lgkm); s.vm = list(self.vm); s.hist = [list(h) for h in self.hist]
        return s

def process(lines, auto_wait=True, carry=None, timed=True):
    out = []
    st = State() if carry is None else carry.copy()
    def rel(h, ins):
        t = h[1]
        if timed:
            if ins.kind == 'mfma': t = max(t, h[2])
            elif ins.kind == 'valu': t = max(t, h[3])
        return t
    def emit(ins, text):
        out.append(text)
        nh = []
        st.hist.append([ins, 0, -1, -1])
        for h in st.hist:
            t = rel(h, ins)
            if ins.kind == 'mfma':
                h[2] = t + _pipe(ins); h[3] = t + _hold(ins)
            h[1] = t + 4 * ins.states()
            if h[1] < 96: nh.append(h)
        st.hist = nh
    for text in lines:
        if text.startswith('@wait_reset'):
            st.lgkm = []; st.vm = []; continue
        if text.startswith('@hz_clear'):
            st.hist = []; continue
        if text.startswith('@vm'):
            st.vm = [(set(), 'vm')] * int(text.split()[1]); continue
        if text.startswith('@lgkm'):
            st.lgkm = [(set(), 'ds')] * int(text.split()[1]); continue
        nowait = False
        needonly = False
        if text.startswith('@need'):
            needonly = True
            text = 's_cmp_eq_u32 ' + ', '.join(text.split()[1:])
        if text.startswith('@nowait'):
            nowait = True; text = text[len('@nowait'):].strip()
        if text.startswith('@junk'):
            text = text[len('@junk'):].strip() + ' ;junk'
        ins = Ins(text)
        if text.endswith(';junk'): ins.defs = []
        if ins.kind in ('label', 'dir'):
            out.append(text)
            continue
        if ins.mn == 's_waitcnt':
            m = re.search(r'vmcnt\((\d+)\)', text)
            if m:
                k = int(m.group(1)); st.vm = st.vm[len(st.vm) - k:] if 0 < k < len(st.vm) else ([] if k == 0 else st.vm)
            m = re.search(r'lgkmcnt\((\d+)\)', text)
            if m:
                k = int(m.group(1))
                if k == 0: st.lgkm = []
                elif any(e[1] == 'smem' for e in st.lgkm): pass
                elif k < len(st.lgkm): st.lgkm = st.lgkm[len(st.lgkm) - k:]
        elif auto_wait and not nowait:
            touched = set(ins.uses) | set(ins.defs)
            w = []
            idx = max([i for i, e in enumerate(st.vm) if e[0] & touched], default=-1)
            if idx >= 0:
                k = len(st.vm) - 1 - idx
                if k > 63: k = 63
                w.append(f'vmcnt({k})'); st.vm = st.vm[len(st.vm) - k:] if k else []
            idx = max([i for i, e in enumerate(st.lgkm) if e[0] & touched], default=-1)
            if idx >= 0:
                k = len(st.lgkm) - 1 - idx
                if any(e[1] == 'smem' for e in st.lgkm): k = 0
                if k > 15: k = 15
                w.append(f'lgkmcnt({k})'); st.lgkm = st.lgkm[len(st.lgkm) - k:] if k else []
            if w:
                wt = 's_waitcnt ' + ' '.join(w)
                emit(Ins(wt), wt)
        if needonly: continue
        while True:
            k = 0
            for h in st.hist:
                n = need_between(h[0], ins)
                if n and rel(h, ins) < 4 * (n + 1):
                    k = max(k, (4 * (n + 1) - h[1] + 3) // 4)
            if k <= 0: break
            k = min(k, 16)
            nt = f's_nop {k-1}'
            emit(Ins(nt), nt)
        emit(ins, text)
        if ins.kind == 'ds': st.lgkm.append((set(ins.defs), 'ds'))
        if ins.kind == 'smem': st.lgkm.append((set(ins.defs), 'smem'))
        if ins.kind == 'vmem': st.vm.append((set(ins.defs), 'vm'))
    return out, st

def loop(body_lines, carry):
    o1, c1 = process(body_lines, carry=carry)
    o2, c2 = process(o1, carry=c1)
    o3, c3 = process(o2, carry=carry)
    o4, c4 = process(o3, carry=c2)
    assert o4 == o3 or process(o4, carry=process(o4, carry=carry)[1])[0] == o4
    return o4, c4

def fmt(lines):
    return '\n'.join(l if l.endswith(':') else '    ' + l for l in lines) + '\n'

def header(launch_lines, comment=''):
    s = ''
    for l in launch_lines: s += f'; @launch {l}\n'
    s += comment
    s += '.amdgcn_target "amdgcn-amd-amdhsa--gfx950"\n.text\n'
    return s

def kernel_open(name):
    return f'.globl {name}\n.p2align 8\n.type {name},@function\n{name}:\n'

def descriptor(name, vgpr=512, sgpr=102, accum=256, kernarg=120):
    return f""".p2align 6
.amdhsa_kernel {name}
  .amdhsa_next_free_vgpr {vgpr}
  .amdhsa_next_free_sgpr {sgpr}
  .amdhsa_accum_offset {accum}
  .amdhsa_group_segment_fixed_size 0
  .amdhsa_kernarg_size {kernarg}
  .amdhsa_user_sgpr_count 2
  .amdhsa_user_sgpr_kernarg_segment_ptr 1
  .amdhsa_system_sgpr_workgroup_id_x 1
  .amdhsa_float_denorm_mode_32 3
.end_amdhsa_kernel
"""

def hoist_waits(lines):
    L = list(lines)
    i = 0
    while i < len(L):
        if L[i].startswith('s_waitcnt') and i + 1 < len(L) and Ins(L[i+1]).kind == 'mfma':
            j = i - 1
            while j >= 0 and Ins(L[j]).kind == 'valu': j -= 1
            if i - 4 <= j < i - 1:
                k = j; cnt = 0
                while k >= 0 and Ins(L[k]).kind in ('ds', 'salu', 'vmem', 'branch'): k -= 1; cnt += 1
                if k >= 0 and Ins(L[k]).kind == 'mfma':
                    free = 2 if _hold(Ins(L[k])) == 12 else 1
                    if cnt < free:
                        L.insert(j + 1, L.pop(i))
        i += 1
    return L
```

```python
from asmlib import *
from layout import *
import common

MEMA, KW, QT, AQK, ACCV, S = 0, 32, 64, 80, 96, 104
IDX, AL0, AL1, AL2, ATR, AQKW, AOW, AP = 116, 117, 118, 119, 120, 121, 122, 123
T0, T1, T2, T3 = 124, 125, 126, 127
WV0, WO0 = 128, 192
SRD = 's[36:39]'
sH, sSTEP, sMEM, sMEM2, sPUB, sIN, sIN2, sW = 40, 41, 42, 43, 44, 45, 46, 47
sPART = 48
sK, sK2, sV, sV2, sPF = 56, 57, 58, 59, 74
sODD = 62
sVAL = 86
sLIM = 88
sC = 64
sRETRY = 65
sRB = 61
sKVM, sFCH, sFKV, sNEED = 60, 89, 90, 91
SRDW = 's[68:71]'

def vr(a, n): return f'v[{a}:{a+n-1}]' if n > 1 else f'v{a}'
def ar(a, n): return f'a[{a}:{a+n-1}]'
def wq(u, t): return ar((u*8+t)*8, 8)
def wk(u, t): return ar(128 + (u*8+t)*8, 8)
def wv0(t): return vr(WV0 + 8*t, 8)
def wo0(t): return vr(WO0 + 8*t, 8)
def smf(acc, a, b): return f'v_smfmac_f32_16x16x64_bf16 {vr(acc,4)}, {vr(a,4)}, {b}, v{IDX}'
def mf32(d, a, b, c): return f'v_mfma_f32_16x16x32_bf16 {vr(d,4)}, {vr(a,4)}, {vr(b,4)}, {c if isinstance(c,str) else vr(c,4)}'
def mf16(d, a, b, c): return f'v_mfma_f32_16x16x16_bf16 {vr(d,4)}, {vr(a,2)}, {vr(b,2)}, {c if isinstance(c,str) else vr(c,4)}'
def lin(off):
    r = (AL0, AL1, AL2)[off >> 16]
    return r, off & 0xffff
def rd128(dst, off):
    r, o = lin(off); return f'ds_read_b128 {vr(dst,4)}, v{r} offset:{o}'

def startup(p, dbg_ctr_off=64, opt_pf=1):
    p(f'''
    v_and_b32 v65, 63, v0
    v_lshrrev_b32 v66, 6, v0
    v_readfirstlane_b32 s{sW}, v66
    v_and_b32 v67, 15, v65            ; n
    v_lshrrev_b32 v68, 4, v65         ; g
    v_lshlrev_b32 v{AL0}, 4, v65
    v_add_u32 v{AL1}, 0x10000, v{AL0}
    v_add_u32 v{AL2}, 0x20000, v{AL0}
    v_lshlrev_b32 v{AP}, 2, v65       ; lane*4
    v_lshlrev_b32 v69, 4, v67
    v_lshl_add_u32 v78, v68, 2, v69
    v_lshrrev_b32 v69, 2, v67
    v_lshlrev_b32 v69, 6, v69
    v_and_b32 v70, 3, v67
    v_lshl_add_u32 v69, v70, 2, v69
    v_lshl_add_u32 v{T3}, v68, 4, v69
    s_mov_b32 s36, s32
    s_mov_b32 s37, s33
    s_mov_b32 s38, {WS_SIZE}
    s_mov_b32 s39, 0x20000
    v_lshrrev_b32 v69, 1, v67
    v_lshlrev_b32 v69, 10, v69
    v_and_b32 v70, 1, v67
    v_lshlrev_b32 v70, 2, v70
    v_lshl_add_u32 v70, v68, 3, v70
    v_add_u32 v69, v69, v70
    s_lshl_b32 s3, s{sH}, 5
    v_add_u32 v69, s3, v69
    global_load_dword v76, v69, s[6:7]
    v_mov_b32 v72, -1
    v_mov_b32 v73, -1
    v_mov_b32 v74, -1
    v_mov_b32 v75, -1
    s_mul_i32 s3, s{sH}, {INBOX_STRIDE}
    s_add_u32 s{sIN}, s3, {WS_INBOX}
    s_lshl_b32 s3, s{sW}, 11
    s_add_u32 s3, s3, s{sIN}
    s_add_u32 s34, s3, {INBOX_SLOT}
    buffer_store_dwordx4 v[72:75], v{AL0}, {SRD}, s3 offen
    buffer_store_dwordx4 v[72:75], v{AL0}, {SRD}, s3 offen offset:1024
    buffer_store_dwordx4 v[72:75], v{AL0}, {SRD}, s34 offen
    buffer_store_dwordx4 v[72:75], v{AL0}, {SRD}, s34 offen offset:1024
    s_lshl_b32 s3, s{sH}, 8
    s_add_u32 s{sPUB}, s3, {WS_MEMS}
    s_add_u32 s3, s{sPUB}, 8192
    buffer_store_dword v72, v{AP}, {SRD}, s3 offen
    v_lshlrev_b32 v69, 1, v68
    v_xor_b32 v69, v69, v67                  ; n ^ (g<<1)
    v_lshlrev_b32 v69, 4, v69
    v_lshl_add_u32 v80, v68, 13, v69
    v_xor_b32 v81, 0x80, v80              ; off1
    s_lshr_b32 s3, s{sW}, 1
    s_lshl_b32 s3, s3, 7
    v_xor_b32 v82, s3, v{AL0}
    v_xor_b32 v83, 0x20, v82
    v_xor_b32 v84, 0x40, v82
    v_xor_b32 v85, 0x60, v82
    v_lshrrev_b32 v69, 2, v67               ; r
    v_and_b32 v70, 3, v67                   ; c
    v_and_b32 v71, 1, v68
    v_lshl_add_u32 v71, v71, 2, v69          ; f = r | (g&1)<<2
    v_lshlrev_b32 v71, 5, v71
    v_lshl_add_u32 v71, v70, 3, v71          ; f*32 + 8c
    v_lshl_add_u32 v69, v68, 3, v69          ; row = 8g + r
    v_lshl_add_u32 v86, v69, 8, v71
    s_lshl_b32 s3, s{sW}, 6
    v_xor_b32 v86, s3, v86                ; pair 2w
    v_xor_b32 v87, 0x20, v86              ; pair 2w+1
    v_add_u32 v86, {L_W}, v86
    v_add_u32 v87, {L_W}, v87
    v_lshl_add_u32 v88, v69, 10, v71
    s_lshl_b32 s3, s{sW}, 5
    v_xor_b32 v88, s3, v88
    v_xor_b32 v89, 0x80, v88
    v_add_u32 v88, {L_W}, v88
    v_add_u32 v89, {L_W}, v89
    s_lshl_b32 s66, s{sW}, 12
    s_add_u32 s66, s66, {L_W}
    s_mov_b32 s70, 0x400000
    s_mov_b32 s71, 0x20000
    ''')
    def dma(c):
        mat = c >> 3; t = c & 7
        if t == 0:
            src = (14, 8, 10, 12)[mat]
            p(f's_mov_b32 s68, s{src}\ns_mov_b32 s69, s{src+1}')
            if mat == 0:
                p(f's_lshl_b32 s67, s{sH}, 17\ns_lshl_b32 s3, s{sW}, 12\ns_add_u32 s67, s67, s3')
            else:
                p(f's_lshl_b32 s67, s{sH}, 8\ns_lshl_b32 s3, s{sW}, 17\ns_add_u32 s67, s67, s3')
        for i in range(4):
            p(f's_add_u32 m0, s66, {t*16384 + i*1024}')
            if mat == 0:
                p(f's_add_u32 s3, s67, {(t^4)*16384 + i*1024}')
                p(f'buffer_load_dwordx4 v{82+i}, {SRDW}, s3 offen lds')
            else:
                p(f's_add_u32 s3, s67, {t*64*8192 + i*4*8192}')
                p(f'buffer_load_dwordx4 v{80+(i>>1)}, {SRDW}, s3 offen lds')
    for c in range(8): dma(c)
    p(f'''
    v_and_b32 v69, 1, v67
    v_mov_b32 v70, 0x4444
    v_mov_b32 v71, 0xeeee
    v_cmp_eq_u32 s[{sODD}:{sODD+1}], 1, v69
    v_cndmask_b32 v{IDX}, v70, v71, s[{sODD}:{sODD+1}]
    ; aTR: (d0 + r)*32 + 8c, d0 = 16*(g>>1) + 4*(g&1)
    v_lshrrev_b32 v69, 1, v68
    v_lshlrev_b32 v69, 4, v69
    v_and_b32 v70, 1, v68
    v_lshl_add_u32 v69, v70, 2, v69
    v_lshrrev_b32 v70, 2, v67
    v_add_u32 v69, v69, v70
    v_and_b32 v70, 3, v67
    v_lshlrev_b32 v70, 3, v70
    v_lshl_add_u32 v{ATR}, v69, 5, v70
    ; aQKW: n*32 + 8g
    v_lshlrev_b32 v69, 5, v67
    v_lshl_add_u32 v{AQKW}, v68, 3, v69
    v_lshrrev_b32 v69, 2, v67
    v_and_b32 v70, 1, v67
    v_lshl_add_u32 v69, v69, 1, v70
    v_lshlrev_b32 v69, 5, v69
    v_lshl_add_u32 v69, v68, 2, v69
    v_add_u32 v70, {L_O}, v69
    v_add_u32 v71, {L_DUM + 8}, v69
    v_and_b32 v69, 2, v67
    v_cmp_eq_u32 vcc, 0, v69
    s_lshl_b32 s3, s{sW}, 9               ; (w>>1)*1024 + (w&1)*512
    v_add_u32 v70, s3, v70
    v_cndmask_b32 v{AOW}, v71, v70, vcc
    v_lshrrev_b32 v69, 3, v67
    v_xor_b32 v69, v69, v67
    v_and_b32 v69, 1, v69
    v_cmp_eq_u32 vcc, 1, v69
    v_mov_b32 v71, 0x3f80
    v_mov_b32 v77, 0x3f800000
    v_cndmask_b32 v71, v71, v77, vcc
    v_and_b32 v69, 7, v67
    v_lshrrev_b32 v69, 1, v69
    v_cmp_eq_u32 vcc, 0, v69
    v_cndmask_b32 v92, 0, v71, vcc
    v_cmp_eq_u32 vcc, 1, v69
    v_cndmask_b32 v93, 0, v71, vcc
    v_cmp_eq_u32 vcc, 2, v69
    v_cndmask_b32 v94, 0, v71, vcc
    v_cmp_eq_u32 vcc, 3, v69
    v_cndmask_b32 v95, 0, v71, vcc
    ds_write_b128 v{AL0}, v[92:95] offset:{L_SEL}
    s_waitcnt lgkmcnt(0)
    v_mov_b32 v92, 0x3f803f80
    v_mov_b32 v93, 0x3f803f80
    v_mov_b32 v94, 0x3f803f80
    v_mov_b32 v95, 0x3f803f80
    ds_write_b128 v{AL0}, v[92:95] offset:{L_ONE}
    s_mov_b32 s{sLIM}, 0x53800000          ; 2^40
    v_mov_b32 v{T1}, 0
    s_mov_b32 s{sVAL}, 0x33333333
    s_mov_b32 s{sVAL+1}, 0x33333333
    s_mov_b32 s{sODD}, 0
    s_mov_b32 s{sODD+1}, -1
    s_mov_b32 s{sC}, 0x3e0293ee           ; log2(e)/sqrt(128)
    ''')
    issued = 7
    def allowed(c): return 4 * (issued - c)
    c = 0
    while c < 32:
        mat = c >> 3; t = c & 7
        if mat == 0:
            first = t == 0
            p(f's_waitcnt vmcnt({allowed(c+3)})')
            if first:
                p(f'''@wait_reset
                v_min_u32 v76, -2, v76
                buffer_store_dword v76, v78, {SRD}, s{sPUB} offen
                v_mov_b32 v79, v0''')
            p('s_barrier')
            for tt in range(8):
                for q, o in enumerate((0, 4096, 32768, 36864)):
                    d = (0 if first else WO0) + tt*8 + 2*q
                    p(f'ds_read_b64_tr_b16 v[{d}:{d+1}], v{88+(tt&1)} offset:{o + (tt>>1)*256}')
                if tt & 1: p('s_waitcnt lgkmcnt(0)')
            p('s_barrier')
            if first: p('v_add_u32 v88, 0x10000, v88\nv_add_u32 v89, 0x10000, v89')
            for k in range(4): dma(c + 8 + k)
            issued += 4; c += 4
            continue
        p(f's_waitcnt vmcnt({allowed(c)})')
        p('s_barrier')
        if c == 12:
            p(f'''v_mov_b32 v69, {dbg_ctr_off}
            v_mov_b32 v70, 1
            v_cmp_eq_u32 vcc, 0, v79
            s_and_saveexec_b64 s[34:35], vcc
            s_cbranch_execz L_noinc
            global_atomic_add v69, v70, s[30:31]
            L_noinc:
            s_mov_b64 exec, s[34:35]''')
        for u in range(2):
            for q, o in enumerate((0, 1024, 8192, 9216)):
                if mat < 3:
                    d = (mat-1)*128 + (u*8+t)*8 + 2*q
                    p(f'ds_read_b64_tr_b16 a[{d}:{d+1}], v{86+u} offset:{o + (t&3)*16384}')
                else:
                    d = (WV0 + 8*t if u == 0 else 96) + 2*q
                    p(f'ds_read_b64_tr_b16 v[{d}:{d+1}], v{86+u} offset:{o + (t&3)*16384}')
        p('s_waitcnt lgkmcnt(0)\ns_barrier')
        if t == 3: p('v_add_u32 v86, 0x10000, v86\nv_add_u32 v87, 0x10000, v87')
        if t == 7: p('v_subrev_u32 v86, 0x10000, v86\nv_subrev_u32 v87, 0x10000, v87')
        if mat == 3:
            if t == 0: p(f'v_add_u32 v90, s66, v{AL0}')
            if t == 4: p('v_add_u32 v90, 0x10000, v90')
            for k, r in enumerate((96, 100, 8*t, 8*t+4)):
                p(f'ds_write_b128 v90, v[{r}:{r+3}] offset:{(t&3)*16384 + k*1024}')
            p('s_waitcnt lgkmcnt(0)')
        if c + 8 < 32:
            dma(c + 8); issued += 1
        c += 1
    p(f'''
    s_mov_b32 s{sSTEP}, 0
    s_mov_b32 s{sMEM}, {WS_MEMS}
    s_mov_b32 s{sMEM2}, {WS_MEMS + 4096}
    s_add_u32 s{sPUB}, s{sPUB}, 8192
    s_xor_b32 s{sIN}, s{sIN}, {INBOX_SLOT}
    s_add_u32 s{sIN2}, s{sIN}, 4096
    s_mul_i32 s3, s{sW}, {INBOX_STRIDE}
    s_lshl_b32 s34, s{sH}, 8
    s_add_u32 s3, s3, s34
    s_add_u32 s{sPART}, s3, {WS_INBOX}
    ''')
    for t in range(1, 8): p(f's_add_u32 s{sPART+t}, s{sPART}, {4*t*INBOX_STRIDE}')
    p(f'''
    s_lshl_b32 s3, s{sH}, 14
    s_add_u32 s{sK}, s3, {WS_KV}
    s_add_u32 s{sK2}, s{sK}, 4096
    s_add_u32 s{sV}, s{sK}, 8192
    s_add_u32 s{sV2}, s{sK}, 12288
    s_add_u32 s{sPF}, s{sK}, {opt_pf*32*16384}
    s_add_u32 s{sPF+1}, s{sV}, {opt_pf*32*16384}
    s_lshl_b32 s3, s{sH}, 12
    s_lshl_b32 s34, s{sW}, 10
    s_add_u32 s3, s3, s34
    s_add_u32 s{sKVM}, s3, {WS_KVM - 32*4096}
    s_lshl_b32 s3, s{sH}, 6
    s_add_u32 s{sFCH}, s3, {F_CH}
    s_add_u32 s{sFKV}, s3, {F_KV}
    s_mov_b32 s{sRETRY}, 0
    s_mov_b32 s{sRB}, 0
    ''')
    for r in range(0, 24, 2): p(f'v_mov_b64 {vr(AQK+r,2)}, 0')

def kdma(p):
    L = []
    for half, so in ((0, sK), (1, sK2)):
        L.append(f's_mov_b32 m0, {L_K + half*4096}')
        for i in range(4): L.append(f'buffer_load_dwordx4 v{AL0}, {SRD}, s{so} offen offset:{i*1024} sc1 lds')
    return L
def vdma(p):
    L = []
    for half, so in ((0, sV), (1, sV2)):
        L.append(f's_mov_b32 m0, {L_V + half*4096}')
        for i in range(4): L.append(f'buffer_load_dwordx4 v{AL0}, {SRD}, s{so} offen offset:{i*1024} sc1 lds')
    return L

def step(w, nsteps, opt, var=0):
    p = Prog(); slow = Prog()
    tag = f'{w}' if w else f'0v{var}'
    Q0, Q1, K0, K1 = AQK, AQK+4, AQK+8, AQK+12
    V0, V1 = ACCV, ACCV+4
    SX0, SX1, SM = S, S+4, S+8
    def wl(u, t): return L_W + t*16384 + w*4096 + u*2048
    def wrd(slot, u, t): return rd128(KW + 8*slot, wl(u, t)) + '\n' + rd128(KW + 8*slot + 4, wl(u, t) + 1024)
    nst = [0]; pastS7 = [False]
    def stamp():
        i = nst[0]; nst[0] += 1
        if opt.get('trace'):
            if i in opt['trace']:
                at = 41 if i in (0, 1, 7, 8, 9) else 40
                p(f's_cmp_eq_u32 s{sSTEP}, {at}\ns_cbranch_scc0 TR{tag}_{i}\ns_memtime s[96:97]\ns_waitcnt lgkmcnt(0)\ns_mov_b32 s{76+i}, s96\nTR{tag}_{i}:')
            return
        if i not in opt.get('stamps', ()): return
        if opt.get('w0st') and i in (1, 2, 3) and not pastS7[0]: return
        p(f's_memtime s[96:97]\ns_waitcnt lgkmcnt(0)\ns_sub_u32 s99, s96, s98\ns_mov_b32 s98, s96\ns_add_u32 s{76+i}, s{76+i}, s99')
    def epi(acc): return [f'v_add_f32 v{acc}, v{acc}, v{acc+1}', f'v_add_f32 v{acc+2}, v{acc+2}, v{acc+3}', f'v_cvt_pk_bf16_f32 v{acc}, v{acc}, v{acc+2}']
    def epq(acc):
        e = epi(acc)
        return e[:2] + [f'v_mul_f32 v{acc}, s{sC}, v{acc}', f'v_mul_f32 v{acc+2}, s{sC}, v{acc+2}'] + e[2:]
    def qkw(base, u, acc): return f'ds_write_b32 v{AQKW}, v{acc} offset:{base + (32*w + 16*u)*32}'
    def trd(dst, base, ks, h): return f'ds_read_b64_tr_b16 {vr(dst + 4*ks + 2*h, 2)}, v{ATR} offset:{base + ks*1024 + h*256}'
    def mloc(t): return L_Q + t*1024 if t < 3 else (L_KM + (t-3)*1024 if t < 7 else L_O)
    def gld(dst, t): return f'buffer_load_dwordx4 {vr(dst,4)}, v{AL0}, {SRD}, s{sMEM if t < 4 else sMEM2} offen offset:{(t&3)*1024} sc1'
    def mwr(src, t): return f'ds_write_b128 v{AL0}, {vr(src,4)} offset:{mloc(t)}'
    def mx(first, m, k):
        if first: return f'v_max3_u32 v{T0}, v{m}, v{m+1}, v{m+2}' if k == 0 else f'v_max_u32 v{T0}, v{T0}, v{m+3}'
        return f'v_max3_u32 v{T0}, v{T0}, v{m+2*k}, v{m+2*k+1}'
    CMP = f'v_cmp_eq_u32 vcc, -1, v{T0}'
    TMO = lambda r: f's_add_u32 s{r}, s{r}, 1\ns_cmp_gt_u32 s{r}, {LIMIT}\ns_cbranch_scc1 L_ABORT'
    fb = {1: (3, 4), 2: (5, 6), 3: (7,)}.get(w, ())
    LB, NEG = QT + 4, QT + 12
    D = opt.get('D', 2)
    def v1s(t): return smf(V1, MEMA + 4*t, vr(KW + 8*(t & 3), 8))
    def v0s(t): return smf(V0, MEMA + 4*t, wv0(t))
    def qs(u, t): return smf(Q0 + 4*u, MEMA + 4*t, wq(u, t))
    def ks_(u, t): return smf(K0 + 4*u, MEMA + 4*t, wk(u, t))
    p(f'HA{tag}:')
    if w:
        for i in range(D - 1):
            p(gld(S + 4*i, w-1))
            p(TMO(sRETRY) if i == 0 else 's_nop 2')
            for _ in range(opt.get('sp', 0)): p('s_nop 7')
        p(f'HL{w}:')
        for i in range(D):
            m = S + 4*i
            p('@nowait ' + gld(S + 4*((i + D - 1) % D), w-1))
            p(f's_waitcnt vmcnt({D-1})')
            p(mwr(m, w-1)); p(mx(1, m, 0)); p(mx(1, m, 1)); p(CMP)
            if i < D - 1: p(f's_cbranch_vccz HK{w}')
            else:
                p(f's_cbranch_vccz HK{w}'); p(TMO(sRETRY)); p(f's_branch HL{w}')
        p(f'HK{w}:')
        p(f'@vm {D-1}')
        for i, t in enumerate(fb): p(gld(LB + 4*i, t))
        if opt.get('trace'):
            nst[0] = 9; stamp(); nst[0] = 0
    p('s_waitcnt lgkmcnt(0)')
    p('s_barrier')
    stamp()
    for t in range(3): p(rd128(MEMA + 4*t, mloc(t)))
    if opt.get('log') and w == 1:
        p(f's_memtime s[96:97]\ns_waitcnt lgkmcnt(0)\ns_mov_b32 m0, s{sSTEP}\nv_writelane_b32 v{T3}, s96, m0')
    if opt.get('log') and w == 0:
        p(f's_mov_b32 m0, s{sSTEP}\nv_writelane_b32 v{T2}, s{sRB}, m0\nds_write_b32 v{AP}, v{T2} offset:{L_DUM + 1024}') if 0 else None
    for i in range(2):
        u = 2*w + i
        p(f'buffer_store_dwordx4 {vr(NEG,4)}, v{AL0}, {SRD}, s{sIN if u < 4 else sIN2} offen offset:{(u&3)*1024}')
    full = not opt.get('proto')
    vm = []
    if full: vm.append(f'buffer_store_dwordx4 {vr(QT,4)}, v{AL0}, {SRD}, s{sKVM} offen sc1')
    if w == 2 and full:
        p(f's_sub_u32 s3, s{sSTEP}, 1\ns_max_i32 s3, s3, 0\nv_mov_b32 v{T3}, s3')
        vm.append(f's_mov_b64 exec, 1\nbuffer_store_dword v{T3}, v{AL0}, {SRD}, s{sFCH} offen sc1\ns_mov_b64 exec, -1')
    if w == 3:
        p(f'v_lshlrev_b32 v{T2}, 3, v{AL0}')
        vm.append(f'@junk buffer_load_dword v{T3}, v{T2}, {SRD}, s{sPF} offen sc1\n@junk buffer_load_dword v{T3}, v{T2}, {SRD}, s{sPF+1} offen sc1')
        if full: vm.append(f'v_and_b32 v{T2}, 63, v{AP}\n@junk buffer_load_dword v{T3}, v{T2}, {SRD}, s{sFKV} offen sc1')
    nslow = {0: 1, 1: 1, 2: 2, 3: 4}[w] if full else (2 if w == 3 else 0)
    seq = []
    xa = opt.get('xa', 0)
    for t in range(3): seq += [qs(0, t), v1s(t), qs(1, t), ks_(0, t), ks_(1, t)]
    seq += [v0s(t) for t in range(xa)]
    for t in range(3, 8): seq += [qs(0, t), v1s(t), qs(1, t)]
    P2 = len(seq)
    rest = [v0s(t) for t in range(xa, 8)]
    seq += [ks_(0, t) for t in range(3, 8)] + rest[:3] + [ks_(1, t) for t in range(3, 8)] + rest[3:]
    gap = [[] for _ in seq]
    def put(g, *ins):
        for x in ins: gap[g] += x.split('\n')
    rf = lambda t: wrd(t & 3, 0, t).split('\n')
    put(1, rf(4)[0]); put(2, rf(4)[1])
    sbw, sbb = opt.get('sbw', 3), opt.get('sbb', 10)
    chk = []
    for i, t in enumerate(fb):
        put(sbw + i, mwr(LB + 4*i, t))
        chk += [mx(i == 0, LB + 4*i, 0), mx(i == 0, LB + 4*i, 1)]
    if chk: chk.append(CMP)
    for i, x in enumerate(chk): put(sbb - len(chk) + i, x)
    if w: put(sbb, f's_cbranch_vccnz SB{w}\nSBR{w}:')
    put(sbb, 's_waitcnt lgkmcnt(0)', 's_barrier')
    g = sbb + 1
    for x in [rd128(MEMA + 4*tt, mloc(tt)) for tt in range(3, 8)] + rf(5) + rf(6) + rf(7):
        put(g, x); g += 1
    kr = [rd128(KW + 4*f, L_K + f*1024) for f in range(8)]
    for i in range(8): put(22 + xa + i, kr[i])
    for i, x in enumerate(vm): put(sbb + 1 + i, x)
    e0, e1 = epq(Q0), epq(Q1)
    qtr = [trd(QT, L_Q, ks, h) for ks in range(4) for h in range(2)]
    ek0, ek1, ev0, ev1 = epi(K0), epi(K1), epi(V0), epi(V1)
    G = lambda k: P2 + k
    put(G(0), e0[0], e0[1]); put(G(1), e0[2], e0[3]); put(G(2), e0[4], e1[0]); put(G(3), qkw(L_Q, 0, Q0))
    put(G(4), e1[1], e1[2]); put(G(5), e1[3], e1[4]); put(G(6), qkw(L_Q, 1, Q1))
    put(G(7), ek0[0]); put(G(8), ek0[1]); put(G(9), ek0[2])
    put(G(10), 's_waitcnt lgkmcnt(0)', 's_barrier')
    put(G(11), qtr[0], qtr[1]); put(G(12), qtr[2], qtr[3]); put(G(13), qkw(L_KM, 0, K0))
    tail = [[ek1[0], ek1[1]], [ek1[2]], [qkw(L_KM, 1, K1)], [qtr[4], qtr[5]]]
    for i, x in enumerate(tail): put(min(G(14 + i), len(seq) - 1), *x)
    for i, (m_, gg) in enumerate(zip(seq, gap)):
        p(m_)
        for x in gg: p(x)
        if i == 14 or i == G(10): stamp()
    VX, OA, LACC, ONES, PX, E0 = MEMA, MEMA+8, MEMA+16, MEMA+20, MEMA+24, MEMA+28
    PM = T0
    def sx(tile, ks): return mf32(S + 4*tile, KW + 16*tile + 4*ks, QT + 4*ks, '0' if ks == 0 else S + 4*tile)
    def sm(ks): return mf32(SM, AQK + 4*ks, QT + 4*ks, '0' if ks == 0 else SM)
    def ex(d, r): return f'v_exp_f32 v{d}, v{r}'
    def cv(d, a_): return f'v_cvt_pk_bf16_f32 v{d}, v{a_}, v{a_+1}'
    ktr = [trd(AQK, L_KM, ks, h) for ks in range(4) for h in range(2)]
    p(sx(0, 0)); p(qtr[6])
    p(sx(1, 0)); p(qtr[7])
    p(sx(0, 1)); p(ev1[0]); p(ev1[1])
    p(sx(1, 1))
    p('s_waitcnt lgkmcnt(4)'); p('s_barrier'); stamp()
    p(sx(0, 2)); p(ktr[0]); p(ktr[1])
    p(sx(0, 3)); p(ktr[2]); p(ktr[3])
    p(sx(1, 2)); p(ktr[4]); p(ktr[5])
    p(sx(1, 3)); p(ktr[6]); p(ktr[7])
    p(ex(E0, SX0)); p(ex(E0+1, SX0+1))
    p(sm(0)); p(rd128(ONES, L_ONE))
    p(sm(1)); p(rd128(VX, L_V + (2*w)*1024))
    p(sm(2)); p(rd128(VX+4, L_V + (2*w+1)*1024))
    p(sm(3)); p(ex(E0+2, SX0+2))
    p(ex(E0+3, SX0+3)); p(cv(PX, E0)); p(ex(E0, SX1)); p(cv(PX+1, E0+2)); p(ex(E0+1, SX1+1))
    p(ex(E0+2, SX1+2)); p(ex(E0+3, SX1+3)); p(cv(PX+2, E0)); p(ex(E0, SM)); p(cv(PX+3, E0+2)); p(ex(E0+1, SM+1))
    stamp()
    p(ev1[2])
    p(mf32(LACC, ONES, PX, '0')); p(cv(PM, E0)); p(ev0[0])
    p(mf32(OA, VX, PX, '0')); p(ev0[1]); p(f'v_mov_b32 v{V1+1}, 0')
    p(mf32(OA+4, VX+4, PX, '0')); p(ev0[2]); p(f'v_mov_b32 v{V0+1}, 0')
    p(mf16(LACC, ONES, PM, LACC)); p(f'v_mov_b64 {vr(AQK,2)}, 0'); p(f'v_mov_b64 {vr(AQK+2,2)}, 0')
    p(mf16(OA, V0, PM, OA)); p(f'v_mov_b64 {vr(AQK+4,2)}, 0'); p(f'v_mov_b64 {vr(AQK+6,2)}, 0')
    p(mf16(OA+4, V1, PM, OA+4))
    p(f'v_rcp_f32 v{T2}, v{LACC}')
    p(f'v_mov_b64 {vr(AQK+8,2)}, 0')
    p(f'v_max_f32 v{E0}, v{T2}, v{LACC}')
    p(f'v_cmp_nle_f32 vcc, v{E0}, v{IDX}' if False else f'v_cmp_nge_f32 vcc, s{sLIM}, v{E0}')
    for r in range(4): p(f'v_mul_f32 v{OA+r}, v{OA+r}, v{T2}')
    p(f's_and_b64 s[34:35], vcc, s[{sVAL}:{sVAL+1}]'); p(f's_cbranch_scc1 FB{tag}'); p(f'FBC{tag}:')
    p(cv(OA, OA)); p(cv(OA+2, OA+2))
    p(f'ds_write2_b32 v{AOW}, v{OA}, v{OA+2} offset0:0 offset1:4')
    for r in (4, 6): p(f'v_pk_mul_f32 {vr(OA+r,2)}, {vr(OA+r,2)}, {vr(T2,2)} op_sel_hi:[1,0]')
    p(cv(OA+4, OA+4)); p(cv(OA+6, OA+6))
    p(f'ds_write2_b32 v{AOW}, v{OA+4}, v{OA+6} offset0:64 offset1:68')
    slow(f'FB{tag}:')
    slow(f"""s_nop 7
    v_max3_f32 v{T2}, v{SX0}, v{SX0+1}, v{SX0+2}
    v_max3_f32 v{T2}, v{T2}, v{SX0+3}, v{SX1}
    v_max3_f32 v{T2}, v{T2}, v{SX1+1}, v{SX1+2}
    v_max3_f32 v{T2}, v{T2}, v{SX1+3}, v{SM}
    v_max_f32 v{T2}, v{T2}, v{SM+1}
    v_mov_b32 v{E0}, v{T2}
    v_permlane16_swap_b32 v{T2}, v{E0}
    v_max_f32 v{T2}, v{T2}, v{E0}
    v_mov_b32 v{E0}, v{T2}
    v_permlane32_swap_b32 v{T2}, v{E0}
    v_max_f32 v{T2}, v{T2}, v{E0}""")
    for k in range(5):
        for j in range(2): slow(f'v_sub_f32 v{E0+j}, v{S+2*k+j}, v{T2}')
        for j in range(2): slow(ex(E0+j, E0+j))
        slow(cv(PX + k if k < 4 else PM, E0))
    slow(mf32(LACC, ONES, PX, '0')); slow(mf32(OA, VX, PX, '0')); slow(mf32(OA+4, VX+4, PX, '0'))
    slow(mf16(LACC, ONES, PM, LACC)); slow(mf16(OA, V0, PM, OA)); slow(mf16(OA+4, V1, PM, OA+4))
    slow(f'v_rcp_f32 v{T2}, v{LACC}')
    for r in range(4): slow(f'v_mul_f32 v{OA+r}, v{OA+r}, v{T2}')
    slow(f's_nop 7\ns_branch FBC{tag}')
    stamp()
    acc = [AQK, AQK+4, AQK+8, AQK+12, MEMA+16, MEMA+20, MEMA+24, MEMA+28]
    land = [KW, KW+8, KW+16, KW+24, MEMA, QT+8, S, ACCV]
    for r in list(range(AQK+10, AQK+16, 2)) + list(range(MEMA+16, MEMA+32, 2)): p(f'v_mov_b64 {vr(r,2)}, 0')
    w1 = []
    for t in range(8): w1 += [rd128(land[t], wl(1, t)), rd128(land[t] + 4, wl(1, t) + 1024)]
    npre = opt.get('w1pre', 2)
    for x in w1[:npre]: p(x)
    p(f's_waitcnt vmcnt({nslow})')
    p(f's_waitcnt lgkmcnt({npre})'); p('s_barrier')
    stamp()
    OP = QT
    p(rd128(OP, L_O)); p(rd128(OP+4, L_O + 1024))
    if full: p(qkw(L_KM + 4, 0, V0)); p(qkw(L_KM + 4, 1, V1))
    nmid = opt.get('w1mid', 4 if full else 6)
    for x in w1[npre:npre+nmid]: p(x)
    w1 = w1[npre+nmid:]
    def pst(t): return f'buffer_store_dword v{acc[t]}, v{AP}, {SRD}, s{sPART+t} offen'
    book = [f's_add_u32 s{sSTEP}, s{sSTEP}, 1', f's_xor_b32 s{sMEM}, s{sMEM}, 8192', f's_xor_b32 s{sMEM2}, s{sMEM2}, 8192',
            f's_xor_b32 s{sIN}, s{sIN}, {INBOX_SLOT}', f's_xor_b32 s{sIN2}, s{sIN2}, {INBOX_SLOT}']
    if w == 3: book += [f's_add_u32 s{r}, s{r}, {32*16384}' for r in (sPF, sPF+1)]
    es = [epi(acc[t]) for t in range(8)]
    for t in range(8):
        p(smf(acc[t], OP, wo0(t)))
        if t >= 3: p(pst(t-3))
        if w1: p(w1.pop(0))
        elif book: p(book.pop(0))
        if t >= 2: p(es[t-2][2])
        p(smf(acc[t], OP+4, vr(land[t], 8)))
        if w1 and (t < 1 or opt.get('w1both', 1)): p(w1.pop(0))
        elif book: p(book.pop(0))
        if t >= 1: p(es[t-1][0]); p(es[t-1][1])
    p(pst(5)); p(es[6][2]); p(pst(6))
    p(es[7][0]); p(es[7][1]); p(es[7][2]); p(pst(7))
    pastS7[0] = True
    stamp()
    if full: book.append(f's_add_u32 s{sKVM}, s{sKVM}, {32*4096}')
    if w == 3:
        if full:
            p(f"""s_add_u32 s{sNEED}, s{sSTEP}, 1
            s_lshr_b32 s{sNEED}, s{sNEED}, 2
            s_add_u32 s{sNEED}, s{sNEED}, 1
            s_min_u32 s{sNEED}, s{sNEED}, 16
            s_waitcnt vmcnt(8)
            v_cmp_gt_u32 vcc, s{sNEED}, v{T3}""")
        p('\n'.join(kdma(p) + vdma(p)))
        if full:
            p(f's_cbranch_vccnz KVW\nKVR:')
            slow(f'KVW:\nv_and_b32 v{T2}, 63, v{AP}')
            common.wait_flags(slow, 'KVL', T2, f's{sFKV}', f's{sNEED}', T3)
            slow('s_branch KVR')
        book += [f's_add_u32 s{r}, s{r}, {32*16384}' for r in (sK, sK2, sV, sV2)]
    if w == 0: p(rd128(S, L_SEL))
    hk1 = []
    for t in range(8): hk1 += [f's_xor_b32 s{sPART+t}, s{sPART+t}, {INBOX_SLOT}', f'v_mov_b64 {vr(AQK+2*t,2)}, 0']
    pre = [x for i in range(4) for x in wrd(i, 0, i).split('\n')]
    z2 = [f'v_mov_b64 {vr(AQK+r,2)}, 0' for r in range(16, 24, 2)] + [f'v_mov_b64 {vr(NEG,2)}, -1', f'v_mov_b64 {vr(NEG+2,2)}, -1']
    hk2 = []
    for i, x in enumerate(pre): hk2 += [x] + ([z2[i]] if i < len(z2) else [])
    for b_ in book: p(b_)
    if w == 0:
        R0, R = S + 4, S + 8
        if var >= 1: p('\n'.join(hk1))
        if var >= 2: p('\n'.join(hk2))
        for _ in range(opt.get('dly', (0, 0, 0))[var]): p('s_nop 3')
        loads = [f'buffer_load_dwordx4 {vr(MEMA+4*u,4)}, v{AL0}, {SRD}, s{sIN if u < 4 else sIN2} offen offset:{(u&3)*1024} sc1' for u in range(8)]
        if opt.get('w0st'): sv = nst[0]; nst[0] = 1; stamp(); nst[0] = sv
        p('\n'.join(loads))
        if var < 1: p('\n'.join(hk1))
        if var < 2: p('\n'.join(hk2))
        p(f'RBR{tag}:')
        for u in range(8):
            p(mf32(R0 if u == 0 else R, S, MEMA + 4*u, '0' if u == 0 else R0 if u == 1 else R))
            if opt.get('w0st') and u in (0, 7): sv = nst[0]; nst[0] = 2 if u == 0 else 3; stamp(); nst[0] = sv
            if u == 2: p(f'v_cmp_u_f32 vcc, v{R0}, v{R0}')
            if u == 3: p(f's_cbranch_vccnz RBE{tag}\nRBF{tag}:')
        p(f'v_cmp_u_f32 vcc, v{R}, v{R}')
        p(f'v_cvt_pk_bf16_f32 v{R}, v{R}, v{R+2}')
        p(f's_cbranch_vccnz RBC{tag}\nRBD{tag}:')
        if opt.get('b4') == 2: p('s_barrier')
        p(f'buffer_store_dword v{R}, v{T3}, {SRD}, s{sPUB} offen')
        if opt.get('b4') == 1: p('s_barrier')
        p(f's_xor_b32 s{sPUB}, s{sPUB}, 8192\nbuffer_store_dword v{NEG}, v{AP}, {SRD}, s{sPUB} offen')
        if full: p(rd128(QT, L_KM + w*1024))
        if opt.get('hist'):
            p(f's_lshl_b32 s3, s{sSTEP}, 13\ns_add_u32 s3, s3, {WS_G}\ns_lshl_b32 s34, s{sH}, 8\ns_add_u32 s3, s3, s34\nbuffer_store_dword v{R}, v{T3}, {SRD}, s3 offen')
        slow(f'RBE{tag}:'); slow(mx(1, MEMA, 0)); slow(mx(1, MEMA, 1)); slow(CMP); slow(f's_cbranch_vccz RBF{tag}\ns_branch RB{tag}')
        slow(f'RBC{tag}:')
        for u in range(8): slow(mx(u == 0, MEMA + 4*u, 0)); slow(mx(u == 0, MEMA + 4*u, 1))
        slow(CMP); slow(f's_cbranch_vccz RBD{tag}')
        slow(f'RB{tag}:'); slow('\n'.join('@nowait ' + l for l in loads)); slow(TMO(sRB)); slow(f's_branch RBR{tag}')
    else:
        p('\n'.join(hk1)); p('\n'.join(hk2))
        if opt.get('b4'): p('s_barrier')
        if full: p(rd128(QT, L_KM + w*1024))
        slp = opt.get('slp3', opt.get('slp')) if w == 3 else opt.get('slp')
        if slp: p(f's_sleep {slp}')
        for _ in range(opt.get('slpn', 0)): p('s_nop 7')
    stamp()
    p(f's_cmp_lt_u32 s{sSTEP}, {nsteps}\ns_cbranch_scc1 HA{tag}')
    if w:
        n = len(fb)
        sets = (LB, S)
        slow(f'SB{w}:')
        slow('@wait_reset')
        for i, t in enumerate(fb): slow('@nowait ' + gld(sets[0] + 4*i, t))
        slow(TMO(sRB)); slow('s_nop 15')
        slow(f'SL{w}:')
        for k in range(2):
            for i, t in enumerate(fb): slow('@nowait ' + gld(sets[1-k] + 4*i, t))
            slow(f's_waitcnt vmcnt({n})')
            for i, t in enumerate(fb): slow('@nowait ' + mwr(sets[k] + 4*i, t))
            for i, t in enumerate(fb): slow('@nowait ' + mx(i == 0, sets[k] + 4*i, 0)); slow('@nowait ' + mx(i == 0, sets[k] + 4*i, 1))
            slow(CMP); slow(f's_cbranch_vccz SK{w}')
        slow(TMO(sRB)); slow(f's_branch SL{w}')
        slow(f'SK{w}:'); slow(f's_waitcnt lgkmcnt(0) vmcnt(0)\ns_branch SBR{w}')
    slow(f'CE{tag}:'); slow('\n'.join(hk2)); slow(f's_branch HA{tag}')
    fin = Prog()
    if var == 0:
        fin(f'FIN{w}:')
        if w:
            fr = (w-1,) + fb
            fin(f'FL{w}:')
            for i, t in enumerate(fr): fin(gld(S + 4*i, t))
            fin(TMO(sRETRY))
            for i, t in enumerate(fr): fin(mx(i == 0, S + 4*i, 0)); fin(mx(i == 0, S + 4*i, 1))
            fin(CMP); fin(f's_cbranch_vccnz FL{w}')
        fin('s_waitcnt lgkmcnt(0)\ns_barrier')
        if w:
            for i, t in enumerate(fr): fin(mwr(S + 4*i, t))
        fin(f'buffer_store_dwordx4 {vr(QT,4)}, v{AL0}, {SRD}, s{sKVM} offen sc1\ns_add_u32 s{sKVM}, s{sKVM}, {32*4096}')
        fin('s_waitcnt lgkmcnt(0)\ns_barrier')
        for t in range(8): fin(rd128(MEMA + 4*t, mloc(t)))
        for t in range(8):
            fin(v1s(t))
            if t < 4: fin(wrd(t, 0, t + 4))
            fin(ks_(0, t)); fin(ks_(1, t)); fin(v0s(t))
        fin('s_barrier')
        for a_, off, u in ((V1, 4, 1), (K0, 0, 0), (K1, 0, 1), (V0, 4, 0)):
            fin('\n'.join(epi(a_))); fin(qkw(L_KM + off, u, a_))
        fin('s_waitcnt lgkmcnt(0)\ns_barrier')
        fin(rd128(QT, L_KM + w*1024))
        fin(f'buffer_store_dwordx4 {vr(QT,4)}, v{AL0}, {SRD}, s{sKVM} offen sc1\ns_waitcnt vmcnt(0)\ns_barrier')
        if w == 0:
            fin(f'v_mov_b32 v{T0}, 64\ns_mov_b64 exec, 1\nbuffer_store_dword v{T0}, v{AL0}, {SRD}, s{sFCH} offen sc1\ns_mov_b64 exec, -1')
        fin('s_branch L_DONE')
    return p.lines, slow.lines, fin.lines

DEF = dict(D=3, sp=3, sbw=4, sbb=11, xa=1, dly=(8, 4, 2), b4=1)
def role(out, opt):
    from main import stamp
    o2 = dict(DEF); o2.update(opt); opt = o2
    T = opt.get('time')
    p = Prog()
    p('R_CHAIN:')
    startup(p, D_CHINIT)
    if T: stamp(p, 2)
    common.wait_dbg(p, 'C_init', D_CHINIT, 32)
    p(f's_cmp_lg_u32 s{sW}, 3\ns_cbranch_scc1 C_nok0')
    common.wait_dbg(p, 'C_init2', D_INIT, 1)
    p(f'v_and_b32 v{T2}, 63, v{AP}')
    common.wait_flags(p, 'C_kv', T2, f's{sFKV}', 1, T3)
    p('\n'.join(kdma(p) + vdma(p)))
    for r in (sK, sK2, sV, sV2): p(f's_add_u32 s{r}, s{r}, {32*16384}')
    p('s_waitcnt vmcnt(0)\nC_nok0:\ns_barrier')
    if T: stamp(p, 3)
    vb = opt.get('vb', (12, 20))
    p(f"""s_cmp_eq_u32 s{sW}, 1
    s_cbranch_scc1 CE1
    s_cmp_eq_u32 s{sW}, 2
    s_cbranch_scc1 CE2
    s_cmp_eq_u32 s{sW}, 3
    s_cbranch_scc1 CE3
    s_cmp_lt_u32 s{sH}, {vb[0]}
    s_cbranch_scc1 CE0v0
    s_cmp_lt_u32 s{sH}, {vb[1]}
    s_cbranch_scc1 CE0v1
    s_branch CE0v2""")
    o, st = process(p.lines); out += o
    for w, var in ((0, 0), (0, 1), (0, 2), (1, 0), (2, 0), (3, 0)):
        body, slow, fin = step(w, 63, opt, var)
        o, st = loop(body, State())
        o = hoist_waits(o)
        o_, st = loop(o, State())
        assert o_ == o
        if T:
            q = Prog(); stamp(q, 4); o += process(q.lines)[0]
        out += ['.p2align 6'] + o + [f's_branch FIN{w}'] + process(slow)[0]
        if fin: out += process(['s_waitcnt lgkmcnt(0)', 's_nop 7'] + fin)[0][2:]
```

```python
from asmlib import *
from layout import *
SRD = 's[36:39]'
sRANK, sW, sXCC = 40, 47, 72
def vr(a, n): return f'v[{a}:{a+n-1}]' if n > 1 else f'v{a}'
def ar(a, n): return f'a[{a}:{a+n-1}]'
def tmo(r, lab='L_ABORT'): return f's_add_u32 s{r}, s{r}, 1\ns_cmp_gt_u32 s{r}, {LIMIT}\ns_cbranch_scc1 {lab}'

def entry(p, nwg=256):
    p(f'''
    s_cmp_ge_u32 s2, {nwg}
    s_cbranch_scc1 L_EXIT
    s_load_dwordx16 s[4:19], s[0:1], 0
    s_load_dwordx8 s[20:27], s[0:1], 64
    s_load_dwordx4 s[28:31], s[0:1], 96
    s_load_dwordx2 s[32:33], s[0:1], 112
    s_getreg_b32 s{sXCC}, hwreg(HW_REG_XCC_ID, 0, 3)
    v_lshrrev_b32 v66, 6, v0
    v_readfirstlane_b32 s{sW}, v66
    s_waitcnt lgkmcnt(0)
    s_mov_b32 s36, s32
    s_mov_b32 s37, s33
    s_mov_b32 s38, {WS_SIZE}
    s_mov_b32 s39, 0x20000
    ''')

def register(p):
    p(f'''
    s_lshl_b32 s3, s{sXCC}, 5
    v_mov_b32 v1, s3
    v_mov_b32 v2, 1
    v_mov_b32 v4, 0
    v_cmp_eq_u32 vcc, 0, v0
    s_and_saveexec_b64 s[34:35], vcc
    s_cbranch_execz L_reg_skip
    global_atomic_add v3, v1, v2, s[30:31] sc0
    L_reg_skip:
    s_mov_b64 exec, s[34:35]
    s_cmp_lg_u32 s2, 0
    s_cbranch_scc1 L_noclear
    v_mov_b32 v8, 0
    v_mov_b32 v9, 0
    v_mov_b32 v10, 0
    v_mov_b32 v11, 0
    v_lshlrev_b32 v5, 4, v0
    @nowait buffer_store_dwordx4 v[8:11], v5, {SRD}, 0 offen sc1
    v_add_u32 v5, 0x1000, v5
    @nowait buffer_store_dwordx4 v[8:11], v5, {SRD}, 0 offen sc1
    v_add_u32 v5, 0x1000, v5
    @nowait buffer_store_dwordx4 v[8:11], v5, {SRD}, 0 offen sc1
    v_add_u32 v5, 0x1000, v5
    @nowait buffer_store_dwordx4 v[8:11], v5, {SRD}, 0 offen sc1
    s_waitcnt vmcnt(0)
    s_barrier
    v_mov_b32 v5, {D_INIT}
    s_mov_b64 exec, 1
    global_store_dword v5, v2, s[30:31] sc1
    s_mov_b64 exec, -1
    L_noclear:
    v_cmp_eq_u32 vcc, 0, v0
    s_and_saveexec_b64 s[34:35], vcc
    s_cbranch_execz L_reg_skip2
    s_waitcnt vmcnt(0)
    ds_write_b32 v4, v3
    s_waitcnt lgkmcnt(0)
    L_reg_skip2:
    s_mov_b64 exec, s[34:35]
    s_barrier
    ds_read_b32 v3, v4
    s_waitcnt lgkmcnt(0) vmcnt(0)
    v_readfirstlane_b32 s{sRANK}, v3
    s_barrier
    @wait_reset
    ''')

def wait_dbg(p, lab, off, val, vt=1, st=3):
    p(f'''
    v_mov_b32 v{vt}, {off}
    s_mov_b32 s{st}, 0
    {lab}:
    global_load_dword v{vt+1}, v{vt}, s[30:31] sc1
    {tmo(st)}
    s_waitcnt vmcnt(0)
    v_readfirstlane_b32 s34, v{vt+1}
    s_cmp_lt_u32 s34, {val}
    s_cbranch_scc1 {lab}
    ''')

def wait_flags(p, lab, voff, soff, need, vt, st=3, sleep=1):
    p(f'''
    s_mov_b32 s{st}, 0
    s_branch {lab}_go
    {lab}:
    s_sleep {sleep}
    {lab}_go:
    buffer_load_dword v{vt}, v{voff}, {SRD}, {soff} offen sc1
    {tmo(st)}
    s_waitcnt vmcnt(0)
    v_cmp_gt_u32 vcc, {need}, v{vt}
    s_cbranch_vccnz {lab}
    ''')

def set_flag(p, vval, soff, voff):
    p(f's_mov_b64 exec, 1\nbuffer_store_dword v{vval}, v{voff}, {SRD}, {soff} offen sc1\ns_mov_b64 exec, -1')
```

```python
WS_FLAGS = 0x0
WS_MEMS  = 0x10000
WS_INBOX = 0x100000
INBOX_STRIDE = 8448
INBOX_SLOT = 0x42000
WS_MEMH  = 0x200000
WS_KVM   = 0x200000
WS_XN    = 0xE00000
WS_KV    = 0x1000000
WS_Q     = 0x3000000
WS_O     = 0x4000000
WS_G     = 0x5000000
WS_SIZE  = 0x10000000
L_K, L_Q, L_KM, L_V, L_O, L_VP, L_C, L_W = 0, 8192, 12288, 16384, 24576, 26624, 28672, 32768
L_SEL = L_C
L_ONE = L_C + 1024
L_DUM = L_C + 2048
F_XN, F_KV, F_Q, F_CH, F_G, F_O = 0x0, 0x400, 0xC00, 0x1000, 0x1800, 0x2000
FLAGS_BYTES = 0x4000
WS_DBG = 0x6000000
D_CHINIT, D_INIT = 4, 36
LIMIT = 1 << 17
```

```python
import sys
from common import *
import s01
NAME = 'recurrent_scan__memory_aug_recurrent_mem_tr__mixer_s_mlp__prompt_kernel'

def stamp(p, i):
    p(f's_memrealtime s[96:97]\ns_waitcnt lgkmcnt(0)\ns_mov_b32 s{80+i}, s96')

def build(opt={}):
    roles = opt.get('roles', 'CBWAO')
    T = opt.get('time')
    p = Prog()
    entry(p)
    if T:
        for i in range(8): p(f's_mov_b32 s{80+i}, 0')
        stamp(p, 0)
    xm = opt.get('xmap', (0, 4, 5, 6, 7, 2, 3, 1))
    if tuple(xm) != tuple(range(8)):
        p(f's_lshl_b32 s3, s{sXCC}, 2\ns_lshr_b32 s{sXCC}, {sum(x << (4*i) for i, x in enumerate(xm))}, s3\ns_and_b32 s{sXCC}, s{sXCC}, 7')
    register(p)
    p(f's_cmp_ge_u32 s{sRANK}, 32\ns_cbranch_scc1 L_EXIT')
    if T: stamp(p, 1)
    p(f's_cmp_eq_u32 s{sXCC}, 0\ns_cbranch_scc1 {"R_CHAIN" if "C" in roles else "L_DONE"}')
    p(f's_cmp_eq_u32 s{sXCC}, 1\ns_cbranch_scc1 {"R_BPATH" if "B" in roles else "L_DONE"}')
    lines = []
    if 'W' in roles:
        p(f'''s_sub_u32 s3, s{sXCC}, 2
        s_lshl_b32 s3, s3, 5
        s_add_u32 s3, s3, s{sRANK}
        s_mul_i32 s52, s3, 21846
        s_lshr_b32 s52, s52, 16
        s_mul_i32 s34, s52, 3
        s_cmp_lg_u32 s34, s3
        s_cbranch_scc1 L_noS0''')
        s01.s0(p, 52)
        p('L_noS0:\n@wait_reset')
        s01.s1_start(p)
        if T: stamp(p, 2)
        s01.s1_weights(p)
        if T: stamp(p, 3)
        o, st = process(p.lines); lines += o
        st = s01.s1_main(lines, st)
        p = Prog()
        if T: stamp(p, 4)
    if 'A' in roles or 'O' in roles:
        import s34
        p(f's_cmp_ge_u32 s{sXCC}, 4\ns_cbranch_scc1 {"R_S4" if "O" in roles else "L_DONE"}')
        if 'A' not in roles: p('s_branch L_DONE')
        o, st = process(p.lines); lines += o
        if 'A' in roles: s34.s3(lines, opt)
        if 'O' in roles: s34.s4(lines, opt)
    else:
        p('s_branch L_DONE')
        o, st = process(p.lines); lines += o
    if 'B' in roles:
        import s2
        s2.bpath(lines, opt)
    if 'C' in roles:
        import chain
        chain.role(lines, opt)
    q = Prog()
    q('L_ABORT:')
    q('L_DONE:')
    if T:
        stamp(q, 7)
        q(f'''s_lshl_b32 s3, s{sXCC}, 5
        s_add_u32 s3, s3, s{sRANK}
        s_lshl_b32 s3, s3, 2
        s_add_u32 s3, s3, s{sW}
        s_lshl_b32 s3, s3, 5
        s_add_u32 s3, s3, {WS_DBG}
        v_mov_b32 v1, 0''')
        for i in range(8): q(f'v_mov_b32 v{4+i}, s{80+i}')
        q(f'''s_mov_b64 exec, 1
        buffer_store_dwordx4 v[4:7], v1, {SRD}, s3 offen
        buffer_store_dwordx4 v[8:11], v1, {SRD}, s3 offen offset:16''')
    q('L_EXIT:\ns_endpgm')
    o, _ = process(q.lines); lines += o
    return header(['grid=(256,1,1) block=(256,1,1) lds=163840'], f'; opt {opt}\n' if opt else '') + kernel_open(NAME) + fmt(lines) + '.section .rodata,"a"\n' + descriptor(NAME)

if __name__ == '__main__':
    o = eval(sys.argv[2]) if len(sys.argv) > 2 else {}
    open(sys.argv[1], 'w').write(build(o))
```

```python
from common import *
def dppsum8(p, r):
    p(f'''v_add_f32_dpp v{r}, v{r}, v{r} quad_perm:[1,0,3,2] row_mask:0xf bank_mask:0xf
    v_add_f32_dpp v{r}, v{r}, v{r} quad_perm:[2,3,0,1] row_mask:0xf bank_mask:0xf
    v_add_f32_dpp v{r}, v{r}, v{r} row_half_mirror row_mask:0xf bank_mask:0xf''')

def s0(p, sSEG):
    RAW, F = 32, 64
    p(f'''
    v_and_b32 v1, 63, v0
    v_lshrrev_b32 v2, 3, v0
    v_and_b32 v3, 7, v0                ; p
    v_lshrrev_b32 v4, 1, v3
    v_and_b32 v5, 1, v3
    v_lshlrev_b32 v6, 10, v2
    v_lshl_add_u32 v6, v4, 5, v6
    v_lshl_add_u32 v6, v5, 3, v6       ; token*1024 + 32*(p>>1) + 8*(p&1)
    s_lshl_b32 s3, s{sSEG}, 15
    v_add_u32 v6, s3, v6
    v_lshlrev_b32 v7, 10, v4
    v_lshl_add_u32 v7, v5, 9, v7
    v_lshl_add_u32 v7, v2, 4, v7       ; (p>>1)*1024 + (p&1)*512 + token*16
    s_add_u32 s35, s3, {WS_XN}
    ''')
    for j in range(8):
        p(f'global_load_dwordx2 {vr(RAW+4*j,2)}, v6, s[4:5] offset:{128*j}')
        p(f'global_load_dwordx2 {vr(RAW+4*j+2,2)}, v6, s[4:5] offset:{128*j+16}')
    for i in range(32):
        p(f'v_lshlrev_b32 v{F+2*i}, 16, v{RAW+i}\nv_and_b32 v{F+2*i+1}, 0xffff0000, v{RAW+i}')
    p(f'v_add_f32 v8, v{F}, v{F+1}')
    for i in range(2, 64): p(f'v_add_f32 v8, v8, v{F+i}')
    dppsum8(p, 8)
    p('v_mul_f32 v8, 0x3b000000, v8')
    for i in range(64): p(f'v_sub_f32 v{F+i}, v{F+i}, v8')
    p(f'v_mul_f32 v9, v{F}, v{F}')
    for i in range(1, 64): p(f'v_fmac_f32 v9, v{F+i}, v{F+i}')
    dppsum8(p, 9)
    p('v_mov_b32 v10, 0x3727c5ac\nv_fmac_f32 v10, 0x3b000000, v9\nv_rsq_f32 v10, v10')
    for i in range(64): p(f'v_mul_f32 v{F+i}, v{F+i}, v10')
    for i in range(32): p(f'v_cvt_pk_bf16_f32 v{RAW+i}, v{F+2*i}, v{F+2*i+1}')
    for j in range(8):
        p(f'buffer_store_dwordx4 {vr(RAW+4*j,4)}, v7, {SRD}, s35 offen sc1')
        p('s_add_u32 s35, s35, 4096')
    wait_dbg(p, 'S0_init', D_INIT, 1, vt=12)
    p(f'''s_barrier
    s_cmp_lg_u32 s{sW}, 0
    s_cbranch_scc1 S0_done
    v_mov_b32 v12, 0
    v_mov_b32 v13, 1
    s_lshl_b32 s3, s{sSEG}, 2''')
    set_flag(p, 13, 's3', 12)
    p('S0_done:')

sMAT, sPAIR, sQR = 41, 42, 43
sX, sXN, sOUT, sFLG, sI, sC = 44, 45, 46, 48, 49, 50
AL, VO, ZERO, VAL = 10, 11, 12, 13
RING, ACC, PK = 64, 128, 160
SRDW = 's[68:71]'

def s1_dma(p, c):
    for i in range(8):
        p(f's_add_u32 m0, s66, {(c & 3)*8192 + i*1024}')
        p(f's_add_u32 s3, s67, {(c*64 + i*8)*8192}')
        p(f'buffer_load_dwordx4 v14, {SRDW}, s3 offen lds')

def s1_start(p):
    p(f'''
    s_sub_u32 s3, s{sXCC}, 2
    s_lshr_b32 s{sMAT}, s3, 1
    s_and_b32 s3, s3, 1
    s_lshl_b32 s3, s3, 3
    s_lshr_b32 s34, s{sRANK}, 2
    s_add_u32 s{sPAIR}, s3, s34
    s_and_b32 s{sQR}, s{sRANK}, 3
    s_mov_b32 s68, s10
    s_mov_b32 s69, s11
    s_cmp_eq_u32 s{sMAT}, 1
    s_cselect_b32 s68, s12, s68
    s_cselect_b32 s69, s13, s69
    s_cmp_eq_u32 s{sMAT}, 2
    s_cselect_b32 s68, s8, s68
    s_cselect_b32 s69, s9, s69
    s_mov_b32 s70, 0x400000
    s_mov_b32 s71, 0x20000
    s_lshl_b32 s67, s{sPAIR}, 9
    s_lshl_b32 s3, s{sW}, 7
    s_add_u32 s67, s67, s3
    s_lshl_b32 s66, s{sW}, 15
    v_and_b32 v20, 63, v0
    v_lshrrev_b32 v21, 3, v20
    v_and_b32 v22, 7, v20
    v_lshrrev_b32 v23, 4, v20          ; g
    v_and_b32 v24, 1, v23
    v_lshlrev_b32 v25, 2, v24
    v_xor_b32 v22, v22, v25
    v_lshlrev_b32 v22, 4, v22
    v_lshl_add_u32 v14, v21, 13, v22
    v_and_b32 v25, 15, v20
    v_lshrrev_b32 v26, 2, v25          ; r
    v_and_b32 v25, 3, v25              ; c
    v_lshrrev_b32 v27, 1, v23          ; hi
    v_lshl_add_u32 v27, v27, 2, v26
    v_lshlrev_b32 v27, 7, v27
    v_lshrrev_b32 v26, 1, v26
    v_lshl_add_u32 v27, v26, 6, v27
    v_lshl_add_u32 v27, v24, 5, v27
    v_lshl_add_u32 v27, v25, 3, v27
    v_add_u32 v15, s66, v27
    v_xor_b32 v16, 64, v15
    ''')
    for c in range(4): s1_dma(p, c)

def s1_weights(p):
    for c in range(8):
        p(f's_waitcnt vmcnt({8*min(3, 7-c)})')
        for ct in range(2):
            for k in range(4):
                ks = 4*c + k
                for h in range(2):
                    d = (ct*32 + ks)*4 + 2*h
                    p(f'ds_read_b64_tr_b16 a[{d}:{d+1}], v{15+ct} offset:{(c&3)*8192 + (16*k + 8*h)*128}')
            p('s_waitcnt lgkmcnt(0)')
        if c + 4 < 8: s1_dma(p, c + 4)

def s1_main(p_lines_out, carry):
    p = Prog()
    p(f'''
    v_and_b32 v20, 63, v0
    v_lshlrev_b32 v{AL}, 4, v20
    v_lshlrev_b32 v21, 2, v20
    v_mov_b32 v{ZERO}, 0
    s_cmp_lg_u32 s{sW}, 0
    s_cbranch_scc1 S1_xok
    ''')
    wait_dbg(p, 'S1_init', D_INIT, 1, vt=22)
    wait_flags(p, 'S1_xn', 21, F_XN, 1, 22)
    p(f'''buffer_inv sc1
    s_waitcnt vmcnt(0)
    S1_xok:
    s_barrier
    s_lshl_b32 s3, s{sQR}, 15
    s_add_u32 s{sX}, s3, {WS_XN}
    s_mov_b32 s{sI}, 0
    s_mov_b32 s{sC}, 0x3e0293ee
    s_lshr_b32 s34, s{sW}, 1
    s_lshl_b32 s35, s{sPAIR}, 1
    s_add_u32 s34, s34, s35               ; head
    s_lshl_b32 s35, s{sQR}, 5
    s_add_u32 s35, s35, s34
    s_and_b32 s51, s{sW}, 1
    v_and_b32 v21, 15, v20
    v_lshlrev_b32 v21, 4, v21
    v_lshrrev_b32 v22, 5, v20
    v_lshl_add_u32 v21, v22, 8, v21       ; hi*256 + (l&15)*16
    v_bfe_u32 v22, v20, 4, 1
    ''')
    for k in range(16):
        p(f's_add_u32 s3, s{sX}, {(k>>2)*4096}') if k % 4 == 0 else None
        p(f'buffer_load_dwordx4 {vr(RING+4*k,4)}, v{AL}, {SRD}, s3 offen offset:{(k&3)*1024}')
    p(f'''s_cmp_eq_u32 s{sMAT}, 1
    s_cbranch_scc1 S1_V
    v_lshl_add_u32 v{VO}, v22, 12, v21
    s_cmp_eq_u32 s{sMAT}, 2
    s_cbranch_scc1 S1_Q
    s_lshl_b32 s{sOUT}, s35, 14
    s_lshl_b32 s3, s51, 11
    s_add_u32 s{sOUT}, s{sOUT}, s3
    s_add_u32 s{sOUT}, s{sOUT}, {WS_KV}
    s_lshl_b32 s{sFLG}, s34, 6
    s_lshl_b32 s3, s{sQR}, 4
    s_add_u32 s{sFLG}, s{sFLG}, s3
    s_lshl_b32 s3, s51, 2
    s_add_u32 s{sFLG}, s{sFLG}, s3
    s_add_u32 s{sFLG}, s{sFLG}, {F_KV}
    s_branch S1_LK
    S1_Q:
    s_lshl_b32 s{sOUT}, s35, 13
    s_lshl_b32 s3, s51, 11
    s_add_u32 s{sOUT}, s{sOUT}, s3
    s_add_u32 s{sOUT}, s{sOUT}, {WS_Q}
    s_lshl_b32 s{sFLG}, s34, 5
    s_lshl_b32 s3, s{sQR}, 3
    s_add_u32 s{sFLG}, s{sFLG}, s3
    s_lshl_b32 s3, s51, 2
    s_add_u32 s{sFLG}, s{sFLG}, s3
    s_add_u32 s{sFLG}, s{sFLG}, {F_Q}
    s_branch S1_LQ
    S1_V:
    v_lshl_add_u32 v{VO}, v22, 10, v21
    s_lshl_b32 s{sOUT}, s35, 14
    s_lshl_b32 s3, s51, 12
    s_add_u32 s{sOUT}, s{sOUT}, s3
    s_add_u32 s{sOUT}, s{sOUT}, {WS_KV + 8192}
    s_lshl_b32 s{sFLG}, s34, 6
    s_lshl_b32 s3, s{sQR}, 4
    s_add_u32 s{sFLG}, s{sFLG}, s3
    s_lshl_b32 s3, s51, 2
    s_add_u32 s{sFLG}, s{sFLG}, s3
    s_add_u32 s{sFLG}, s{sFLG}, {F_KV + 8}
    s_branch S1_LV
    ''')
    o, st = process(p.lines, carry=carry)
    p_lines_out += o
    for kind in 'KQV':
        b = Prog()
        b(f'S1_L{kind}:')
        b(f's_add_u32 s{sXN}, s{sX}, {4*32768}\ns_cmp_eq_u32 s{sI}, 15\ns_cselect_b32 s{sXN}, s{sX}, s{sXN}')
        for ks in range(32):
            r = RING + 4*(ks & 15)
            for ct in range(2):
                wf = ar((ct*32 + ks)*4, 4); acc = vr(ACC + 16*ct, 16)
                a_, b_ = (vr(r, 4), wf) if kind == 'V' else (wf, vr(r, 4))
                b(f'v_mfma_f32_32x32x16_bf16 {acc}, {a_}, {b_}, {"0" if ks == 0 else acc}')
            nk = (ks + 16) & 31
            if nk % 4 == 0: b(f's_add_u32 s3, s{sX if ks < 16 else sXN}, {(nk>>2)*4096}')
            b(f'buffer_load_dwordx4 {vr(r,4)}, v{AL}, {SRD}, s3 offen offset:{(nk&3)*1024}')
            if ks == 17:
                b(f'v_mov_b32 v{VAL}, s{sI}')
                set_flag(b, VAL, f's{sFLG}', ZERO)
        for ct in range(2):
            A = ACC + 16*ct
            if kind == 'Q':
                for i in range(16): b(f'v_mul_f32 v{A+i}, s{sC}, v{A+i}')
            for c in range(2):
                src = [8*c + 2*i for i in range(4)] if kind != 'V' else [4*c, 4*c + 2, 4*c + 8, 4*c + 10]
                d = PK + 8*ct + 4*c
                for i, s_ in enumerate(src): b(f'v_cvt_pk_bf16_f32 v{d+i}, v{A+s_}, v{A+s_+1}')
                b(f'buffer_store_dwordx4 {vr(d,4)}, v{VO}, {SRD}, s{sOUT} offen offset:{(2048 if kind == "V" else 1024)*ct + 512*c} sc1')
        b(f'''s_mov_b32 s{sX}, s{sXN}
        s_add_u32 s{sOUT}, s{sOUT}, {4*32*(8192 if kind == "Q" else 16384)}
        s_add_u32 s{sI}, s{sI}, 1
        s_cmp_lt_u32 s{sI}, 16
        s_cbranch_scc1 S1_L{kind}''')
        o, _ = loop(b.lines, st)
        p_lines_out += ['.p2align 6'] + o + ['s_branch S1_END']
    e = Prog()
    e(f'S1_END:\ns_waitcnt vmcnt(0)\nv_mov_b32 v{VAL}, 16')
    set_flag(e, VAL, f's{sFLG}', ZERO)
    o, st = process(e.lines)
    p_lines_out += o
    return st
```

```python
from common import *
import math, struct
def f32(x): return hex(struct.unpack('<I', struct.pack('<f', x))[0])
LOG2E = math.log2(math.e)
GC0 = -2 * math.sqrt(2 / math.pi) * LOG2E
GC1 = GC0 * 0.044715
B_RING, B_ACT, B_U, B_STAT = 0, 65536, 131072, 147456
LANE, AL, VW, VN = 1, 2, 3, 4
TW = 5
TN = 9
A72, A64, AU, AST = 11, 12, 13, 14
A72B, TMP = 15, 16
WB, XB = 32, 64
X1, ACC3 = 96, 160
T2 = 224
sB, sSRC, sF, sG0, sG1, sONE = 41, 42, 43, 44, 45, 46
SW = {'w1': 's[52:55]', 'w2': 's[56:59]', 'w3': 's[60:63]', 'w4': 's[68:71]'}
sO = {'w1': 64, 'w2': 64, 'w3': 65, 'w4': 73}
sLDS = 66

def dma(mat, slot):
    L = []
    step = 8*2752 if mat == 'w3' else 4096
    for i in range(4):
        L.append(f's_add_u32 m0, s{sLDS}, {slot*4096 + i*1024}')
        L.append(f'buffer_load_dwordx4 v{VN if mat == "w3" else VW}, {SW[mat]}, s{sO[mat]} offen lds')
        L.append(f's_add_u32 s{sO[mat]}, s{sO[mat]}, {step}')
    return L

def reads(kind, slot, buf, actaddr):
    L = []
    if kind == 'narrow':
        for k in range(2):
            for tt in range(2):
                r, o = actaddr(k, tt); L.append(f'ds_read_b128 {vr(XB + 16*buf + 8*k + 4*tt, 4)}, v{r} offset:{o}')
            for ct in range(2):
                for h in range(2):
                    L.append(f'ds_read_b64_tr_b16 {vr(WB + 16*buf + 8*k + 4*ct + 2*h, 2)}, v{TN+ct} offset:{slot*4096 + (16*k + 8*h)*128}')
    else:
        for tt in range(3 if kind == 'wide3' else 2):
            r, o = actaddr(0, tt); L.append(f'ds_read_b128 {vr(XB + 16*buf + 4*tt, 4)}, v{r} offset:{o}')
        for ct in range(4):
            for h in range(2):
                L.append(f'ds_read_b64_tr_b16 {vr(WB + 16*buf + 4*ct + 2*h, 2)}, v{TW+ct} offset:{slot*4096 + h*2048}')
    return L

def mfmas(kind, buf, first):
    L = []
    if kind == 'narrow':
        for k in range(2):
            for ct in range(2):
                for tt in range(2):
                    acc = vr(ACC3 + 32*ct + 16*tt, 16)
                    L.append(f'v_mfma_f32_32x32x16_bf16 {acc}, {vr(WB + 16*buf + 8*k + 4*ct, 4)}, {vr(XB + 16*buf + 8*k + 4*tt, 4)}, {"0" if first and k == 0 else acc}')
    else:
        n = 3 if kind == 'wide3' else 2
        for ct in range(4):
            for tt in range(n):
                acc = ar((ct*n + tt)*16, 16)
                L.append(f'v_mfma_f32_32x32x16_bf16 {acc}, {vr(WB + 16*buf + 4*ct, 4)}, {vr(XB + 16*buf + 4*tt, 4)}, {"0" if first else acc}')
    return L

def chunk(p, kind, c, first, nxt_dma, actnext, vm=8):
    m = mfmas(kind, c & 1, first)
    fill = []
    if actnext is not None:
        fill = [f's_waitcnt vmcnt({vm})'] + reads(kind, (c + 1) & 3, (c + 1) & 1, actnext)
    d = dma(nxt_dma, c & 3) if nxt_dma else []
    per = -(-len(fill) // (len(m) - 1))
    for i, x in enumerate(m):
        p(x)
        for _ in range(per):
            if fill: p(fill.pop(0))
        if i >= len(m) - 4 and d:
            if i == len(m) - 4: p(f'@need v{WB + 16*(c & 1) + 15}')
            for _ in range(3): p(d.pop(0))

ACUR, ANXT = 15, 17
sG, sGN, sFN = 48, 49, 50
GE = {
    'w1': (8, A72, 4*2304, 65536), 'w2': (8, A72, 4*2304, 65536), 'w3': (4, A64, 8*2048, 128*2752), 'w4': (4, AU, 4*2048, 65536)}
def woff(mat, sg, sf):
    L = [f's_mul_i32 s{sO[mat]}, s{sg}, {GE[mat][3]}', f's_lshl_b32 s3, s{sW}, {7 if mat == "w3" else 8}', f's_add_u32 s{sO[mat]}, s{sO[mat]}, s3']
    if mat == 'w3': L += [f's_lshl_b32 s3, s{sf}, 9', f's_add_u32 s{sO[mat]}, s{sO[mat]}, s3']
    if mat == 'w4': L += [f's_lshl_b32 s3, s{sf}, 18', f's_add_u32 s{sO[mat]}, s{sO[mat]}, s3']
    return L
def abase(mat, sg, dst):
    L = [f's_mul_i32 s3, s{sg}, {GE[mat][2]}']
    if mat == 'w2':
        L += [f's_lshr_b32 s34, s{sg}, 1', 's_lshl_b32 s34, s34, 3', 's_lshr_b32 s34, 0x40003010, s34', 's_and_b32 s34, s34, 0xff', 's_add_u32 s3, s3, s34']
    return L + [f'v_add_u32 v{dst}, s3, v{GE[mat][1]}']
def first_group(mat, dst): return [f's_and_b32 s{dst}, s{sB}, {GE[mat][0] - 1}']

def gemm(out, st, name, kind, mat, nxt, sf, sfn, zero_first=True):
    n = GE[mat][0]
    ks = 2*2048 if kind == 'narrow' else GE[mat][2] // 4
    def act(cc):
        r, o = (ACUR, cc*ks) if cc < 4 else (ANXT, 0)
        return lambda k, tt: (r, o + k*2048 + tt*512)
    def setnext(): return [f's_add_u32 s{sGN}, s{sG}, 1', f's_and_b32 s{sGN}, s{sGN}, {n-1}'] + woff(mat, sGN, sf) + abase(mat, sGN, ANXT)
    adv = [f'v_mov_b32 v{ACUR}, v{ANXT}', f's_mov_b32 s{sG}, s{sGN}']
    p = Prog()
    for x in first_group(mat, sG) + abase(mat, sG, ACUR): p(x)
    p('s_waitcnt vmcnt(12)')
    for x in reads(kind, 0, 0, act(0)): p(x)
    trips = n - 1
    if zero_first:
        for x in setnext(): p(x)
        for c in range(4): chunk(p, kind, c, c == 0, mat, act(c + 1))
        for x in adv: p(x)
        trips -= 1
    p(f's_mov_b32 s35, {trips}')
    o, st = process(p.lines, carry=st); out += o
    b = Prog()
    b(f'{name}_L:')
    for x in setnext(): b(x)
    for c in range(4): chunk(b, kind, c, False, mat, act(c + 1))
    for x in adv: b(x)
    b(f's_sub_u32 s35, s35, 1\ns_cmp_lg_u32 s35, 0\ns_cbranch_scc1 {name}_L')
    o, st = loop(b.lines, st); out += ['.p2align 6'] + o
    p = Prog()
    for x in first_group(nxt, sGN) + woff(nxt, sGN, sfn): p(x)
    for c in range(4): chunk(p, kind, c, False, nxt, act(c + 1) if c < 3 else None)
    o, st = process(p.lines, carry=st); out += o
    return st

def gelu(p, regs, t):
    n = len(regs)
    for i, r in enumerate(regs): p(f'v_mul_f32 v{t+i}, v{r}, v{r}')
    for i, r in enumerate(regs): p(f'v_fma_f32 v{t+i}, v{t+i}, s{sG1}, v{TMP}')
    for i, r in enumerate(regs): p(f'v_mul_f32 v{t+i}, v{t+i}, v{r}')
    for i, r in enumerate(regs): p(f'v_exp_f32 v{t+i}, v{t+i}')
    for i, r in enumerate(regs): p(f'v_add_f32 v{t+i}, 1.0, v{t+i}')
    for i, r in enumerate(regs): p(f'v_rcp_f32 v{t+i}, v{t+i}')
    for i, r in enumerate(regs): p(f'v_mul_f32 v{r}, v{r}, v{t+i}')

def xsum32(p, r, t):
    p(f'v_mov_b32 v{t}, v{r}\nv_permlane32_swap_b32 v{r}, v{t}\nv_add_f32 v{r}, v{r}, v{t}')

def bpath(out, opt):
    T = opt.get('time')
    from main import stamp
    p = Prog()
    p(f'''R_BPATH:
    s_mov_b32 s{sB}, s{sRANK}
    s_mov_b32 s52, s20
    s_mov_b32 s53, s21
    s_mov_b32 s54, {512*512*2}
    s_mov_b32 s55, 0x20000
    s_mov_b32 s56, s22
    s_mov_b32 s57, s23
    s_mov_b32 s58, {512*512*2}
    s_mov_b32 s59, 0x20000
    s_mov_b32 s60, s24
    s_mov_b32 s61, s25
    s_mov_b32 s62, {512*1376*2}
    s_mov_b32 s63, 0x20000
    s_mov_b32 s68, s26
    s_mov_b32 s69, s27
    s_mov_b32 s70, {512*1376*2}
    s_mov_b32 s71, 0x20000
    s_lshl_b32 s{sLDS}, s{sW}, 14
    s_lshr_b32 s{sF}, s{sB}, 2
    s_cmp_ge_u32 s{sF}, 6
    s_cselect_b32 s3, 6, 0
    s_sub_u32 s{sF}, s{sF}, s3
    s_mov_b32 s{sG1}, {f32(GC1)}
    s_mov_b32 s{sONE}, 0x3f803f80
    v_and_b32 v{LANE}, 63, v0
    v_lshlrev_b32 v{AL}, 4, v{LANE}
    v_lshrrev_b32 v20, 4, v{LANE}          ; g
    v_and_b32 v21, 15, v{LANE}
    v_lshlrev_b32 v22, 2, v20
    v_xor_b32 v22, v22, v21
    v_lshlrev_b32 v22, 4, v22
    v_lshl_add_u32 v{VW}, v20, 10, v22
    ''')
    p('\n'.join(first_group('w1', sGN) + woff('w1', sGN, 0)))
    for c in range(4): p('\n'.join(dma('w1', c)))
    p(f'''
    v_lshrrev_b32 v22, 3, v{LANE}
    v_and_b32 v23, 7, v{LANE}
    v_and_b32 v24, 1, v20
    v_lshlrev_b32 v25, 2, v24
    v_xor_b32 v23, v23, v25
    v_lshlrev_b32 v23, 4, v23
    v_mul_u32_u24 v22, 2752, v22
    v_add_u32 v{VN}, v22, v23
    v_lshrrev_b32 v26, 2, v21              ; r
    v_and_b32 v25, 3, v21                  ; c
    v_lshrrev_b32 v27, 1, v20              ; hi
    v_lshl_add_u32 v28, v27, 2, v26
    v_lshlrev_b32 v29, 5, v24
    v_lshl_add_u32 v29, v25, 3, v29        ; (g&1)*32 + 8c
    v_add_u32 v29, s{sLDS}, v29
    v_lshl_add_u32 v30, v28, 8, v29
    v_lshl_add_u32 v{TW}, v26, 6, v30
    v_xor_b32 v{TW+1}, 64, v{TW}
    v_xor_b32 v{TW+2}, 0x80, v{TW}
    v_xor_b32 v{TW+3}, 0xc0, v{TW}
    v_lshl_add_u32 v30, v28, 7, v29
    v_lshrrev_b32 v26, 1, v26
    v_lshl_add_u32 v{TN}, v26, 6, v30
    v_xor_b32 v{TN+1}, 64, v{TN}
    v_and_b32 v22, 31, v{LANE}
    v_lshlrev_b32 v23, 4, v22
    v_mul_u32_u24 v24, {72*16}, v27
    v_add3_u32 v{A72}, v23, v24, 0
    v_add_u32 v{A72}, {B_ACT}, v{A72}
    v_lshl_add_u32 v{A64}, v27, 10, v23
    v_add_u32 v{AU}, {B_U}, v{A64}
    v_add_u32 v{A64}, {B_ACT}, v{A64}
    v_lshlrev_b32 v{AST}, 2, v22
    v_add_u32 v{AST}, {B_STAT}, v{AST}
    v_mov_b32 v{TMP}, {f32(GC0)}
    s_lshl_b32 s3, s{sB}, 6
    s_lshl_b32 s34, s{sW}, 5
    s_add_u32 s3, s3, s34
    s_sub_u32 s3, s3, 2
    v_add_u32 v24, s3, v22
    v_mov_b32 v25, 2047
    v_med3_i32 v24, v24, 0, v25
    v_lshrrev_b32 v25, 5, v24
    v_and_b32 v24, 31, v24
    v_lshlrev_b32 v25, 15, v25
    v_lshl_add_u32 v25, v24, 4, v25
    v_lshl_add_u32 v31, v27, 9, v25
    v_lshlrev_b32 v18, 2, v{LANE}
    s_cmp_lg_u32 s{sW}, 0
    s_cbranch_scc1 B_xok
    @wait_reset
    ''')
    wait_dbg(p, 'B_init', D_INIT, 1, vt=22)
    wait_flags(p, 'B_xn', 18, F_XN, 1, 22)
    p(f'''B_xok:
    s_barrier
    s_cmp_eq_u32 s{sW}, 3
    s_cbranch_scc1 B_noln
    s_mov_b32 s3, {WS_XN}''')
    R = 96
    for ks in range(32):
        p(f'buffer_load_dwordx4 {vr(R+4*ks,4)}, v31, {SRD}, s3 offen offset:{(ks&3)*1024} sc1')
        if ks & 3 == 3: p('s_add_u32 s3, s3, 4096')
    p('v_mov_b32 v19, 0\nv_mov_b32 v20, 0')
    for i in range(128): p(f'v_dot2c_f32_bf16 v19, s{sONE}, v{R+i}\nv_dot2c_f32_bf16 v20, v{R+i}, v{R+i}')
    xsum32(p, 19, 21); xsum32(p, 20, 21)
    p(f'''v_mul_f32 v19, 0x3b000000, v19
    v_mul_f32 v21, v19, v19
    v_fma_f32 v20, v20, 0.5, 0
    v_mul_f32 v20, 0x3b800000, v20
    v_sub_f32 v20, v20, v21
    v_add_f32 v20, 0x3727c5ac, v20
    v_rsq_f32 v20, v20
    v_mul_f32 v19, v19, v20
    s_lshl_b32 s3, s{sW}, 9
    v_add_u32 v22, s3, v{A72}
    v_add_u32 v23, {16*2304}, v22''')
    for ks in range(32):
        for i in range(4):
            r = R + 4*ks + i
            p(f'v_lshlrev_b32 v24, 16, v{r}\nv_and_b32 v25, 0xffff0000, v{r}\nv_fma_f32 v24, v24, v20, -v19\nv_fma_f32 v25, v25, v20, -v19\nv_cvt_pk_bf16_f32 v{r}, v24, v25')
        if True:
            p(f'ds_write_b128 v{22 + (ks >> 4)}, {vr(R+4*ks,4)} offset:{(ks & 15)*2304}')
        if ks == 0: pass
    p('B_noln:')
    lines = p.lines
    i0 = lines.index(f'v_add_u32 v23, {16*2304}, v22')
    lines[i0+1:i0+1] = [f's_cmp_eq_u32 s{sW}, 2', 's_cselect_b32 s34, 0xff, -1', 's_mov_b32 exec_lo, s34', 's_mov_b32 exec_hi, s34']
    p('s_mov_b64 exec, -1\ns_waitcnt lgkmcnt(0) vmcnt(0)\ns_barrier')
    if T: stamp(p, 2)
    o, st = process(p.lines); out += o
    st = gemm(out, st, 'B_G1', 'wide3', 'w1', 'w2', 0, 0)
    p = Prog()
    p(f'''s_barrier
    v_and_b32 v22, 31, v{LANE}
    s_lshl_b32 s3, s{sB}, 6
    s_sub_u32 s3, s3, 2
    v_add_u32 v22, s3, v22
    s_movk_i32 s3, 0x800
    v_cmp_gt_u32 s[74:75], s3, v22
    v_add_u32 v22, 64, v22
    v_cmp_gt_u32 s[76:77], s3, v22
    s_mul_i32 s3, s{sW}, {8*2304}
    v_add_u32 v23, s3, v{A72}''')
    for ct in range(4):
        for tt in range(3):
            a0 = (ct*3 + tt)*16
            for i in range(16): p(f'v_accvgpr_read_b32 v{ACC3+i}, a{a0+i}')
            gelu(p, list(range(ACC3, ACC3+16)), T2)
            for i in range(8):
                p(f'v_cvt_pk_bf16_f32 v{ACC3+16+i}, v{ACC3+2*i}, v{ACC3+2*i+1}')
                if tt != 1: p(f'v_cndmask_b32 v{ACC3+16+i}, 0, v{ACC3+16+i}, s[{74 if tt == 0 else 76}:{75 if tt == 0 else 77}]')
            if tt == 2: p('s_mov_b32 exec_lo, 0xff\ns_mov_b32 exec_hi, 0xff')
            for c in range(2): p(f'ds_write_b128 v23, {vr(ACC3+16+4*c,4)} offset:{(2*ct + c)*2304 + tt*512}')
            if tt == 2: p('s_mov_b64 exec, -1')
    p(f's_lshl_b32 s3, s{sB}, 16\ns_lshl_b32 s34, s{sW}, 13\ns_add_u32 s3, s3, s34\ns_add_u32 s{sG0}, s3, {WS_G}\ns_add_u32 s3, s3, {WS_XN}')
    def chunk_soff(ct, tt, c): return tt*32768 + (2*ct + c)*1024
    for ct in range(4):
        for tt in range(2):
            p(f's_add_u32 s34, s3, {tt*32768 + ct*2048}')
            for c in range(2): p(f'buffer_load_dwordx4 {vr(X1 + 16*ct + 8*tt + 4*c, 4)}, v{AL}, {SRD}, s34 offen offset:{c*1024} sc1')
    p(f's_waitcnt lgkmcnt(0) vmcnt(0)\ns_barrier')
    if T: stamp(p, 3)
    o, st = process(p.lines, carry=st); out += o
    st = gemm(out, st, 'B_G2', 'wide2', 'w2', 'w3', 0, sF)
    p = Prog()
    p('v_mov_b32 v18, 0\nv_mov_b32 v19, 0')
    for ct in range(4):
        for tt in range(2):
            for i in range(8):
                r = X1 + 16*ct + 8*tt + i; a = (ct*2 + tt)*16 + 2*i
                p(f'''v_accvgpr_read_b32 v24, a{a}
                v_accvgpr_read_b32 v25, a{a+1}
                v_cvt_pk_bf16_f32 v26, v24, v25
                v_lshlrev_b32 v24, 16, v26
                v_and_b32 v25, 0xffff0000, v26
                v_lshlrev_b32 v26, 16, v{r}
                v_and_b32 v27, 0xffff0000, v{r}
                v_add_f32 v24, v24, v26
                v_add_f32 v25, v25, v27
                v_cvt_pk_bf16_f32 v{r}, v24, v25
                v_dot2c_f32_bf16 v{18+tt}, s{sONE}, v{r}''')
    def xwave(a, b_):
        xsum32(p, a, 21); xsum32(p, b_, 21)
        p(f'''s_lshl_b32 s3, s{sW}, 8
        v_add_u32 v22, s3, v{AST}
        ds_write2_b32 v22, v{a}, v{b_} offset0:0 offset1:32
        s_waitcnt lgkmcnt(0)
        s_barrier''')
        for w_ in range(4): p(f'ds_read2_b32 {vr(24+2*w_,2)}, v{AST} offset0:{64*w_} offset1:{64*w_+32}')
        p(f'''v_add_f32 v24, v24, v26
        v_add_f32 v25, v25, v27
        v_add_f32 v28, v28, v30
        v_add_f32 v29, v29, v31
        v_add_f32 v{a}, v24, v28
        v_add_f32 v{b_}, v25, v29
        s_barrier''')
    xwave(18, 19)
    p('v_mul_f32 v18, 0x3b000000, v18\nv_mul_f32 v19, 0x3b000000, v19\nv_mov_b32 v20, 0\nv_mov_b32 v17, 0')
    for ct in range(4):
        for tt in range(2):
            for i in range(8):
                r = X1 + 16*ct + 8*tt + i; s_ = 20 if tt == 0 else 17
                p(f'''v_lshlrev_b32 v24, 16, v{r}
                v_and_b32 v25, 0xffff0000, v{r}
                v_sub_f32 v24, v24, v{18+tt}
                v_sub_f32 v25, v25, v{18+tt}
                v_fmac_f32 v{s_}, v24, v24
                v_fmac_f32 v{s_}, v25, v25''')
    xwave(20, 17)
    p(f'''v_mov_b32 v21, 0x3727c5ac
    v_mov_b32 v22, 0x3727c5ac
    v_fmac_f32 v21, 0x3b000000, v20
    v_fmac_f32 v22, 0x3b000000, v17
    v_rsq_f32 v20, v21
    v_rsq_f32 v17, v22
    v_mul_f32 v18, v18, v20
    v_mul_f32 v19, v19, v17
    s_lshl_b32 s3, s{sW}, 14
    v_add_u32 v23, s3, v{A64}''')
    for ct in range(4):
        for tt in range(2):
            rs = 20 if tt == 0 else 17
            for c in range(2):
                for i in range(4):
                    r = X1 + 16*ct + 8*tt + 4*c + i
                    p(f'v_lshlrev_b32 v24, 16, v{r}\nv_and_b32 v25, 0xffff0000, v{r}\nv_fma_f32 v24, v24, v{rs}, -v{18+tt}\nv_fma_f32 v25, v25, v{rs}, -v{18+tt}\nv_cvt_pk_bf16_f32 v{T2+4*c+i}, v24, v25')
                p(f'ds_write_b128 v23, {vr(T2+4*c,4)} offset:{(2*ct + c)*2048 + tt*512}')
    p(f's_mov_b32 s51, 6\ns_waitcnt lgkmcnt(0)\ns_barrier')
    for i in range(128): p(f'v_accvgpr_write_b32 a{i}, 0')
    if T: stamp(p, 4)
    p('B_F:')
    p(f's_add_u32 s{sFN}, s{sF}, 1\ns_cmp_eq_u32 s{sFN}, 6\ns_cselect_b32 s{sFN}, 0, s{sFN}')
    o, st = process(p.lines, carry=st); out += o
    st = gemm(out, st, 'B_G3', 'narrow', 'w3', 'w4', sF, sF)
    p = Prog()
    p(f's_lshl_b32 s3, s{sW}, 13\nv_add_u32 v23, s3, v{AU}')
    for ct in range(2):
        for tt in range(2):
            A = ACC3 + 32*ct + 16*tt
            gelu(p, list(range(A, A + 16)), T2)
            for i in range(8): p(f'v_cvt_pk_bf16_f32 v{A+i}, v{A+2*i}, v{A+2*i+1}')
    p('s_barrier')
    for ct in range(2):
        for tt in range(2):
            A = ACC3 + 32*ct + 16*tt
            for c in range(2): p(f'ds_write_b128 v23, {vr(A+4*c,4)} offset:{(2*ct + c)*2048 + tt*512}')
    p(f's_waitcnt lgkmcnt(0)\ns_barrier')
    o, st = process(p.lines, carry=st); out += o
    st = gemm(out, st, 'B_G4', 'wide2', 'w4', 'w3', sF, sFN, zero_first=False)
    p = Prog(); p(f's_mov_b32 s{sF}, s{sFN}\ns_sub_u32 s51, s51, 1\ns_cmp_lg_u32 s51, 0\ns_cbranch_scc1 B_F')
    if T: stamp(p, 5)
    p(f's_mov_b32 s3, {f32(-LOG2E)}')
    for ct in range(4):
        for tt in range(2):
            p(f's_add_u32 s34, s{sG0}, {tt*32768 + ct*2048}')
            for c in range(2):
                Y = ACC3; E = ACC3 + 8; D = ACC3 + 16 + 4*c
                for i in range(4):
                    r = X1 + 16*ct + 8*tt + 4*c + i; a = (ct*2 + tt)*16 + 8*c + 2*i
                    p(f'''v_accvgpr_read_b32 v24, a{a}
                    v_accvgpr_read_b32 v25, a{a+1}
                    v_cvt_pk_bf16_f32 v26, v24, v25
                    v_lshlrev_b32 v24, 16, v26
                    v_and_b32 v25, 0xffff0000, v26
                    v_lshlrev_b32 v26, 16, v{r}
                    v_and_b32 v27, 0xffff0000, v{r}
                    v_add_f32 v24, v24, v26
                    v_add_f32 v25, v25, v27
                    v_cvt_pk_bf16_f32 v26, v24, v25
                    v_lshlrev_b32 v{Y+2*i}, 16, v26
                    v_and_b32 v{Y+2*i+1}, 0xffff0000, v26''')
                for i in range(8): p(f'v_mul_f32 v{E+i}, s3, v{Y+i}')
                for i in range(8): p(f'v_exp_f32 v{E+i}, v{E+i}')
                for i in range(8): p(f'v_add_f32 v{E+i}, 1.0, v{E+i}')
                for i in range(8): p(f'v_rcp_f32 v{E+i}, v{E+i}')
                for i in range(8): p(f'v_mul_f32 v{Y+i}, v{Y+i}, v{E+i}')
                for i in range(4): p(f'v_cvt_pk_bf16_f32 v{D+i}, v{Y+2*i}, v{Y+2*i+1}')
                p(f'buffer_store_dwordx4 {vr(D,4)}, v{AL}, {SRD}, s34 offen offset:{c*1024} sc1')
    p(f'''s_waitcnt vmcnt(0)
    s_barrier
    s_cmp_lg_u32 s{sW}, 0
    s_cbranch_scc1 L_DONE
    v_mov_b32 v20, 0
    v_mov_b32 v21, 1
    s_lshl_b32 s3, s{sB}, 2
    s_add_u32 s3, s3, {F_G}''')
    set_flag(p, 21, 's3', 20)
    p('s_branch L_DONE')
    o, st = process(p.lines, carry=st); out += o
```

```python
from common import *
def mf32(d, a, b, c): return f'v_mfma_f32_16x16x32_bf16 {vr(d,4)}, {a if isinstance(a,str) else vr(a,4)}, {vr(b,4)}, {c if isinstance(c,str) else vr(c,4)}'
def mf16(d, a, b, c): return f'v_mfma_f32_16x16x16_bf16 {vr(d,4)}, {vr(a,2)}, {vr(b,2)}, {vr(c,4)}'
def cv(d, a): return f'v_cvt_pk_bf16_f32 v{d}, v{a}, v{a+1}'

def s3(out, opt):
    from main import stamp
    T = opt.get('time')
    AL, ATR, AVM, ZERO, NINF, ONE1 = 1, 2, 3, 4, 5, 6
    T0 = 8
    ONES, K, Q, V, KM, VM = 16, 20, 52, 84, 116, 132
    S00, S01, S11, SM0, SM1 = 148, 152, 156, 160, 164
    PX0, PX1, PM0, PM1, L0, L1 = 168, 172, 176, 178, 180, 184
    O = 188
    sH, sS, sKV, sQ, sKM, sO, sFO, sFC, sNEED, sLD = 41, 42, 43, 44, 45, 46, 48, 49, 50, 51
    MASK = 52
    p = Prog()
    p(f'''R_S3:
    s_barrier
    s_and_b32 s3, s{sRANK}, 7
    s_lshl_b32 s3, s3, 2
    s_add_u32 s{sH}, s3, s{sW}
    s_sub_u32 s3, s{sXCC}, 2
    s_lshl_b32 s3, s3, 2
    s_lshr_b32 s34, s{sRANK}, 3
    s_add_u32 s{sS}, s3, s34
    s_lshl_b32 s{sLD}, s{sW}, 12
    v_and_b32 v8, 63, v0
    v_lshlrev_b32 v{AL}, 4, v8
    v_and_b32 v9, 15, v8               ; n
    v_lshrrev_b32 v10, 4, v8           ; g
    v_lshrrev_b32 v11, 1, v10
    v_lshlrev_b32 v11, 4, v11
    v_and_b32 v12, 1, v10
    v_lshl_add_u32 v11, v12, 2, v11
    v_lshrrev_b32 v12, 2, v9
    v_add_u32 v11, v11, v12
    v_and_b32 v12, 3, v9
    v_lshlrev_b32 v12, 3, v12
    v_lshl_add_u32 v11, v11, 5, v12
    v_add_u32 v{ATR}, s{sLD}, v11
    v_lshlrev_b32 v11, 5, v9
    v_lshl_add_u32 v11, v10, 3, v11
    v_add_u32 v{AVM}, s{sLD}, v11
    v_lshlrev_b32 v11, 2, v10
    v_cmp_le_u32 s[{MASK}:{MASK+1}], v11, v9
    v_add_u32 v11, 1, v11
    v_cmp_le_u32 s[{MASK+2}:{MASK+3}], v11, v9
    v_add_u32 v11, 1, v11
    v_cmp_le_u32 s[{MASK+4}:{MASK+5}], v11, v9
    v_add_u32 v11, 1, v11
    v_cmp_le_u32 s[{MASK+6}:{MASK+7}], v11, v9
    v_mov_b32 v{ZERO}, 0
    v_mov_b32 v{NINF}, 0xff800000
    v_mov_b32 v{ONE1}, 1
    v_mov_b32 v{PX0+2}, 0
    v_mov_b32 v{PX0+3}, 0
    v_mov_b32 v{PM0+1}, 0
    v_mov_b32 v{PM1+1}, 0
    v_lshlrev_b32 v11, 2, v9
    v_and_b32 v12, 7, v8
    v_lshlrev_b32 v12, 2, v12
    s_lshl_b32 s60, s{sH}, 6
    s_add_u32 s{sFC}, s60, {F_CH}
    s_add_u32 s60, s60, {F_KV}
    s_lshl_b32 s61, s{sH}, 5
    s_add_u32 s61, s61, {F_Q}
    ''')
    for i in range(4): p(f'v_mov_b32 v{ONES+i}, 0x3f803f80')
    for d in range(8): p(f'v_mov_b32 v{VM+2*d+1}, 0')
    wait_flags(p, 'S3_kv', 11, 's60', 16, 13, sleep=4)
    wait_flags(p, 'S3_q', 12, 's61', 16, 13, sleep=4)
    if T: stamp(p, 5)
    o, st = process(p.lines); out += o
    b = Prog()
    b(f'''S3_L:
    s_lshl_b32 s3, s{sS}, 5
    s_add_u32 s3, s3, s{sH}
    s_lshl_b32 s{sKV}, s3, 14
    s_add_u32 s{sKV}, s{sKV}, {WS_KV}
    s_lshl_b32 s{sQ}, s3, 13
    s_add_u32 s{sQ}, s{sQ}, {WS_Q}
    s_lshl_b32 s{sKM}, s3, 12
    s_add_u32 s{sKM}, s{sKM}, {WS_KVM}
    s_lshl_b32 s{sFO}, s3, 2
    s_add_u32 s{sFO}, s{sFO}, {F_O}
    s_lshl_b32 s3, s{sS}, 6
    s_add_u32 s3, s3, s{sH}
    s_lshl_b32 s{sO}, s3, 12
    s_add_u32 s{sO}, s{sO}, {WS_O}
    s_add_u32 s{sNEED}, s{sS}, 1''')
    def ld8(dst, sb):
        for f in range(8):
            if f == 4: b(f's_add_u32 s{sb}, s{sb}, 4096')
            b(f'buffer_load_dwordx4 {vr(dst+4*f,4)}, v{AL}, {SRD}, s{sb} offen offset:{(f&3)*1024} sc1')
    ld8(K, sKV); ld8(Q, sQ); b(f's_add_u32 s{sKV}, s{sKV}, 4096'); ld8(V, sKV)
    for (d, kt, qt) in ((S00, 0, 0), (S01, 0, 1), (S11, 1, 1)):
        for ks in range(4): b(mf32(d, K + 16*kt + 4*ks, Q + 16*qt + 4*ks, '0' if ks == 0 else d))
    for d in (S00, S11):
        for r in range(4): b(f'v_cndmask_b32 v{d+r}, v{NINF}, v{d+r}, s[{MASK+2*r}:{MASK+2*r+1}]')
    b(f'''v_max3_f32 v{T0}, v{S00}, v{S00+1}, v{S00+2}
    v_max_f32 v{T0}, v{T0}, v{S00+3}
    v_max3_f32 v{T0+1}, v{S01}, v{S01+1}, v{S01+2}
    v_max3_f32 v{T0+1}, v{T0+1}, v{S01+3}, v{S11}
    v_max3_f32 v{T0+1}, v{T0+1}, v{S11+1}, v{S11+2}
    v_max_f32 v{T0+1}, v{T0+1}, v{S11+3}''')
    wait_flags(b, 'S3_ch', ZERO, f's{sFC}', f's{sNEED}', T0+2, sleep=opt.get('s3slp', 2))
    b(f's_mov_b32 m0, s{sLD}')
    for i in range(4): b(f'buffer_load_dwordx4 v{AL}, {SRD}, s{sKM} offen offset:{i*1024} sc1 lds')
    b('s_waitcnt vmcnt(0)')
    for ks in range(4):
        for h in range(2): b(f'ds_read_b64_tr_b16 {vr(KM + 4*ks + 2*h, 2)}, v{ATR} offset:{ks*1024 + h*256}')
    for d in range(8): b(f'ds_read_b32 v{VM+2*d}, v{AVM} offset:{d*512 + 4}')
    for qt, d in ((0, SM0), (1, SM1)):
        for ks in range(4): b(mf32(d, KM + 4*ks, Q + 16*qt + 4*ks, '0' if ks == 0 else d))
    for qt, d in ((0, SM0), (1, SM1)): b(f'v_max3_f32 v{T0+qt}, v{T0+qt}, v{d}, v{d+1}')
    for sw in ('16', '32'):
        for qt in range(2): b(f'v_mov_b32 v{T0+2+qt}, v{T0+qt}')
        for qt in range(2): b(f'v_permlane{sw}_swap_b32 v{T0+qt}, v{T0+2+qt}')
        for qt in range(2): b(f'v_max_f32 v{T0+qt}, v{T0+qt}, v{T0+2+qt}')
    for qt, regs in ((0, [SM0, SM0+1] + list(range(S00, S00+4))), (1, [SM1, SM1+1] + list(range(S01, S01+8)))):
        for r in regs: b(f'v_sub_f32 v{r}, v{r}, v{T0+qt}')
        for r in regs: b(f'v_exp_f32 v{r}, v{r}')
    b(cv(PM0, SM0)); b(cv(PM1, SM1)); b(cv(PX0, S00)); b(cv(PX0+1, S00+2))
    for i in range(4): b(cv(PX1+i, S01+2*i))
    for qt, (px, l) in enumerate(((PX0, L0), (PX1, L1))): b(mf32(l, ONES, px, '0'))
    for qt, px in enumerate((PX0, PX1)):
        for d in range(8): b(mf32(O + 32*qt + 4*d, V + 4*d, px, '0'))
        if qt == 0:
            for q2, (pm, l) in enumerate(((PM0, L0), (PM1, L1))): b(mf16(l, ONES, pm, l))
    for qt, (pm, l) in enumerate(((PM0, L0), (PM1, L1))):
        for d in range(8): b(mf16(O + 32*qt + 4*d, VM + 2*d, pm, O + 32*qt + 4*d))
        if qt == 0: b(f'v_rcp_f32 v{T0+4}, v{L0}\nv_rcp_f32 v{T0+5}, v{L1}')
    for qt in range(2):
        if qt: b(f's_add_u32 s{sO}, s{sO}, {32*4096}')
        for kk in range(4):
            A = O + 32*qt + 8*kk
            for i in range(8): b(f'v_mul_f32 v{A+i}, v{A+i}, v{T0+4+qt}')
            for i in range(4): b(cv(A+i, A+2*i))
            b(f'buffer_store_dwordx4 {vr(A,4)}, v{AL}, {SRD}, s{sO} offen offset:{kk*1024} sc1')
    b('s_waitcnt vmcnt(0)')
    set_flag(b, ONE1, f's{sFO}', ZERO)
    b(f's_add_u32 s{sS}, s{sS}, 8\ns_cmp_lt_u32 s{sS}, 64\ns_cbranch_scc1 S3_L')
    o, st = loop(b.lines, st); out += ['.p2align 6'] + o + ['s_branch L_DONE']

def s4(out, opt):
    from main import stamp
    T = opt.get('time')
    AL, AF, AX, AG, ZERO, AR = 1, 2, 3, 4, 5, 6
    X, G, ACC, PR, B = 8, 10, 12, 24, 64
    sCS, sQT, sS, sO, sFO, sX, sGo, sFG, sLD, sPB = 41, 42, 43, 44, 45, 46, 48, 49, 66, 50
    SRDW, SRDX, SRDO = 's[68:71]', 's[52:55]', 's[56:59]'
    L_P = 131072
    p = Prog()
    p(f'''R_S4:
    s_barrier
    s_and_b32 s{sCS}, s{sRANK}, 15
    s_lshr_b32 s{sQT}, s{sRANK}, 4
    s_sub_u32 s{sS}, s{sXCC}, 4
    s_mov_b32 s68, s14
    s_mov_b32 s69, s15
    s_mov_b32 s70, 0x400000
    s_mov_b32 s71, 0x20000
    s_mov_b32 s52, s4
    s_mov_b32 s53, s5
    s_mov_b32 s54, 0x200000
    s_mov_b32 s55, 0x20000
    s_mov_b32 s56, s28
    s_mov_b32 s57, s29
    s_mov_b32 s58, 0x200000
    s_mov_b32 s59, 0x20000
    s_lshl_b32 s{sLD}, s{sW}, 15
    s_lshl_b32 s67, s{sW}, 20
    s_lshl_b32 s3, s{sCS}, 6
    s_add_u32 s67, s67, s3
    v_and_b32 v8, 63, v0
    v_lshlrev_b32 v{AL}, 4, v8
    v_lshrrev_b32 v9, 2, v8
    v_and_b32 v10, 3, v8
    v_lshlrev_b32 v10, 4, v10
    v_lshl_add_u32 v20, v9, 10, v10
    v_and_b32 v9, 15, v8                  ; n
    v_lshrrev_b32 v10, 4, v8              ; g
    v_lshrrev_b32 v11, 2, v9
    v_lshl_add_u32 v11, v10, 2, v11       ; row = 4g + r
    v_and_b32 v12, 3, v9
    v_lshlrev_b32 v12, 3, v12
    v_lshl_add_u32 v11, v11, 6, v12
    v_add_u32 v21, s{sLD}, v11
    ''')
    def dma(c):
        for i in range(16):
            p(f's_add_u32 m0, s{sLD}, {(c & 1)*16384 + i*1024}\ns_add_u32 s3, s67, {(c*256 + i*16)*1024}\nbuffer_load_dwordx4 v20, {SRDW}, s3 offen lds')
    dma(0); dma(1)
    p(f'''
    v_and_b32 v11, 7, v8
    v_lshlrev_b32 v{AF}, 2, v11
    v_mov_b32 v{ZERO}, 0
    s_and_b32 s3, s{sW}, 1
    s_lshl_b32 s34, s{sCS}, 1
    s_add_u32 s34, s34, s3
    s_lshl_b32 s35, s{sQT}, 4
    v_add_u32 v11, s35, v9
    v_lshlrev_b32 v12, 10, v11
    v_lshl_add_u32 v12, v10, 3, v12
    s_lshl_b32 s60, s34, 5
    v_add_u32 v{AX}, s60, v12
    v_and_b32 v12, 1, v10
    v_lshl_add_u32 v12, v12, 5, v11
    v_lshlrev_b32 v12, 4, v12
    v_lshrrev_b32 v13, 1, v10
    v_lshl_add_u32 v12, v13, 3, v12
    s_lshl_b32 s60, s34, 10
    v_add_u32 v{AG}, s60, v12
    s_lshl_b32 s3, s3, 10
    s_add_u32 s3, s3, {L_P}
    v_add_u32 v{AR}, s3, v{AL}
    s_lshl_b32 s3, s{sW}, 11
    s_add_u32 s3, s3, {L_P}
    v_add_u32 v7, s3, v{AL}
    ''')
    for c in range(4):
        p(f's_waitcnt vmcnt({16 if c < 3 else 0})')
        for ct in range(2):
            for jj in range(8):
                for h in range(2):
                    d = (ct*32 + 8*c + jj)*4 + 2*h
                    p(f'ds_read_b64_tr_b16 a[{d}:{d+1}], v21 offset:{(c & 1)*16384 + (32*jj + 16*h)*64 + ct*32}')
                if jj & 3 == 3: p('s_waitcnt lgkmcnt(0)')
        if c + 2 < 4: dma(c + 2)
    if T: stamp(p, 5)
    o, st = process(p.lines); out += o
    b = Prog()
    b(f'''S4_L:
    s_lshl_b32 s3, s{sS}, 1
    s_add_u32 s3, s3, s{sQT}
    s_lshl_b32 s3, s3, 2
    s_add_u32 s3, s3, s{sW}
    s_lshl_b32 s{sO}, s3, 15
    s_add_u32 s{sO}, s{sO}, {WS_O}
    s_lshl_b32 s{sFO}, s{sS}, 7
    s_lshl_b32 s3, s{sW}, 5
    s_add_u32 s{sFO}, s{sFO}, s3
    s_add_u32 s{sFO}, s{sFO}, {F_O}
    s_lshl_b32 s{sX}, s{sS}, 15
    s_add_u32 s{sGo}, s{sX}, {WS_G}
    s_cmp_ge_u32 s{sW}, 2
    s_cbranch_scc1 S4_nog
    s_lshr_b32 s{sFG}, s{sS}, 1
    s_lshl_b32 s{sFG}, s{sFG}, 2
    s_add_u32 s{sFG}, s{sFG}, {F_G}''')
    wait_flags(b, 'S4_g', ZERO, f's{sFG}', 1, 14, sleep=8)
    b(f'''buffer_load_dwordx2 {vr(X,2)}, v{AX}, {SRDX}, s{sX} offen
    buffer_load_dwordx2 {vr(G,2)}, v{AG}, {SRD}, s{sGo} offen sc1
    S4_nog:''')
    wait_flags(b, 'S4_o', AF, f's{sFO}', 1, 14, sleep=opt.get('s4slp', 2))
    for j in range(32):
        b(f'buffer_load_dwordx4 {vr(B+4*j,4)}, v{AL}, {SRD}, s{sO} offen offset:{(j&3)*1024} sc1')
        if j & 3 == 3: b(f's_add_u32 s{sO}, s{sO}, 4096')
    for j in range(32):
        for ct in range(2): b(mf32(ACC + 4*ct, ar((ct*32 + j)*4, 4), B + 4*j, '0' if j == 0 else ACC + 4*ct))
    b(f'''ds_write_b128 v7, {vr(ACC,4)}
    ds_write_b128 v7, {vr(ACC+4,4)} offset:1024
    s_waitcnt lgkmcnt(0)
    s_barrier
    s_cmp_ge_u32 s{sW}, 2
    s_cbranch_scc1 S4_next''')
    for w_ in range(4): b(f'ds_read_b128 {vr(PR+4*w_,4)}, v{AR} offset:{w_*2048}')
    for r in range(4):
        b(f'v_add_f32 v{PR+r}, v{PR+r}, v{PR+4+r}\nv_add_f32 v{PR+8+r}, v{PR+8+r}, v{PR+12+r}\nv_add_f32 v{PR+r}, v{PR+r}, v{PR+8+r}')
    for i in range(2):
        b(f'''v_cvt_pk_bf16_f32 v{PR+4}, v{PR+2*i}, v{PR+2*i+1}
        v_lshlrev_b32 v{PR+5}, 16, v{PR+4}
        v_and_b32 v{PR+6}, 0xffff0000, v{PR+4}
        v_lshlrev_b32 v{PR+7}, 16, v{G+i}
        v_and_b32 v{PR+8}, 0xffff0000, v{G+i}
        v_mul_f32 v{PR+5}, v{PR+5}, v{PR+7}
        v_mul_f32 v{PR+6}, v{PR+6}, v{PR+8}
        v_cvt_pk_bf16_f32 v{PR+4}, v{PR+5}, v{PR+6}
        v_lshlrev_b32 v{PR+5}, 16, v{PR+4}
        v_and_b32 v{PR+6}, 0xffff0000, v{PR+4}
        v_lshlrev_b32 v{PR+7}, 16, v{X+i}
        v_and_b32 v{PR+8}, 0xffff0000, v{X+i}
        v_add_f32 v{PR+5}, v{PR+5}, v{PR+7}
        v_add_f32 v{PR+6}, v{PR+6}, v{PR+8}
        v_cvt_pk_bf16_f32 v{PR+12+i}, v{PR+5}, v{PR+6}''')
    b(f'''buffer_store_dwordx2 {vr(PR+12,2)}, v{AX}, {SRDO}, s{sX} offen
    S4_next:
    v_xor_b32 v7, 0x2000, v7
    v_xor_b32 v{AR}, 0x2000, v{AR}
    s_add_u32 s{sS}, s{sS}, 4
    s_cmp_lt_u32 s{sS}, 64
    s_cbranch_scc1 S4_L''')
    o, st = loop(b.lines, st); out += ['.p2align 6'] + o + ['s_branch L_DONE']
```

```python
import sys
import main
ref = open('recurrent_scan__memory_aug_recurrent_mem_tr__mixer_s_mlp__prompt.s.ref').read().split('\n')
head = [l for l in ref if l.startswith(';') and '@launch' not in l][:16]
o = eval(sys.argv[2]) if len(sys.argv) > 2 else {}
src = main.build(o)
src = '\n'.join(l[3:] if l.startswith('    ') else l for l in src.split('\n') if not l.startswith('; opt'))
lines = src.split('\n')
open(sys.argv[1], 'w').write('\n'.join(head + lines))
```

```python
from asmlib import *
from layout import *
import common

MEMA, KW, QT, AQK, ACCV, S = 0, 32, 64, 80, 96, 104
IDX, AL0, AL1, AL2, ATR, AQKW, AOW, AP = 116, 117, 118, 119, 120, 121, 122, 123
T0, T1, T2, T3 = 124, 125, 126, 127
WV0, WO0 = 128, 192
SRD = 's[36:39]'
sH, sSTEP, sMEM, sMEM2, sPUB, sIN, sIN2, sW = 40, 41, 42, 43, 44, 45, 46, 47
sPART = 48
sK, sK2, sV, sV2, sPF = 56, 57, 58, 59, 74
sODD = 62
sVAL = 86
sLIM = 88
sC = 64
sRETRY = 65
sRB = 61
sKVM, sFCH, sFKV, sNEED = 60, 89, 90, 91
sSLOT, sDLT, sC2, sKB = 92, 93, 73, 76
SRDW = 's[68:71]'

def vr(a, n): return f'v[{a}:{a+n-1}]' if n > 1 else f'v{a}'
def ar(a, n): return f'a[{a}:{a+n-1}]'
def wq(u, t): return ar((u*8+t)*8, 8)
def wk(u, t): return ar(128 + (u*8+t)*8, 8)
def wv0(t): return vr(WV0 + 8*t, 8)
def wo0(t): return vr(WO0 + 8*t, 8)
def smf(acc, a, b): return f'v_smfmac_f32_16x16x64_bf16 {vr(acc,4)}, {vr(a,4)}, {b}, v{IDX}'
def mf32(d, a, b, c): return f'v_mfma_f32_16x16x32_bf16 {vr(d,4)}, {vr(a,4)}, {vr(b,4)}, {c if isinstance(c,str) else vr(c,4)}'
def mf16(d, a, b, c): return f'v_mfma_f32_16x16x16_bf16 {vr(d,4)}, {vr(a,2)}, {vr(b,2)}, {c if isinstance(c,str) else vr(c,4)}'
def lin(off):
    r = (AL0, AL1, AL2)[off >> 16]
    return r, off & 0xffff
def rd128(dst, off):
    r, o = lin(off); return f'ds_read_b128 {vr(dst,4)}, v{r} offset:{o}'

def startup(p, dbg_ctr_off=64, opt_pf=1):
    p(f'''
    v_and_b32 v65, 63, v0
    v_lshrrev_b32 v66, 6, v0
    v_readfirstlane_b32 s{sW}, v66
    v_and_b32 v67, 15, v65            ; n
    v_lshrrev_b32 v68, 4, v65         ; g
    v_lshlrev_b32 v{AL0}, 4, v65
    v_add_u32 v{AL1}, 0x10000, v{AL0}
    v_add_u32 v{AL2}, 0x20000, v{AL0}
    v_lshlrev_b32 v{AP}, 2, v65       ; lane*4
    v_lshlrev_b32 v69, 4, v67
    v_lshl_add_u32 v78, v68, 2, v69
    v_lshrrev_b32 v69, 2, v67
    v_lshlrev_b32 v69, 6, v69
    v_and_b32 v70, 3, v67
    v_lshl_add_u32 v69, v70, 2, v69
    v_lshl_add_u32 v{T3}, v68, 4, v69
    s_mov_b32 s36, s32
    s_mov_b32 s37, s33
    s_mov_b32 s38, {WS_SIZE}
    s_mov_b32 s39, 0x20000
    v_lshrrev_b32 v69, 1, v67
    v_lshlrev_b32 v69, 10, v69
    v_and_b32 v70, 1, v67
    v_lshlrev_b32 v70, 2, v70
    v_lshl_add_u32 v70, v68, 3, v70
    v_add_u32 v69, v69, v70
    s_lshl_b32 s3, s{sH}, 5
    v_add_u32 v69, s3, v69
    global_load_dword v76, v69, s[6:7]
    v_mov_b32 v72, -1
    v_mov_b32 v73, -1
    v_mov_b32 v74, -1
    v_mov_b32 v75, -1
    s_mul_i32 s3, s{sH}, {INBOX_STRIDE}
    s_add_u32 s{sIN}, s3, {WS_INBOX}
    s_lshl_b32 s3, s{sW}, 11
    s_add_u32 s3, s3, s{sIN}
    s_add_u32 s34, s3, {INBOX_SLOT}
    buffer_store_dwordx4 v[72:75], v{AL0}, {SRD}, s3 offen
    buffer_store_dwordx4 v[72:75], v{AL0}, {SRD}, s3 offen offset:1024
    buffer_store_dwordx4 v[72:75], v{AL0}, {SRD}, s34 offen
    buffer_store_dwordx4 v[72:75], v{AL0}, {SRD}, s34 offen offset:1024
    s_add_u32 s34, s34, {INBOX_SLOT}
    buffer_store_dwordx4 v[72:75], v{AL0}, {SRD}, s34 offen
    buffer_store_dwordx4 v[72:75], v{AL0}, {SRD}, s34 offen offset:1024
    s_lshl_b32 s3, s{sH}, 8
    s_add_u32 s{sPUB}, s3, {WS_MEMS}
    s_add_u32 s3, s{sPUB}, 8192
    buffer_store_dword v72, v{AP}, {SRD}, s3 offen
    v_lshlrev_b32 v69, 1, v68
    v_xor_b32 v69, v69, v67                  ; n ^ (g<<1)
    v_lshlrev_b32 v69, 4, v69
    v_lshl_add_u32 v80, v68, 13, v69
    v_xor_b32 v81, 0x80, v80              ; off1
    s_lshr_b32 s3, s{sW}, 1
    s_lshl_b32 s3, s3, 7
    v_xor_b32 v82, s3, v{AL0}
    v_xor_b32 v83, 0x20, v82
    v_xor_b32 v84, 0x40, v82
    v_xor_b32 v85, 0x60, v82
    v_lshrrev_b32 v69, 2, v67               ; r
    v_and_b32 v70, 3, v67                   ; c
    v_and_b32 v71, 1, v68
    v_lshl_add_u32 v71, v71, 2, v69          ; f = r | (g&1)<<2
    v_lshlrev_b32 v71, 5, v71
    v_lshl_add_u32 v71, v70, 3, v71          ; f*32 + 8c
    v_lshl_add_u32 v69, v68, 3, v69          ; row = 8g + r
    v_lshl_add_u32 v86, v69, 8, v71
    s_lshl_b32 s3, s{sW}, 6
    v_xor_b32 v86, s3, v86                ; pair 2w
    v_xor_b32 v87, 0x20, v86              ; pair 2w+1
    v_add_u32 v86, {L_W}, v86
    v_add_u32 v87, {L_W}, v87
    v_lshl_add_u32 v88, v69, 10, v71
    s_lshl_b32 s3, s{sW}, 5
    v_xor_b32 v88, s3, v88
    v_xor_b32 v89, 0x80, v88
    v_add_u32 v88, {L_W}, v88
    v_add_u32 v89, {L_W}, v89
    s_lshl_b32 s66, s{sW}, 12
    s_add_u32 s66, s66, {L_W}
    s_mov_b32 s70, 0x400000
    s_mov_b32 s71, 0x20000
    ''')
    def dma(c):
        mat = c >> 3; t = c & 7
        if t == 0:
            src = (14, 8, 10, 12)[mat]
            p(f's_mov_b32 s68, s{src}\ns_mov_b32 s69, s{src+1}')
            if mat == 0:
                p(f's_lshl_b32 s67, s{sH}, 17\ns_lshl_b32 s3, s{sW}, 12\ns_add_u32 s67, s67, s3')
            else:
                p(f's_lshl_b32 s67, s{sH}, 8\ns_lshl_b32 s3, s{sW}, 17\ns_add_u32 s67, s67, s3')
        for i in range(4):
            p(f's_add_u32 m0, s66, {t*16384 + i*1024}')
            if mat == 0:
                p(f's_add_u32 s3, s67, {(t^4)*16384 + i*1024}')
                p(f'buffer_load_dwordx4 v{82+i}, {SRDW}, s3 offen lds')
            else:
                p(f's_add_u32 s3, s67, {t*64*8192 + i*4*8192}')
                p(f'buffer_load_dwordx4 v{80+(i>>1)}, {SRDW}, s3 offen lds')
    for c in range(8): dma(c)
    p(f'''
    v_and_b32 v69, 1, v67
    v_mov_b32 v70, 0x4444
    v_mov_b32 v71, 0xeeee
    v_cmp_eq_u32 s[{sODD}:{sODD+1}], 1, v69
    v_cndmask_b32 v{IDX}, v70, v71, s[{sODD}:{sODD+1}]
    ; aTR: (d0 + r)*32 + 8c, d0 = 16*(g>>1) + 4*(g&1)
    v_lshrrev_b32 v69, 1, v68
    v_lshlrev_b32 v69, 4, v69
    v_and_b32 v70, 1, v68
    v_lshl_add_u32 v69, v70, 2, v69
    v_lshrrev_b32 v70, 2, v67
    v_add_u32 v69, v69, v70
    v_and_b32 v70, 3, v67
    v_lshlrev_b32 v70, 3, v70
    v_lshl_add_u32 v{ATR}, v69, 5, v70
    ; aQKW: n*32 + 8g
    v_lshlrev_b32 v69, 5, v67
    v_lshl_add_u32 v{AQKW}, v68, 3, v69
    v_lshrrev_b32 v69, 2, v67
    v_and_b32 v70, 1, v67
    v_lshl_add_u32 v69, v69, 1, v70
    v_lshlrev_b32 v69, 5, v69
    v_lshl_add_u32 v69, v68, 2, v69
    v_add_u32 v70, {L_O}, v69
    v_add_u32 v71, {L_DUM + 8}, v69
    v_and_b32 v69, 2, v67
    v_cmp_eq_u32 vcc, 0, v69
    s_lshl_b32 s3, s{sW}, 9               ; (w>>1)*1024 + (w&1)*512
    v_add_u32 v70, s3, v70
    v_cndmask_b32 v{AOW}, v71, v70, vcc
    v_lshrrev_b32 v69, 3, v67
    v_xor_b32 v69, v69, v67
    v_and_b32 v69, 1, v69
    v_cmp_eq_u32 vcc, 1, v69
    v_mov_b32 v71, 0x3f80
    v_mov_b32 v77, 0x3f800000
    v_cndmask_b32 v71, v71, v77, vcc
    v_and_b32 v69, 7, v67
    v_lshrrev_b32 v69, 1, v69
    v_cmp_eq_u32 vcc, 0, v69
    v_cndmask_b32 v92, 0, v71, vcc
    v_cmp_eq_u32 vcc, 1, v69
    v_cndmask_b32 v93, 0, v71, vcc
    v_cmp_eq_u32 vcc, 2, v69
    v_cndmask_b32 v94, 0, v71, vcc
    v_cmp_eq_u32 vcc, 3, v69
    v_cndmask_b32 v95, 0, v71, vcc
    ds_write_b128 v{AL0}, v[92:95] offset:{L_SEL}
    s_waitcnt lgkmcnt(0)
    v_mov_b32 v92, 0x3f803f80
    v_mov_b32 v93, 0x3f803f80
    v_mov_b32 v94, 0x3f803f80
    v_mov_b32 v95, 0x3f803f80
    ds_write_b128 v{AL0}, v[92:95] offset:{L_ONE}
    s_mov_b32 s{sLIM}, 0x53800000          ; 2^40
    v_mov_b32 v{T1}, 0
    s_mov_b32 s{sVAL}, 0x33333333
    s_mov_b32 s{sVAL+1}, 0x33333333
    s_mov_b32 s{sODD}, 0
    s_mov_b32 s{sODD+1}, -1
    s_mov_b32 s{sC}, 0x3e0293ee           ; log2(e)/sqrt(128)
    ''')
    issued = 7
    def allowed(c): return 4 * (issued - c)
    c = 0
    while c < 32:
        mat = c >> 3; t = c & 7
        if mat == 0:
            first = t == 0
            p(f's_waitcnt vmcnt({allowed(c+3)})')
            if first:
                p(f'''@wait_reset
                v_min_u32 v76, -2, v76
                buffer_store_dword v76, v78, {SRD}, s{sPUB} offen
                v_mov_b32 v79, v0''')
            p('s_barrier')
            for tt in range(8):
                for q, o in enumerate((0, 4096, 32768, 36864)):
                    d = (0 if first else WO0) + tt*8 + 2*q
                    p(f'ds_read_b64_tr_b16 v[{d}:{d+1}], v{88+(tt&1)} offset:{o + (tt>>1)*256}')
                if tt & 1: p('s_waitcnt lgkmcnt(0)')
            p('s_barrier')
            if first: p('v_add_u32 v88, 0x10000, v88\nv_add_u32 v89, 0x10000, v89')
            for k in range(4): dma(c + 8 + k)
            issued += 4; c += 4
            continue
        p(f's_waitcnt vmcnt({allowed(c)})')
        p('s_barrier')
        if c == 12:
            p(f'''v_mov_b32 v69, {dbg_ctr_off}
            v_mov_b32 v70, 1
            v_cmp_eq_u32 vcc, 0, v79
            s_and_saveexec_b64 s[34:35], vcc
            s_cbranch_execz L_noinc
            global_atomic_add v69, v70, s[30:31]
            L_noinc:
            s_mov_b64 exec, s[34:35]''')
        for u in range(2):
            for q, o in enumerate((0, 1024, 8192, 9216)):
                if mat < 3:
                    d = (mat-1)*128 + (u*8+t)*8 + 2*q
                    p(f'ds_read_b64_tr_b16 a[{d}:{d+1}], v{86+u} offset:{o + (t&3)*16384}')
                else:
                    d = (WV0 + 8*t if u == 0 else 96) + 2*q
                    p(f'ds_read_b64_tr_b16 v[{d}:{d+1}], v{86+u} offset:{o + (t&3)*16384}')
        p('s_waitcnt lgkmcnt(0)\ns_barrier')
        if t == 3: p('v_add_u32 v86, 0x10000, v86\nv_add_u32 v87, 0x10000, v87')
        if t == 7: p('v_subrev_u32 v86, 0x10000, v86\nv_subrev_u32 v87, 0x10000, v87')
        if mat == 3:
            if t == 0: p(f'v_add_u32 v90, s66, v{AL0}')
            if t == 4: p('v_add_u32 v90, 0x10000, v90')
            for k, r in enumerate((96, 100, 8*t, 8*t+4)):
                p(f'ds_write_b128 v90, v[{r}:{r+3}] offset:{(t&3)*16384 + k*1024}')
            p('s_waitcnt lgkmcnt(0)')
        if c + 8 < 32:
            dma(c + 8); issued += 1
        c += 1
    p(f'''
    s_mov_b32 s{sSTEP}, 0
    s_mov_b32 s{sMEM}, {WS_MEMS}
    s_mov_b32 s{sMEM2}, {WS_MEMS + 4096}
    s_add_u32 s{sPUB}, s{sPUB}, 8192
    s_mov_b32 s{sSLOT}, 0
    s_mov_b32 s{sC2}, {INBOX_SLOT}
    s_lshl_b32 s3, s{sW}, 11
    s_add_u32 s3, s3, s{sIN}
    s_mov_b32 s{sKB}, {L_K}
    s_add_u32 s{sV2}, s3, {2*INBOX_SLOT}
    s_add_u32 s{sIN2}, s{sIN}, 4096
    s_mul_i32 s3, s{sW}, {INBOX_STRIDE}
    s_lshl_b32 s34, s{sH}, 8
    s_add_u32 s3, s3, s34
    s_add_u32 s{sPART}, s3, {WS_INBOX}
    ''')
    for t in range(1, 8): p(f's_add_u32 s{sPART+t}, s{sPART}, {4*t*INBOX_STRIDE}')
    p(f'''
    s_lshl_b32 s3, s{sH}, 14
    s_add_u32 s{sK}, s3, {WS_KV}
    s_add_u32 s{sK2}, s{sK}, 4096
    s_lshl_b32 s34, s{sW}, 11
    s_add_u32 s{sV}, s{sK}, 8192
    s_add_u32 s{sPF}, s{sK}, {opt_pf*32*16384}
    s_add_u32 s{sPF+1}, s{sV}, {32*16384}
    s_cmp_eq_u32 s{sW}, 2
    s_cselect_b32 s{sPF}, s{sPF+1}, s{sPF}
    s_add_u32 s{sV}, s{sV}, s34
    s_lshl_b32 s3, s{sH}, 12
    s_add_u32 s{sKVM}, s3, {WS_KVM - 32*4096}
    s_lshl_b32 s3, s{sH}, 6
    s_add_u32 s{sFCH}, s3, {F_CH}
    s_add_u32 s{sFKV}, s3, {F_KV}
    s_mov_b32 s{sRETRY}, 0
    s_mov_b32 s{sRB}, 0
    ''')
    for r in range(0, 24, 2): p(f'v_mov_b64 {vr(AQK+r,2)}, 0')

def kdma(p):
    L = []
    for half, so in ((0, sK), (1, sK2)):
        L.append(f's_mov_b32 m0, {L_K + half*4096}')
        for i in range(4): L.append(f'buffer_load_dwordx4 v{AL0}, {SRD}, s{so} offen offset:{i*1024} sc1 lds')
    return L
def vdma(p):
    L = []
    for half, so in ((0, sV), (1, sV2)):
        L.append(f's_mov_b32 m0, {L_V + half*4096}')
        for i in range(4): L.append(f'buffer_load_dwordx4 v{AL0}, {SRD}, s{so} offen offset:{i*1024} sc1 lds')
    return L

def step(w, nsteps, opt, var=0):
    p = Prog(); slow = Prog()
    tag = f'{w}' if w else f'0v{var}'
    Q0, Q1, K0, K1 = AQK, AQK+4, AQK+8, AQK+12
    V0, V1 = ACCV, ACCV+4
    SX0, SX1, SM = S, S+4, S+8
    def wl(u, t): return L_W + t*16384 + w*4096 + u*2048
    def wrd(slot, u, t): return rd128(KW + 8*slot, wl(u, t)) + '\n' + rd128(KW + 8*slot + 4, wl(u, t) + 1024)
    nst = [0]; pastS7 = [False]
    def stamp():
        i = nst[0]; nst[0] += 1
        if opt.get('trace'):
            if opt.get('w0st') and i in (1, 2, 3) and not pastS7[0]: return
            if i in opt['trace']:
                p(f's_cmp_eq_u32 s{sSTEP}, {opt.get("at", 41)}\ns_cbranch_scc0 TR{tag}_{i}\ns_memrealtime s[96:97]\ns_waitcnt lgkmcnt(0)\ns_mov_b32 s{4+i}, s96\nTR{tag}_{i}:')
            return
        if i not in opt.get('stamps', ()): return
        if opt.get('w0st') and i in (1, 2, 3) and not pastS7[0]: return
        p(f's_memtime s[96:97]\ns_waitcnt lgkmcnt(0)\ns_sub_u32 s99, s96, s98\ns_mov_b32 s98, s96\ns_add_u32 s{4+i}, s{4+i}, s99')
    def epi(acc): return [f'v_add_f32 v{acc}, v{acc}, v{acc+1}', f'v_add_f32 v{acc+2}, v{acc+2}, v{acc+3}', f'v_cvt_pk_bf16_f32 v{acc}, v{acc}, v{acc+2}']
    def epq(acc):
        e = epi(acc)
        return e[:2] + [f'v_mul_f32 v{acc}, s{sC}, v{acc}', f'v_mul_f32 v{acc+2}, s{sC}, v{acc+2}'] + e[2:]
    def qkw(base, u, acc): return f'ds_write_b32 v{AQKW}, v{acc} offset:{base + (32*w + 16*u)*32}'
    def trd(dst, base, ks, h): return f'ds_read_b64_tr_b16 {vr(dst + 4*ks + 2*h, 2)}, v{ATR} offset:{base + ks*1024 + h*256}'
    def mloc(t): return L_Q + t*1024
    def gld(dst, t): return f'buffer_load_dwordx4 {vr(dst,4)}, v{AL0}, {SRD}, s{sMEM if t < 4 else sMEM2} offen offset:{(t&3)*1024} sc1'
    def mwr(src, t): return f'ds_write_b128 v{AL0}, {vr(src,4)} offset:{mloc(t)}'
    def mx(first, m, k):
        if first: return f'v_max3_u32 v{T0}, v{m}, v{m+1}, v{m+2}' if k == 0 else f'v_max_u32 v{T0}, v{T0}, v{m+3}'
        return f'v_max3_u32 v{T0}, v{T0}, v{m+2*k}, v{m+2*k+1}'
    CMP = f'v_cmp_eq_u32 vcc, -1, v{T0}'
    TMO = lambda r: f's_add_u32 s{r}, s{r}, 1\ns_cmp_gt_u32 s{r}, {LIMIT}\ns_cbranch_scc1 L_ABORT'
    own = (w + 3) & 3
    fb = (own + 4,)
    LB, NEG = QT + 4, QT + 12
    D = opt.get('D', 2)
    def v1s(t): return smf(V1, MEMA + 4*t, vr(KW + 8*(t & 3), 8))
    def v0s(t): return smf(V0, MEMA + 4*t, wv0(t))
    def qs(u, t): return smf(Q0 + 4*u, MEMA + 4*t, wq(u, t))
    def ks_(u, t): return smf(K0 + 4*u, MEMA + 4*t, wk(u, t))
    full = not opt.get('proto')
    p(f'HA{tag}:')
    sp = opt.get('sp', 0)
    for i in range(D - 1):
        p(gld(S + 4*i, own))
        p(TMO(sRETRY) if i == 0 else 's_nop 2')
        for _ in range(sp): p('s_nop 7')
    p(f'HL{tag}:')
    for i in range(D):
        m = S + 4*i
        p('@nowait ' + gld(S + 4*((i + D - 1) % D), own))
        p(f's_waitcnt vmcnt({D-1})')
        p(mwr(m, own)); p(mx(1, m, 0)); p(mx(1, m, 1)); p(CMP)
        p(f'v_mov_b64 {vr(MEMA + 4*own, 2)}, {vr(m, 2)}\nv_mov_b64 {vr(MEMA + 4*own + 2, 2)}, {vr(m + 2, 2)}')
        p(f's_cbranch_vccz HK{tag}')
    p(TMO(sRETRY)); p(f's_branch HL{tag}')
    p(f'HK{tag}:')
    p(f'@vm {D-1}')
    p(gld(LB, own + 4))
    if opt.get('trace'):
        nst[0] = 9; stamp(); nst[0] = 0
    rf = lambda t: wrd(t & 3, 0, t).split('\n')
    p(qs(0, own)); p(v1s(own)); p(rf(own + 4)[0]); p(qs(1, own)); p(rf(own + 4)[1]); p(ks_(0, own)); p(ks_(1, own))
    p('s_waitcnt lgkmcnt(2)')
    p('s_barrier')
    stamp()
    oth = [t for t in range(4) if t != own]
    for t in oth: p(rd128(MEMA + 4*t, mloc(t)))
    if opt.get('log') and w == 1:
        p(f's_{"memrealtime" if opt["log"] == 2 else "memtime"} s[96:97]\ns_waitcnt lgkmcnt(0)\ns_mov_b32 m0, s{sSTEP}\nv_writelane_b32 v{T3}, s96, m0')
    p(v0s(own))
    vm = []
    pub = f'buffer_store_dwordx4 {vr(QT,4)}, v{AL0}, {SRD}, s{sKVM} offen offset:{w*1024} sc1' if full else None
    if w == 3 and full:
        p(f's_sub_u32 s3, s{sSTEP}, 1\ns_max_i32 s3, s3, 0\nv_mov_b32 v{T2}, s3')
        vm.append((0, f's_mov_b64 exec, 1\nbuffer_store_dword v{T2}, v{AL0}, {SRD}, s{sFCH} offen sc1\ns_mov_b64 exec, -1'))
        vm.append((2, f'v_and_b32 v{T2}, 63, v{AP}\n@junk buffer_load_dword v{T3}, v{T2}, {SRD}, s{sFKV} offen sc1'))
    if w in (1, 2):
        p(f'v_lshlrev_b32 v{T2}, 3, v{AL0}')
        vm.append((opt.get('gg', (4, 8))[w-1], f'@junk buffer_load_dword v{T3}, v{T2}, {SRD}, s{sPF} offen sc1'))
    seq = []
    xa = opt.get('xa', 2)
    for t in oth: seq += [qs(0, t), v1s(t), qs(1, t), ks_(0, t), ks_(1, t)]
    v0l = [v0s(t) for t in oth + [4, 5, 6, 7]]
    seq += v0l[:xa]
    B0 = len(seq)
    for t in range(4, 8): seq += [qs(0, t), v1s(t), qs(1, t)]
    P2 = len(seq)
    rest = v0l[xa:]
    nmid_ = len(rest) - 4
    seq += [ks_(0, t) for t in range(4, 8)] + rest[:nmid_] + [ks_(1, t) for t in range(4, 8)] + rest[nmid_:]
    NP = len(seq) - P2
    gap = [[] for _ in seq]
    def put(g, *ins):
        for x in ins: gap[g] += x.split('\n')
    sbw, sbb = opt.get('sbw', 8), opt.get('sbb', 13)
    put(1, rf(oth[0] + 4)[0]); put(2, rf(oth[0] + 4)[1]); put(6, rf(oth[1] + 4)[0]); put(7, rf(oth[1] + 4)[1])
    put(sbw, mwr(LB, own + 4))
    for i, x in enumerate((mx(1, LB, 0), mx(1, LB, 1), CMP)): put(sbw + 1 + i, x)
    put(sbb, f's_cbranch_vccnz SB{tag}\nSBR{tag}:', 's_waitcnt lgkmcnt(0)', 's_barrier', rd128(MEMA + 16, mloc(4)))
    g = sbb + 1
    for x in [rd128(MEMA + 4*tt, mloc(tt)) for tt in range(5, 8)] + rf(oth[2] + 4):
        put(g, x); g += 1
    VX0, VX1, OA0, OA1 = (MEMA + 4*t for t in [own] + oth)
    LACC, ONES, PX, E0 = MEMA+16, MEMA+20, MEMA+24, MEMA+28
    assert xa >= 1
    gv = max(sbb + 1, 16)
    put(gv, f'buffer_load_dwordx4 {vr(VX0,4)}, v{AL0}, {SRD}, s{sV} offen sc1')
    put(gv + 1, f'buffer_load_dwordx4 {vr(VX1,4)}, v{AL0}, {SRD}, s{sV} offen offset:1024 sc1')
    kpos, rpos = opt.get('kpos', 'S7'), opt.get('rpos', 'B4')
    rst = [f'buffer_store_dwordx4 {vr(NEG,4)}, v{AL0}, {SRD}, s{sV2} offen offset:{i*1024}' for i in range(2)]
    kdm = [f's_xor_b32 s3, s{sKB}, {L_K ^ L_V}\ns_add_u32 m0, s3, {w*2048}\nbuffer_load_dwordx4 v{AL0}, {SRD}, s{sK} offen sc1 lds',
           f'buffer_load_dwordx4 v{AL0}, {SRD}, s{sK} offen offset:1024 sc1 lds']
    if rpos == 'P1':
        rg = opt.get('rg', ((0, 4), (3, 5), (4, 0), (5, 3)))[w]
        for i in range(2): put(rg[i], rst[i])
    gk = gv + 2
    if kpos == 'P1': put(gk, kdm[0]); put(gk + 1, kdm[1])
    else: gk = gv
    put(sbb - 1, f'v_add_u32 v{T0}, s{sKB}, v{AL0}')
    gs = gk + opt.get('gsl', 2)
    for i, x in vm: put(min(gs + i, P2 - 1), x)
    if pub: put(gs + opt.get('pg', (0, 1, 2, 3))[w], pub)
    kr = [f'ds_read_b128 {vr(KW + 4*f, 4)}, v{T0} offset:{f*1024}' for f in range(8)]
    for i in range(4):
        g0 = max(B0 + 3*i + 1, g)
        put(g0, kr[2*i]); put(min(g0 + 1, P2 - 1) if i < 3 else P2 - 1, kr[2*i + 1])
    e0, e1 = epq(Q0), epq(Q1)
    qtr = [trd(QT, L_Q, ks, h) for ks in range(4) for h in range(2)]
    ek0, ek1, ev0, ev1 = epi(K0), epi(K1), epi(V0), epi(V1)
    G = lambda k: min(P2 + k, len(seq) - 1)
    kend = P2 + 4 + nmid_ + 3
    put(G(0), e0[0], e0[1]); put(G(1), e0[2], e0[3]); put(G(2), e0[4], e1[0]); put(G(3), qkw(L_Q, 0, Q0), e1[1])
    put(G(4), e1[2], e1[3]); put(G(5), e1[4]); put(G(6), qkw(L_Q, 1, Q1))
    put(G(7), ek0[0]); put(G(8), ek0[1]); put(G(9), ek0[2])
    gb = opt.get('gb', 10)
    put(G(gb), 's_waitcnt lgkmcnt(0)', 's_barrier', qtr[0])
    e1g = kend + 2 - P2
    put(G(e1g), ek1[0], ek1[1])
    put(G(gb + 1), qtr[1], qtr[2]); put(G(gb + 2), qtr[3], qkw(L_KM, 0, K0))
    put(G(max(e1g + 1, gb + 2)), ek1[2], qkw(L_KM, 1, K1))
    put(len(seq) - 1, qtr[4], qtr[5])
    for i, (m_, gg) in enumerate(zip(seq, gap)):
        p(m_)
        for x in gg: p(x)
        if i == B0 - 1 or i == G(gb): stamp()
    PM = T0
    def sx(tile, ks): return mf32(S + 4*tile, KW + 16*tile + 4*ks, QT + 4*ks, '0' if ks == 0 else S + 4*tile)
    def sm(ks): return mf32(SM, AQK + 4*ks, QT + 4*ks, '0' if ks == 0 else SM)
    def ex(d, r): return f'v_exp_f32 v{d}, v{r}'
    def cv(d, a_): return f'v_cvt_pk_bf16_f32 v{d}, v{a_}, v{a_+1}'
    ktr = [trd(AQK, L_KM, ks, h) for ks in range(4) for h in range(2)]
    p(sx(0, 0)); p(qtr[6])
    p(sx(1, 0)); p(qtr[7])
    p(sx(0, 1)); p(ev1[0]); p(ev1[1])
    p(sx(1, 1))
    p('s_waitcnt lgkmcnt(4)'); p('s_barrier'); stamp()
    p(sx(0, 2)); p(ktr[0]); p(ktr[1])
    p(sx(0, 3)); p(ktr[2]); p(ktr[3])
    p(sx(1, 2)); p(ktr[4]); p(ktr[5])
    p(sx(1, 3)); p(ktr[6]); p(ktr[7])
    p(ex(E0, SX0)); p(ex(E0+1, SX0+1))
    p(sm(0)); p(rd128(ONES, L_ONE))
    p(sm(1))
    p(sm(2))
    p(sm(3)); p(ex(E0+2, SX0+2))
    p(ex(E0+3, SX0+3)); p(cv(PX, E0)); p(ex(E0, SX1)); p(cv(PX+1, E0+2)); p(ex(E0+1, SX1+1))
    p(ex(E0+2, SX1+2)); p(ex(E0+3, SX1+3)); p(cv(PX+2, E0)); p(ex(E0, SM)); p(cv(PX+3, E0+2)); p(ex(E0+1, SM+1))
    stamp()
    p(ev1[2])
    p(mf32(LACC, ONES, PX, '0')); p(cv(PM, E0)); p(ev0[0])
    p(mf32(OA0, VX0, PX, '0')); p(ev0[1]); p(f'v_mov_b32 v{V1+1}, 0')
    p(mf32(OA1, VX1, PX, '0')); p(ev0[2]); p(f'v_mov_b32 v{V0+1}, 0')
    p(mf16(LACC, ONES, PM, LACC))
    if full: p(qkw(L_KM + 4, 1, V1))
    p(mf16(OA0, V0, PM, OA0))
    if full: p(qkw(L_KM + 4, 0, V0))
    p(mf16(OA1, V1, PM, OA1))
    p(f'v_rcp_f32 v{T2}, v{LACC}')
    p(f'v_mov_b64 {vr(AQK,2)}, 0')
    p(f'v_max_f32 v{E0}, v{T2}, v{LACC}')
    p(f'v_cmp_nge_f32 vcc, s{sLIM}, v{E0}')
    for r in range(4): p(f'v_mul_f32 v{OA0+r}, v{OA0+r}, v{T2}')
    p(f's_and_b64 s[34:35], vcc, s[{sVAL}:{sVAL+1}]'); p(f's_cbranch_scc1 FB{tag}'); p(f'FBC{tag}:')
    p(cv(OA0, OA0)); p(cv(OA0+2, OA0+2))
    p(f'ds_write2_b32 v{AOW}, v{OA0}, v{OA0+2} offset0:0 offset1:4')
    for r in (0, 2): p(f'v_pk_mul_f32 {vr(OA1+r,2)}, {vr(OA1+r,2)}, {vr(T2,2)} op_sel_hi:[1,0]')
    p(cv(OA1, OA1)); p(cv(OA1+2, OA1+2))
    p(f'ds_write2_b32 v{AOW}, v{OA1}, v{OA1+2} offset0:64 offset1:68')
    slow(f'FB{tag}:')
    slow(f"""s_nop 7
    v_max3_f32 v{T2}, v{SX0}, v{SX0+1}, v{SX0+2}
    v_max3_f32 v{T2}, v{T2}, v{SX0+3}, v{SX1}
    v_max3_f32 v{T2}, v{T2}, v{SX1+1}, v{SX1+2}
    v_max3_f32 v{T2}, v{T2}, v{SX1+3}, v{SM}
    v_max_f32 v{T2}, v{T2}, v{SM+1}
    v_mov_b32 v{E0}, v{T2}
    v_permlane16_swap_b32 v{T2}, v{E0}
    v_max_f32 v{T2}, v{T2}, v{E0}
    v_mov_b32 v{E0}, v{T2}
    v_permlane32_swap_b32 v{T2}, v{E0}
    v_max_f32 v{T2}, v{T2}, v{E0}""")
    for k in range(5):
        for j in range(2): slow(f'v_sub_f32 v{E0+j}, v{S+2*k+j}, v{T2}')
        for j in range(2): slow(ex(E0+j, E0+j))
        slow(cv(PX + k if k < 4 else PM, E0))
    slow(mf32(LACC, ONES, PX, '0')); slow(mf32(OA0, VX0, PX, '0')); slow(mf32(OA1, VX1, PX, '0'))
    slow(mf16(LACC, ONES, PM, LACC)); slow(mf16(OA0, V0, PM, OA0)); slow(mf16(OA1, V1, PM, OA1))
    slow(f'v_rcp_f32 v{T2}, v{LACC}')
    for r in range(4): slow(f'v_mul_f32 v{OA0+r}, v{OA0+r}, v{T2}')
    slow(f's_nop 7\ns_branch FBC{tag}')
    stamp()
    acc = [AQK, AQK+4, AQK+8, AQK+12, MEMA+16, MEMA+20, MEMA+24, MEMA+28]
    land = [KW, KW+8, KW+16, KW+24, MEMA, QT+8, S, ACCV]
    for r in list(range(AQK+2, AQK+16, 2)) + list(range(MEMA+16, MEMA+32, 2)): p(f'v_mov_b64 {vr(r,2)}, 0')
    w1 = []
    for t in range(8): w1 += [rd128(land[t], wl(1, t)), rd128(land[t] + 4, wl(1, t) + 1024)]
    npre = opt.get('w1pre', 0)
    for x in w1[:npre]: p(x)
    p(f's_waitcnt lgkmcnt({npre})'); p('s_barrier')
    stamp()
    OP = QT
    p(rd128(OP, L_O)); p(rd128(OP+4, L_O + 1024))
    nmid = opt.get('w1mid', 6)
    for x in w1[npre:npre+nmid]: p(x)
    w1 = w1[npre+nmid:]
    def pst(t): return f'buffer_store_dword v{acc[t]}, v{AP}, {SRD}, s{sPART+t} offen'
    book = [f's_add_u32 s{sSTEP}, s{sSTEP}, 1', f's_xor_b32 s{sMEM}, s{sMEM}, 8192', f's_xor_b32 s{sMEM2}, s{sMEM2}, 8192',
            f's_add_u32 s{sSLOT}, s{sSLOT}, 1', f's_cmp_eq_u32 s{sSLOT}, 3\ns_cselect_b32 s{sDLT}, {(-2*INBOX_SLOT) & 0xffffffff}, s{sC2}\ns_cselect_b32 s{sSLOT}, 0, s{sSLOT}']
    book += [f's_add_u32 s{sV}, s{sV}, {32*16384}']
    if w in (1, 2): book += [f's_add_u32 s{sPF}, s{sPF}, {32*16384}']
    es = [epi(acc[t]) for t in range(8)]
    for t in range(8):
        p(smf(acc[t], OP, wo0(t)))
        if t >= 3: p(pst(t-3))
        if w1: p(w1.pop(0))
        elif book: p(book.pop(0))
        if t >= 2: p(es[t-2][2])
        p(smf(acc[t], OP+4, vr(land[t], 8)))
        if w1 and (t < 1 or opt.get('w1both', 1)): p(w1.pop(0))
        elif book: p(book.pop(0))
        if t >= 1: p(es[t-1][0]); p(es[t-1][1])
    p(pst(5)); p(es[6][2]); p(pst(6))
    p(es[7][0]); p(es[7][1]); p(es[7][2]); p(pst(7))
    pastS7[0] = True
    stamp()
    if kpos == 'S7': p('\n'.join(kdm))
    if rpos == 'S7': p('\n'.join(rst))
    if full:
        p(rd128(QT, L_KM + w*1024))
        book.append(f's_add_u32 s{sKVM}, s{sKVM}, {32*4096}')
        if w == 3:
            p(f"""s_add_u32 s{sNEED}, s{sSTEP}, 2
            s_lshr_b32 s{sNEED}, s{sNEED}, 2
            s_add_u32 s{sNEED}, s{sNEED}, 1
            s_min_u32 s{sNEED}, s{sNEED}, 16""")
            slow(f'KVW:\nv_and_b32 v{T2}, 63, v{AP}')
            common.wait_flags(slow, 'KVL', T2, f's{sFKV}', f's{sNEED}', T3)
            slow('s_branch KVR')
    if w == 0: p(rd128(S, L_SEL))
    adv = [f's_add_u32 s{sV2}, s{sIN}, {w*2048}', f's_add_u32 s{sIN}, s{sIN}, s{sDLT}'] + ([f's_add_u32 s{sIN2}, s{sIN2}, s{sDLT}'] if w == 0 else [])
    late = ([] if kpos != 'B4' else kdm) + ([] if rpos != 'B4' else rst)
    adv += [f's_add_u32 s{sK}, s{sK}, {32*16384}', f's_xor_b32 s{sKB}, s{sKB}, {L_K ^ L_V}']
    adv = late + adv
    hk1 = []
    for t in range(8): hk1 += [f's_add_u32 s{sPART+t}, s{sPART+t}, s{sDLT}', f'v_mov_b64 {vr(AQK+2*t,2)}, 0']
    pre = [x for i in range(4) for x in wrd(i, 0, i).split('\n')]
    z2 = [f'v_mov_b64 {vr(AQK+r,2)}, 0' for r in range(16, 24, 2)] + [f'v_mov_b64 {vr(NEG,2)}, -1', f'v_mov_b64 {vr(NEG+2,2)}, -1']
    hk2 = []
    for i, x in enumerate(pre): hk2 += [x] + ([z2[i]] if i < len(z2) else [])
    for b_ in book: p(b_)
    if w == 0:
        R0, R = S + 4, S + 8
        if var >= 1: p('\n'.join(hk1))
        if var >= 2: p('\n'.join(hk2))
        for _ in range(opt.get('dly', (0, 0, 0))[var]): p('s_nop 3')
        loads = [f'buffer_load_dwordx4 {vr(MEMA+4*u,4)}, v{AL0}, {SRD}, s{sIN if u < 4 else sIN2} offen offset:{(u&3)*1024} sc1' for u in range(8)]
        if opt.get('w0st'): sv = nst[0]; nst[0] = 1; stamp(); nst[0] = sv
        p('\n'.join(loads))
        if var < 1: p('\n'.join(hk1))
        if var < 2: p('\n'.join(hk2))
        p(f'RBR{tag}:')
        for u in range(8):
            p(mf32(R0 if u == 0 else R, S, MEMA + 4*u, '0' if u == 0 else R0 if u == 1 else R))
            if opt.get('w0st') and u in (0, 7): sv = nst[0]; nst[0] = 2 if u == 0 else 3; stamp(); nst[0] = sv
            if u == 2: p(f'v_cmp_u_f32 vcc, v{R0}, v{R0}')
            if u == 3: p(f's_cbranch_vccnz RBE{tag}\nRBF{tag}:')
        p(f'v_cmp_u_f32 vcc, v{R}, v{R}')
        p(f'v_cvt_pk_bf16_f32 v{R}, v{R}, v{R+2}')
        p(f's_cbranch_vccnz RBC{tag}\nRBD{tag}:')
        if opt.get('b4') == 2: p('s_barrier')
        p(f'buffer_store_dword v{R}, v{T3}, {SRD}, s{sPUB} offen')
        if opt.get('b4') == 1: p('s_barrier')
        p(f's_xor_b32 s{sPUB}, s{sPUB}, 8192\nbuffer_store_dword v{NEG}, v{AP}, {SRD}, s{sPUB} offen')
        p('\n'.join(adv))
        if opt.get('hist'):
            p(f's_lshl_b32 s3, s{sSTEP}, 13\ns_add_u32 s3, s3, {WS_G}\ns_lshl_b32 s34, s{sH}, 8\ns_add_u32 s3, s3, s34\nbuffer_store_dword v{R}, v{T3}, {SRD}, s3 offen')
        slow(f'RBE{tag}:'); slow(mx(1, MEMA, 0)); slow(mx(1, MEMA, 1)); slow(CMP); slow(f's_cbranch_vccz RBF{tag}\ns_branch RB{tag}')
        slow(f'RBC{tag}:')
        for u in range(8): slow(mx(u == 0, MEMA + 4*u, 0)); slow(mx(u == 0, MEMA + 4*u, 1))
        slow(CMP); slow(f's_cbranch_vccz RBD{tag}')
        slow(f'RB{tag}:'); slow('\n'.join('@nowait ' + l for l in loads)); slow(TMO(sRB)); slow(f's_branch RBR{tag}')
    else:
        p('\n'.join(hk1)); p('\n'.join(hk2))
        if full and w == 3: p(f's_waitcnt vmcnt({8 + 2*(kpos == "S7") + 2*(rpos == "S7")})\nv_cmp_gt_u32 vcc, s{sNEED}, v{T3}\ns_cbranch_vccnz KVW\nKVR:')
        if opt.get('b4'): p('s_barrier')
        p('\n'.join(adv))
        slp = opt.get('slp3', opt.get('slp')) if w == 3 else opt.get('slp')
        if slp: p(f's_sleep {slp}')
        for _ in range(opt.get('slpn', 0)): p('s_nop 7')
    stamp()
    p(f's_cmp_lt_u32 s{sSTEP}, {nsteps}\ns_cbranch_scc1 HA{tag}')
    if True:
        n = len(fb)
        sets = (LB, S)
        slow(f'SB{tag}:')
        slow('@wait_reset')
        for i, t in enumerate(fb): slow('@nowait ' + gld(sets[0] + 4*i, t))
        slow(TMO(sRB)); slow('s_nop 15')
        slow(f'SL{tag}:')
        for k in range(2):
            for i, t in enumerate(fb): slow('@nowait ' + gld(sets[1-k] + 4*i, t))
            slow(f's_waitcnt vmcnt({n})')
            for i, t in enumerate(fb): slow('@nowait ' + mwr(sets[k] + 4*i, t))
            for i, t in enumerate(fb): slow('@nowait ' + mx(i == 0, sets[k] + 4*i, 0)); slow('@nowait ' + mx(i == 0, sets[k] + 4*i, 1))
            slow(CMP); slow(f's_cbranch_vccz SK{tag}')
        slow(TMO(sRB)); slow(f's_branch SL{tag}')
        slow(f'SK{tag}:'); slow(f'v_add_u32 v{T0}, s{sKB}, v{AL0}\ns_waitcnt lgkmcnt(0) vmcnt(0)\ns_branch SBR{tag}')
    slow(f'CE{tag}:'); slow('\n'.join(hk2)); slow(f's_branch HA{tag}')
    fin = Prog()
    if var == 0:
        fin(f'FIN{w}:')
        fr = (own, own + 4)
        fin(f'FL{w}:')
        for i, t in enumerate(fr): fin(gld(S + 4*i, t))
        fin(TMO(sRETRY))
        for i, t in enumerate(fr): fin(mx(i == 0, S + 4*i, 0)); fin(mx(i == 0, S + 4*i, 1))
        fin(CMP); fin(f's_cbranch_vccnz FL{w}')
        fin('s_waitcnt lgkmcnt(0)\ns_barrier')
        for i, t in enumerate(fr): fin(mwr(S + 4*i, t))
        fin(f'buffer_store_dwordx4 {vr(QT,4)}, v{AL0}, {SRD}, s{sKVM} offen offset:{w*1024} sc1\ns_add_u32 s{sKVM}, s{sKVM}, {32*4096}')
        fin('s_waitcnt lgkmcnt(0)\ns_barrier')
        for t in range(8): fin(rd128(MEMA + 4*t, mloc(t)))
        for t in range(8):
            fin(v1s(t))
            if t < 4: fin(wrd(t, 0, t + 4))
            fin(ks_(0, t)); fin(ks_(1, t)); fin(v0s(t))
        fin('s_barrier')
        for a_, off, u in ((V1, 4, 1), (K0, 0, 0), (K1, 0, 1), (V0, 4, 0)):
            fin('\n'.join(epi(a_))); fin(qkw(L_KM + off, u, a_))
        fin('s_waitcnt lgkmcnt(0)\ns_barrier')
        fin(rd128(QT, L_KM + w*1024))
        fin(f'buffer_store_dwordx4 {vr(QT,4)}, v{AL0}, {SRD}, s{sKVM} offen offset:{w*1024} sc1\ns_waitcnt vmcnt(0)\ns_barrier')
        if w == 0:
            fin(f'v_mov_b32 v{T0}, 64\ns_mov_b64 exec, 1\nbuffer_store_dword v{T0}, v{AL0}, {SRD}, s{sFCH} offen sc1\ns_mov_b64 exec, -1')
        if opt.get('log') and w == 1:
            fin(f's_lshl_b32 s3, s{sH}, 8\ns_add_u32 s3, s3, {WS_DBG + 0x10000}\nbuffer_store_dword v{T3}, v{AP}, {SRD}, s3 offen')
        if opt.get('stamps') or opt.get('trace'):
            fin(f's_lshl_b32 s3, s{sH}, 2\ns_add_u32 s3, s3, {w}\ns_lshl_b32 s3, s3, 6\ns_add_u32 s3, s3, {WS_DBG + 0x20000}')
            for i in range(12): fin(f'v_mov_b32 v{i}, s{4+i}')
            fin('s_mov_b64 exec, 1')
            for i in range(3): fin(f'buffer_store_dwordx4 {vr(4*i,4)}, v{AL0}, {SRD}, s3 offen offset:{16*i}')
            fin('s_mov_b64 exec, -1')
        if opt.get('time'): fin(f's_mov_b32 s85, s{sRETRY}\ns_mov_b32 s86, s{sRB}')
        fin('s_branch L_DONE')
    return p.lines, slow.lines, fin.lines

DEF = dict(D=3, sp=3, dly=(14, 10, 2), b4=1, rpos='P1', gg=(2, 7), pg=(4, 5, 6, 8))
def role(out, opt):
    from main import stamp
    o2 = dict(DEF); o2.update(opt); opt = o2
    T = opt.get('time')
    p = Prog()
    p('R_CHAIN:')
    startup(p, D_CHINIT, 2 if opt.get('kpos') == 'P1' else 1)
    if T: stamp(p, 2)
    common.wait_dbg(p, 'C_init', D_CHINIT, 32)
    p(f's_cmp_lg_u32 s{sW}, 3\ns_cbranch_scc1 C_nok0')
    common.wait_dbg(p, 'C_init2', D_INIT, 1)
    p(f'v_and_b32 v{T2}, 63, v{AP}')
    common.wait_flags(p, 'C_kv', T2, f's{sFKV}', 1, T3)
    p('\n'.join(kdma(p)))
    p('s_waitcnt vmcnt(0)\nC_nok0:\ns_barrier')
    p(f's_lshl_b32 s3, s{sW}, 11\ns_add_u32 s{sK}, s{sK}, s3\ns_add_u32 s{sK}, s{sK}, {32*16384}')
    if T: stamp(p, 3); p('s_memtime s[94:95]\ns_waitcnt lgkmcnt(0)\ns_mov_b32 s98, s94')
    if opt.get('stamps') or opt.get('trace'):
        for i in range(12): p(f's_mov_b32 s{4+i}, 0')
    vb = opt.get('vb', (12, 20))
    p(f"""s_cmp_eq_u32 s{sW}, 1
    s_cbranch_scc1 CE1
    s_cmp_eq_u32 s{sW}, 2
    s_cbranch_scc1 CE2
    s_cmp_eq_u32 s{sW}, 3
    s_cbranch_scc1 CE3
    s_cmp_lt_u32 s{sH}, {vb[0]}
    s_cbranch_scc1 CE0v0
    s_cmp_lt_u32 s{sH}, {vb[1]}
    s_cbranch_scc1 CE0v1
    s_branch CE0v2""")
    o, st = process(p.lines); out += o
    for w, var in ((0, 0), (0, 1), (0, 2), (1, 0), (2, 0), (3, 0)):
        body, slow, fin = step(w, 63, opt, var)
        import re
        for pat in opt.get('drop', ()): body = [l for l in body if not re.search(pat, l)]
        o, st = loop(body, State())
        o = hoist_waits(o)
        o_, st = loop(o, State())
        assert o_ == o
        if T:
            q = Prog(); stamp(q, 4); q('s_memtime s[96:97]\ns_waitcnt lgkmcnt(0)\ns_sub_u32 s82, s96, s94'); o += process(q.lines)[0]
        out += ['.p2align 6'] + o + [f's_branch FIN{w}'] + process(slow)[0]
        if fin: out += process(['s_waitcnt lgkmcnt(0)', 's_nop 7'] + fin)[0][2:]
```

```python
from asmlib import *
from layout import *
SRD = 's[36:39]'
sRANK, sW, sXCC = 40, 47, 72
def vr(a, n): return f'v[{a}:{a+n-1}]' if n > 1 else f'v{a}'
def ar(a, n): return f'a[{a}:{a+n-1}]'
def tmo(r, lab='L_ABORT'): return f's_add_u32 s{r}, s{r}, 1\ns_cmp_gt_u32 s{r}, {LIMIT}\ns_cbranch_scc1 {lab}'

def entry(p, nwg=256):
    p(f'''
    s_cmp_ge_u32 s2, {nwg}
    s_cbranch_scc1 L_EXIT
    s_load_dwordx16 s[4:19], s[0:1], 0
    s_load_dwordx8 s[20:27], s[0:1], 64
    s_load_dwordx4 s[28:31], s[0:1], 96
    s_load_dwordx2 s[32:33], s[0:1], 112
    s_getreg_b32 s{sXCC}, hwreg(HW_REG_XCC_ID, 0, 3)
    v_lshrrev_b32 v66, 6, v0
    v_readfirstlane_b32 s{sW}, v66
    s_waitcnt lgkmcnt(0)
    s_mov_b32 s36, s32
    s_mov_b32 s37, s33
    s_mov_b32 s38, {WS_SIZE}
    s_mov_b32 s39, 0x20000
    ''')

def register(p):
    p(f'''
    s_lshl_b32 s3, s{sXCC}, 5
    v_mov_b32 v1, s3
    v_mov_b32 v2, 1
    v_mov_b32 v4, 0
    v_cmp_eq_u32 vcc, 0, v0
    s_and_saveexec_b64 s[34:35], vcc
    s_cbranch_execz L_reg_skip
    global_atomic_add v3, v1, v2, s[30:31] sc0
    L_reg_skip:
    s_mov_b64 exec, s[34:35]
    s_cmp_lg_u32 s2, 0
    s_cbranch_scc1 L_noclear
    v_mov_b32 v8, 0
    v_mov_b32 v9, 0
    v_mov_b32 v10, 0
    v_mov_b32 v11, 0
    v_lshlrev_b32 v5, 4, v0
    @nowait buffer_store_dwordx4 v[8:11], v5, {SRD}, 0 offen sc1
    v_add_u32 v5, 0x1000, v5
    @nowait buffer_store_dwordx4 v[8:11], v5, {SRD}, 0 offen sc1
    v_add_u32 v5, 0x1000, v5
    @nowait buffer_store_dwordx4 v[8:11], v5, {SRD}, 0 offen sc1
    v_add_u32 v5, 0x1000, v5
    @nowait buffer_store_dwordx4 v[8:11], v5, {SRD}, 0 offen sc1
    s_waitcnt vmcnt(0)
    s_barrier
    v_mov_b32 v5, {D_INIT}
    s_mov_b64 exec, 1
    global_store_dword v5, v2, s[30:31] sc1
    s_mov_b64 exec, -1
    L_noclear:
    v_cmp_eq_u32 vcc, 0, v0
    s_and_saveexec_b64 s[34:35], vcc
    s_cbranch_execz L_reg_skip2
    s_waitcnt vmcnt(0)
    ds_write_b32 v4, v3
    s_waitcnt lgkmcnt(0)
    L_reg_skip2:
    s_mov_b64 exec, s[34:35]
    s_barrier
    ds_read_b32 v3, v4
    s_waitcnt lgkmcnt(0) vmcnt(0)
    v_readfirstlane_b32 s{sRANK}, v3
    s_barrier
    @wait_reset
    ''')

def wait_dbg(p, lab, off, val, vt=1, st=3):
    p(f'''
    v_mov_b32 v{vt}, {off}
    s_mov_b32 s{st}, 0
    {lab}:
    global_load_dword v{vt+1}, v{vt}, s[30:31] sc1
    {tmo(st)}
    s_waitcnt vmcnt(0)
    v_readfirstlane_b32 s34, v{vt+1}
    s_cmp_lt_u32 s34, {val}
    s_cbranch_scc1 {lab}
    ''')

def wait_flags(p, lab, voff, soff, need, vt, st=3, sleep=1):
    p(f'''
    s_mov_b32 s{st}, 0
    s_branch {lab}_go
    {lab}:
    s_sleep {sleep}
    {lab}_go:
    buffer_load_dword v{vt}, v{voff}, {SRD}, {soff} offen sc1
    {tmo(st)}
    s_waitcnt vmcnt(0)
    v_cmp_gt_u32 vcc, {need}, v{vt}
    s_cbranch_vccnz {lab}
    ''')

def set_flag(p, vval, soff, voff):
    p(f's_mov_b64 exec, 1\nbuffer_store_dword v{vval}, v{voff}, {SRD}, {soff} offen sc1\ns_mov_b64 exec, -1')

def rnd(p, r):
    p(f'v_cvt_pk_bf16_f32 v{r}, v{r}, v{r}\nv_and_b32 v{r}, 0xffff0000, v{r}')
def rnd2(p, a, b):
    p(f'v_cvt_pk_bf16_f32 v{b}, v{a}, v{b}\nv_lshlrev_b32 v{a}, 16, v{b}\nv_and_b32 v{b}, 0xffff0000, v{b}')
```

```python
from common import *
def dppsum8(p, r):
    p(f'''v_add_f32_dpp v{r}, v{r}, v{r} quad_perm:[1,0,3,2] row_mask:0xf bank_mask:0xf
    v_add_f32_dpp v{r}, v{r}, v{r} quad_perm:[2,3,0,1] row_mask:0xf bank_mask:0xf
    v_add_f32_dpp v{r}, v{r}, v{r} row_half_mirror row_mask:0xf bank_mask:0xf''')

def s0(p, sSEG):
    RAW, F = 32, 64
    p(f'''
    v_and_b32 v1, 63, v0
    v_lshrrev_b32 v2, 3, v0
    v_and_b32 v3, 7, v0                ; p
    v_lshrrev_b32 v4, 1, v3
    v_and_b32 v5, 1, v3
    v_lshlrev_b32 v6, 10, v2
    v_lshl_add_u32 v6, v4, 5, v6
    v_lshl_add_u32 v6, v5, 3, v6       ; token*1024 + 32*(p>>1) + 8*(p&1)
    s_lshl_b32 s3, s{sSEG}, 15
    v_add_u32 v6, s3, v6
    v_lshlrev_b32 v7, 10, v4
    v_lshl_add_u32 v7, v5, 9, v7
    v_lshl_add_u32 v7, v2, 4, v7       ; (p>>1)*1024 + (p&1)*512 + token*16
    s_add_u32 s35, s3, {WS_XN}
    ''')
    for j in range(8):
        p(f'global_load_dwordx2 {vr(RAW+4*j,2)}, v6, s[4:5] offset:{128*j}')
        p(f'global_load_dwordx2 {vr(RAW+4*j+2,2)}, v6, s[4:5] offset:{128*j+16}')
    for i in range(32):
        p(f'v_lshlrev_b32 v{F+2*i}, 16, v{RAW+i}\nv_and_b32 v{F+2*i+1}, 0xffff0000, v{RAW+i}')
    p(f'v_add_f32 v8, v{F}, v{F+1}')
    for i in range(2, 64): p(f'v_add_f32 v8, v8, v{F+i}')
    dppsum8(p, 8)
    p('v_mul_f32 v8, 0x3b000000, v8\nv_mov_b32 v9, 0')
    for i in range(64): p(f'v_sub_f32 v11, v{F+i}, v8\nv_fmac_f32 v9, v11, v11')
    dppsum8(p, 9)
    p('v_mul_f32 v9, 0x3b000000, v9')
    rnd(p, 8); rnd(p, 9)
    p('v_add_f32 v9, 0x3727c5ac, v9'); rnd(p, 9)
    p('v_sqrt_f32 v9, v9'); rnd(p, 9)
    p('v_rcp_f32 v10, v9')
    for i in range(32):
        a_, b_ = F + 2*i, F + 2*i + 1
        p(f'''v_sub_f32 v{a_}, v{a_}, v8
        v_sub_f32 v{b_}, v{b_}, v8
        v_cvt_pk_bf16_f32 v{b_}, v{a_}, v{b_}
        v_lshlrev_b32 v{a_}, 16, v{b_}
        v_and_b32 v{b_}, 0xffff0000, v{b_}
        v_mul_f32 v{a_}, v{a_}, v10
        v_mul_f32 v{b_}, v{b_}, v10
        v_cvt_pk_bf16_f32 v{RAW+i}, v{a_}, v{b_}''')
    for j in range(8):
        p(f'buffer_store_dwordx4 {vr(RAW+4*j,4)}, v7, {SRD}, s35 offen sc1')
        p('s_add_u32 s35, s35, 4096')
    wait_dbg(p, 'S0_init', D_INIT, 1, vt=12)
    p(f'''s_barrier
    s_cmp_lg_u32 s{sW}, 0
    s_cbranch_scc1 S0_done
    v_mov_b32 v12, 0
    v_mov_b32 v13, 1
    s_lshl_b32 s3, s{sSEG}, 2''')
    set_flag(p, 13, 's3', 12)
    p('S0_done:')

sMAT, sPAIR, sQR = 41, 42, 43
sX, sXN, sOUT, sFLG, sI, sC = 44, 45, 46, 48, 49, 50
AL, VO, ZERO, VAL = 10, 11, 12, 13
RING, ACC, PK = 64, 128, 160
SRDW = 's[68:71]'

def s1_dma(p, c):
    for i in range(8):
        p(f's_add_u32 m0, s66, {(c & 3)*8192 + i*1024}')
        p(f's_add_u32 s3, s67, {(c*64 + i*8)*8192}')
        p(f'buffer_load_dwordx4 v14, {SRDW}, s3 offen lds')

def s1_start(p):
    p(f'''
    s_sub_u32 s3, s{sXCC}, 2
    s_lshr_b32 s{sMAT}, s3, 1
    s_and_b32 s3, s3, 1
    s_lshl_b32 s3, s3, 3
    s_lshr_b32 s34, s{sRANK}, 2
    s_add_u32 s{sPAIR}, s3, s34
    s_and_b32 s{sQR}, s{sRANK}, 3
    s_mov_b32 s68, s10
    s_mov_b32 s69, s11
    s_cmp_eq_u32 s{sMAT}, 1
    s_cselect_b32 s68, s12, s68
    s_cselect_b32 s69, s13, s69
    s_cmp_eq_u32 s{sMAT}, 2
    s_cselect_b32 s68, s8, s68
    s_cselect_b32 s69, s9, s69
    s_mov_b32 s70, 0x400000
    s_mov_b32 s71, 0x20000
    s_lshl_b32 s67, s{sPAIR}, 9
    s_lshl_b32 s3, s{sW}, 7
    s_add_u32 s67, s67, s3
    s_lshl_b32 s66, s{sW}, 15
    v_and_b32 v20, 63, v0
    v_lshrrev_b32 v21, 3, v20
    v_and_b32 v22, 7, v20
    v_lshrrev_b32 v23, 4, v20          ; g
    v_and_b32 v24, 1, v23
    v_lshlrev_b32 v25, 2, v24
    v_xor_b32 v22, v22, v25
    v_lshlrev_b32 v22, 4, v22
    v_lshl_add_u32 v14, v21, 13, v22
    v_and_b32 v25, 15, v20
    v_lshrrev_b32 v26, 2, v25          ; r
    v_and_b32 v25, 3, v25              ; c
    v_lshrrev_b32 v27, 1, v23          ; hi
    v_lshl_add_u32 v27, v27, 2, v26
    v_lshlrev_b32 v27, 7, v27
    v_lshrrev_b32 v26, 1, v26
    v_lshl_add_u32 v27, v26, 6, v27
    v_lshl_add_u32 v27, v24, 5, v27
    v_lshl_add_u32 v27, v25, 3, v27
    v_add_u32 v15, s66, v27
    v_xor_b32 v16, 64, v15
    ''')
    for c in range(4): s1_dma(p, c)

def s1_weights(p):
    for c in range(8):
        p(f's_waitcnt vmcnt({8*min(3, 7-c)})')
        for ct in range(2):
            for k in range(4):
                ks = 4*c + k
                for h in range(2):
                    d = (ct*32 + ks)*4 + 2*h
                    p(f'ds_read_b64_tr_b16 a[{d}:{d+1}], v{15+ct} offset:{(c&3)*8192 + (16*k + 8*h)*128}')
            p('s_waitcnt lgkmcnt(0)')
        if c + 4 < 8: s1_dma(p, c + 4)

def s1_main(p_lines_out, carry):
    p = Prog()
    p(f'''
    v_and_b32 v20, 63, v0
    v_lshlrev_b32 v{AL}, 4, v20
    v_lshlrev_b32 v21, 2, v20
    v_mov_b32 v{ZERO}, 0
    s_cmp_lg_u32 s{sW}, 0
    s_cbranch_scc1 S1_xok
    ''')
    wait_dbg(p, 'S1_init', D_INIT, 1, vt=22)
    wait_flags(p, 'S1_xn', 21, F_XN, 1, 22)
    p(f'''buffer_inv sc1
    s_waitcnt vmcnt(0)
    S1_xok:
    s_barrier
    s_lshl_b32 s3, s{sQR}, 15
    s_add_u32 s{sX}, s3, {WS_XN}
    s_mov_b32 s{sI}, 0
    s_mov_b32 s{sC}, 0x3e0293ee
    s_lshr_b32 s34, s{sW}, 1
    s_lshl_b32 s35, s{sPAIR}, 1
    s_add_u32 s34, s34, s35               ; head
    s_lshl_b32 s35, s{sQR}, 5
    s_add_u32 s35, s35, s34
    s_and_b32 s51, s{sW}, 1
    v_and_b32 v21, 15, v20
    v_lshlrev_b32 v21, 4, v21
    v_lshrrev_b32 v22, 5, v20
    v_lshl_add_u32 v21, v22, 8, v21       ; hi*256 + (l&15)*16
    v_bfe_u32 v22, v20, 4, 1
    ''')
    for k in range(16):
        p(f's_add_u32 s3, s{sX}, {(k>>2)*4096}') if k % 4 == 0 else None
        p(f'buffer_load_dwordx4 {vr(RING+4*k,4)}, v{AL}, {SRD}, s3 offen offset:{(k&3)*1024}')
    p(f'''s_cmp_eq_u32 s{sMAT}, 1
    s_cbranch_scc1 S1_V
    v_lshl_add_u32 v{VO}, v22, 12, v21
    s_cmp_eq_u32 s{sMAT}, 2
    s_cbranch_scc1 S1_Q
    s_lshl_b32 s{sOUT}, s35, 14
    s_lshl_b32 s3, s51, 11
    s_add_u32 s{sOUT}, s{sOUT}, s3
    s_add_u32 s{sOUT}, s{sOUT}, {WS_KV}
    s_lshl_b32 s{sFLG}, s34, 6
    s_lshl_b32 s3, s{sQR}, 4
    s_add_u32 s{sFLG}, s{sFLG}, s3
    s_lshl_b32 s3, s51, 2
    s_add_u32 s{sFLG}, s{sFLG}, s3
    s_add_u32 s{sFLG}, s{sFLG}, {F_KV}
    s_branch S1_LK
    S1_Q:
    s_lshl_b32 s{sOUT}, s35, 13
    s_lshl_b32 s3, s51, 11
    s_add_u32 s{sOUT}, s{sOUT}, s3
    s_add_u32 s{sOUT}, s{sOUT}, {WS_Q}
    s_lshl_b32 s{sFLG}, s34, 5
    s_lshl_b32 s3, s{sQR}, 3
    s_add_u32 s{sFLG}, s{sFLG}, s3
    s_lshl_b32 s3, s51, 2
    s_add_u32 s{sFLG}, s{sFLG}, s3
    s_add_u32 s{sFLG}, s{sFLG}, {F_Q}
    s_branch S1_LQ
    S1_V:
    v_lshl_add_u32 v{VO}, v22, 10, v21
    s_lshl_b32 s{sOUT}, s35, 14
    s_lshl_b32 s3, s51, 12
    s_add_u32 s{sOUT}, s{sOUT}, s3
    s_add_u32 s{sOUT}, s{sOUT}, {WS_KV + 8192}
    s_lshl_b32 s{sFLG}, s34, 6
    s_lshl_b32 s3, s{sQR}, 4
    s_add_u32 s{sFLG}, s{sFLG}, s3
    s_lshl_b32 s3, s51, 2
    s_add_u32 s{sFLG}, s{sFLG}, s3
    s_add_u32 s{sFLG}, s{sFLG}, {F_KV + 8}
    s_branch S1_LV
    ''')
    o, st = process(p.lines, carry=carry)
    p_lines_out += o
    for kind in 'KQV':
        b = Prog()
        b(f'S1_L{kind}:')
        b(f's_add_u32 s{sXN}, s{sX}, {4*32768}\ns_cmp_eq_u32 s{sI}, 15\ns_cselect_b32 s{sXN}, s{sX}, s{sXN}')
        for ks in range(32):
            r = RING + 4*(ks & 15)
            for ct in range(2):
                wf = ar((ct*32 + ks)*4, 4); acc = vr(ACC + 16*ct, 16)
                a_, b_ = (vr(r, 4), wf) if kind == 'V' else (wf, vr(r, 4))
                b(f'v_mfma_f32_32x32x16_bf16 {acc}, {a_}, {b_}, {"0" if ks == 0 else acc}')
            nk = (ks + 16) & 31
            if nk % 4 == 0: b(f's_add_u32 s3, s{sX if ks < 16 else sXN}, {(nk>>2)*4096}')
            b(f'buffer_load_dwordx4 {vr(r,4)}, v{AL}, {SRD}, s3 offen offset:{(nk&3)*1024}')
            if ks == 17:
                b(f'v_mov_b32 v{VAL}, s{sI}')
                set_flag(b, VAL, f's{sFLG}', ZERO)
        for ct in range(2):
            A = ACC + 16*ct
            for c in range(2):
                src = [8*c + 2*i for i in range(4)] if kind != 'V' else [4*c, 4*c + 2, 4*c + 8, 4*c + 10]
                d = PK + 8*ct + 4*c
                for i, s_ in enumerate(src): b(f'v_cvt_pk_bf16_f32 v{d+i}, v{A+s_}, v{A+s_+1}')
                b(f'buffer_store_dwordx4 {vr(d,4)}, v{VO}, {SRD}, s{sOUT} offen offset:{(2048 if kind == "V" else 1024)*ct + 512*c} sc1')
        b(f'''s_mov_b32 s{sX}, s{sXN}
        s_add_u32 s{sOUT}, s{sOUT}, {4*32*(8192 if kind == "Q" else 16384)}
        s_add_u32 s{sI}, s{sI}, 1
        s_cmp_lt_u32 s{sI}, 16
        s_cbranch_scc1 S1_L{kind}''')
        o, _ = loop(b.lines, st)
        p_lines_out += ['.p2align 6'] + o + ['s_branch S1_END']
    e = Prog()
    e(f'S1_END:\ns_waitcnt vmcnt(0)\nv_mov_b32 v{VAL}, 16')
    set_flag(e, VAL, f's{sFLG}', ZERO)
    o, st = process(e.lines)
    p_lines_out += o
    return st
```

```python
from common import *
import math, struct
def f32(x): return hex(struct.unpack('<I', struct.pack('<f', x))[0])
LOG2E = math.log2(math.e)
GC0 = -2 * math.sqrt(2 / math.pi) * LOG2E
GC1 = GC0 * 0.044715
B_RING, B_ACT, B_U, B_STAT = 0, 65536, 131072, 147456
LANE, AL, VW, VN = 1, 2, 3, 4
TW = 5
TN = 9
A72, A64, AU, AST = 11, 12, 13, 14
A72B, TMP = 15, 16
WB, XB = 32, 64
X1, ACC3 = 96, 160
T2 = 224
sB, sSRC, sF, sG0, sG1, sONE = 41, 42, 43, 44, 45, 46
SW = {'w1': 's[52:55]', 'w2': 's[56:59]', 'w3': 's[60:63]', 'w4': 's[68:71]'}
sO = {'w1': 64, 'w2': 64, 'w3': 65, 'w4': 73}
sLDS = 66

def dma(mat, slot):
    L = []
    step = 8*2752 if mat == 'w3' else 4096
    for i in range(4):
        L.append(f's_add_u32 m0, s{sLDS}, {slot*4096 + i*1024}')
        L.append(f'buffer_load_dwordx4 v{VN if mat == "w3" else VW}, {SW[mat]}, s{sO[mat]} offen lds')
        L.append(f's_add_u32 s{sO[mat]}, s{sO[mat]}, {step}')
    return L

def reads(kind, slot, buf, actaddr):
    L = []
    if kind == 'narrow':
        for k in range(2):
            for tt in range(2):
                r, o = actaddr(k, tt); L.append(f'ds_read_b128 {vr(XB + 16*buf + 8*k + 4*tt, 4)}, v{r} offset:{o}')
            for ct in range(2):
                for h in range(2):
                    L.append(f'ds_read_b64_tr_b16 {vr(WB + 16*buf + 8*k + 4*ct + 2*h, 2)}, v{TN+ct} offset:{slot*4096 + (16*k + 8*h)*128}')
    else:
        for tt in range(3 if kind == 'wide3' else 2):
            r, o = actaddr(0, tt); L.append(f'ds_read_b128 {vr(XB + 16*buf + 4*tt, 4)}, v{r} offset:{o}')
        for ct in range(4):
            for h in range(2):
                L.append(f'ds_read_b64_tr_b16 {vr(WB + 16*buf + 4*ct + 2*h, 2)}, v{TW+ct} offset:{slot*4096 + h*2048}')
    return L

def mfmas(kind, buf, first):
    L = []
    if kind == 'narrow':
        for k in range(2):
            for ct in range(2):
                for tt in range(2):
                    acc = vr(ACC3 + 32*ct + 16*tt, 16)
                    L.append(f'v_mfma_f32_32x32x16_bf16 {acc}, {vr(WB + 16*buf + 8*k + 4*ct, 4)}, {vr(XB + 16*buf + 8*k + 4*tt, 4)}, {"0" if first and k == 0 else acc}')
    else:
        n = 3 if kind == 'wide3' else 2
        for ct in range(4):
            for tt in range(n):
                acc = ar((ct*n + tt)*16, 16)
                L.append(f'v_mfma_f32_32x32x16_bf16 {acc}, {vr(WB + 16*buf + 4*ct, 4)}, {vr(XB + 16*buf + 4*tt, 4)}, {"0" if first else acc}')
    return L

def chunk(p, kind, c, first, nxt_dma, actnext, vm=8):
    m = mfmas(kind, c & 1, first)
    fill = []
    if actnext is not None:
        fill = [f's_waitcnt vmcnt({vm})'] + reads(kind, (c + 1) & 3, (c + 1) & 1, actnext)
    d = dma(nxt_dma, c & 3) if nxt_dma else []
    per = -(-len(fill) // (len(m) - 1))
    for i, x in enumerate(m):
        p(x)
        for _ in range(per):
            if fill: p(fill.pop(0))
        if i >= len(m) - 4 and d:
            if i == len(m) - 4: p(f'@need v{WB + 16*(c & 1) + 15}')
            for _ in range(3): p(d.pop(0))

ACUR, ANXT = 15, 17
sG, sGN, sFN = 48, 49, 50
GE = {
    'w1': (8, A72, 4*2304, 65536), 'w2': (8, A72, 4*2304, 65536), 'w3': (4, A64, 8*2048, 128*2752), 'w4': (4, AU, 4*2048, 65536)}
def woff(mat, sg, sf):
    L = [f's_mul_i32 s{sO[mat]}, s{sg}, {GE[mat][3]}', f's_lshl_b32 s3, s{sW}, {7 if mat == "w3" else 8}', f's_add_u32 s{sO[mat]}, s{sO[mat]}, s3']
    if mat == 'w3': L += [f's_lshl_b32 s3, s{sf}, 9', f's_add_u32 s{sO[mat]}, s{sO[mat]}, s3']
    if mat == 'w4': L += [f's_lshl_b32 s3, s{sf}, 18', f's_add_u32 s{sO[mat]}, s{sO[mat]}, s3']
    return L
def abase(mat, sg, dst):
    L = [f's_mul_i32 s3, s{sg}, {GE[mat][2]}']
    if mat == 'w2':
        L += [f's_lshr_b32 s34, s{sg}, 1', 's_lshl_b32 s34, s34, 3', 's_lshr_b32 s34, 0x40003010, s34', 's_and_b32 s34, s34, 0xff', 's_add_u32 s3, s3, s34']
    return L + [f'v_add_u32 v{dst}, s3, v{GE[mat][1]}']
def first_group(mat, dst): return [f's_and_b32 s{dst}, s{sB}, {GE[mat][0] - 1}']

def gemm(out, st, name, kind, mat, nxt, sf, sfn, zero_first=True):
    n = GE[mat][0]
    ks = 2*2048 if kind == 'narrow' else GE[mat][2] // 4
    def act(cc):
        r, o = (ACUR, cc*ks) if cc < 4 else (ANXT, 0)
        return lambda k, tt: (r, o + k*2048 + tt*512)
    def setnext(): return [f's_add_u32 s{sGN}, s{sG}, 1', f's_and_b32 s{sGN}, s{sGN}, {n-1}'] + woff(mat, sGN, sf) + abase(mat, sGN, ANXT)
    adv = [f'v_mov_b32 v{ACUR}, v{ANXT}', f's_mov_b32 s{sG}, s{sGN}']
    p = Prog()
    for x in first_group(mat, sG) + abase(mat, sG, ACUR): p(x)
    p('s_waitcnt vmcnt(12)')
    for x in reads(kind, 0, 0, act(0)): p(x)
    trips = n - 1
    if zero_first:
        for x in setnext(): p(x)
        for c in range(4): chunk(p, kind, c, c == 0, mat, act(c + 1))
        for x in adv: p(x)
        trips -= 1
    p(f's_mov_b32 s35, {trips}')
    o, st = process(p.lines, carry=st); out += o
    b = Prog()
    b(f'{name}_L:')
    for x in setnext(): b(x)
    for c in range(4): chunk(b, kind, c, False, mat, act(c + 1))
    for x in adv: b(x)
    b(f's_sub_u32 s35, s35, 1\ns_cmp_lg_u32 s35, 0\ns_cbranch_scc1 {name}_L')
    o, st = loop(b.lines, st); out += ['.p2align 6'] + o
    p = Prog()
    for x in first_group(nxt, sGN) + woff(nxt, sGN, sfn): p(x)
    for c in range(4): chunk(p, kind, c, False, nxt, act(c + 1) if c < 3 else None)
    o, st = process(p.lines, carry=st); out += o
    return st

def gelu(p, regs, t):
    n = len(regs)
    for i in range(0, n, 2): rnd2(p, regs[i], regs[i+1])
    for i, r in enumerate(regs): p(f'v_mul_f32 v{t+i}, v{r}, v{r}')
    for i, r in enumerate(regs): p(f'v_fma_f32 v{t+i}, v{t+i}, s{sG1}, v{TMP}')
    for i, r in enumerate(regs): p(f'v_mul_f32 v{t+i}, v{t+i}, v{r}')
    for i, r in enumerate(regs): p(f'v_exp_f32 v{t+i}, v{t+i}')
    for i, r in enumerate(regs): p(f'v_add_f32 v{t+i}, 1.0, v{t+i}')
    for i, r in enumerate(regs): p(f'v_rcp_f32 v{t+i}, v{t+i}')
    for i, r in enumerate(regs): p(f'v_mul_f32 v{r}, v{r}, v{t+i}')

def lnfin(p, m, v):
    rnd(p, m); rnd(p, v)
    p(f'v_add_f32 v{v}, 0x3727c5ac, v{v}'); rnd(p, v)
    p(f'v_sqrt_f32 v{v}, v{v}'); rnd(p, v)
    p(f'v_rcp_f32 v{v}, v{v}')
def lnapply(p, d, r, m, rs):
    p(f'v_lshlrev_b32 v24, 16, v{r}\nv_and_b32 v25, 0xffff0000, v{r}\nv_sub_f32 v24, v24, v{m}\nv_sub_f32 v25, v25, v{m}')
    rnd2(p, 24, 25)
    p(f'v_mul_f32 v24, v24, v{rs}\nv_mul_f32 v25, v25, v{rs}\nv_cvt_pk_bf16_f32 v{d}, v24, v25')

def xsum32(p, r, t):
    p(f'v_mov_b32 v{t}, v{r}\nv_permlane32_swap_b32 v{r}, v{t}\nv_add_f32 v{r}, v{r}, v{t}')

def bpath(out, opt):
    T = opt.get('time')
    from main import stamp
    p = Prog()
    p('R_BPATH:')
    for _ in range(opt.get('bslow', 0)): p('s_sleep 127')
    p(f'''
    s_mov_b32 s{sB}, s{sRANK}
    s_mov_b32 s52, s20
    s_mov_b32 s53, s21
    s_mov_b32 s54, {512*512*2}
    s_mov_b32 s55, 0x20000
    s_mov_b32 s56, s22
    s_mov_b32 s57, s23
    s_mov_b32 s58, {512*512*2}
    s_mov_b32 s59, 0x20000
    s_mov_b32 s60, s24
    s_mov_b32 s61, s25
    s_mov_b32 s62, {512*1376*2}
    s_mov_b32 s63, 0x20000
    s_mov_b32 s68, s26
    s_mov_b32 s69, s27
    s_mov_b32 s70, {512*1376*2}
    s_mov_b32 s71, 0x20000
    s_lshl_b32 s{sLDS}, s{sW}, 14
    s_lshr_b32 s{sF}, s{sB}, 2
    s_cmp_ge_u32 s{sF}, 6
    s_cselect_b32 s3, 6, 0
    s_sub_u32 s{sF}, s{sF}, s3
    s_mov_b32 s{sG1}, {f32(GC1)}
    s_mov_b32 s{sONE}, 0x3f803f80
    v_and_b32 v{LANE}, 63, v0
    v_lshlrev_b32 v{AL}, 4, v{LANE}
    v_lshrrev_b32 v20, 4, v{LANE}          ; g
    v_and_b32 v21, 15, v{LANE}
    v_lshlrev_b32 v22, 2, v20
    v_xor_b32 v22, v22, v21
    v_lshlrev_b32 v22, 4, v22
    v_lshl_add_u32 v{VW}, v20, 10, v22
    ''')
    p('\n'.join(first_group('w1', sGN) + woff('w1', sGN, 0)))
    for c in range(4): p('\n'.join(dma('w1', c)))
    p(f'''
    v_lshrrev_b32 v22, 3, v{LANE}
    v_and_b32 v23, 7, v{LANE}
    v_and_b32 v24, 1, v20
    v_lshlrev_b32 v25, 2, v24
    v_xor_b32 v23, v23, v25
    v_lshlrev_b32 v23, 4, v23
    v_mul_u32_u24 v22, 2752, v22
    v_add_u32 v{VN}, v22, v23
    v_lshrrev_b32 v26, 2, v21              ; r
    v_and_b32 v25, 3, v21                  ; c
    v_lshrrev_b32 v27, 1, v20              ; hi
    v_lshl_add_u32 v28, v27, 2, v26
    v_lshlrev_b32 v29, 5, v24
    v_lshl_add_u32 v29, v25, 3, v29        ; (g&1)*32 + 8c
    v_add_u32 v29, s{sLDS}, v29
    v_lshl_add_u32 v30, v28, 8, v29
    v_lshl_add_u32 v{TW}, v26, 6, v30
    v_xor_b32 v{TW+1}, 64, v{TW}
    v_xor_b32 v{TW+2}, 0x80, v{TW}
    v_xor_b32 v{TW+3}, 0xc0, v{TW}
    v_lshl_add_u32 v30, v28, 7, v29
    v_lshrrev_b32 v26, 1, v26
    v_lshl_add_u32 v{TN}, v26, 6, v30
    v_xor_b32 v{TN+1}, 64, v{TN}
    v_and_b32 v22, 31, v{LANE}
    v_lshlrev_b32 v23, 4, v22
    v_mul_u32_u24 v24, {72*16}, v27
    v_add3_u32 v{A72}, v23, v24, 0
    v_add_u32 v{A72}, {B_ACT}, v{A72}
    v_lshl_add_u32 v{A64}, v27, 10, v23
    v_add_u32 v{AU}, {B_U}, v{A64}
    v_add_u32 v{A64}, {B_ACT}, v{A64}
    v_lshlrev_b32 v{AST}, 2, v22
    v_add_u32 v{AST}, {B_STAT}, v{AST}
    v_mov_b32 v{TMP}, {f32(GC0)}
    s_lshl_b32 s3, s{sB}, 6
    s_lshl_b32 s34, s{sW}, 5
    s_add_u32 s3, s3, s34
    s_sub_u32 s3, s3, 2
    v_add_u32 v24, s3, v22
    v_mov_b32 v25, 2047
    v_med3_i32 v24, v24, 0, v25
    v_lshrrev_b32 v25, 5, v24
    v_and_b32 v24, 31, v24
    v_lshlrev_b32 v25, 15, v25
    v_lshl_add_u32 v25, v24, 4, v25
    v_lshl_add_u32 v31, v27, 9, v25
    v_lshlrev_b32 v18, 2, v{LANE}
    s_cmp_lg_u32 s{sW}, 0
    s_cbranch_scc1 B_xok
    @wait_reset
    ''')
    wait_dbg(p, 'B_init', D_INIT, 1, vt=22)
    wait_flags(p, 'B_xn', 18, F_XN, 1, 22)
    p(f'''B_xok:
    s_barrier
    s_cmp_eq_u32 s{sW}, 3
    s_cbranch_scc1 B_noln
    s_mov_b32 s3, {WS_XN}''')
    R = 96
    for ks in range(32):
        p(f'buffer_load_dwordx4 {vr(R+4*ks,4)}, v31, {SRD}, s3 offen offset:{(ks&3)*1024} sc1')
        if ks & 3 == 3: p('s_add_u32 s3, s3, 4096')
    p('v_mov_b32 v19, 0\nv_mov_b32 v20, 0')
    for i in range(128): p(f'v_dot2c_f32_bf16 v19, s{sONE}, v{R+i}\nv_dot2c_f32_bf16 v20, v{R+i}, v{R+i}')
    xsum32(p, 19, 21); xsum32(p, 20, 21)
    p(f'''v_mul_f32 v19, 0x3b000000, v19
    v_mul_f32 v21, v19, v19
    v_fma_f32 v20, v20, 0.5, 0
    v_mul_f32 v20, 0x3b800000, v20
    v_sub_f32 v20, v20, v21
''')
    lnfin(p, 19, 20)
    p(f'''
    s_lshl_b32 s3, s{sW}, 9
    v_add_u32 v22, s3, v{A72}
    v_add_u32 v23, {16*2304}, v22''')
    for ks in range(32):
        for i in range(4):
            r = R + 4*ks + i
            lnapply(p, r, r, 19, 20)
        if True:
            p(f'ds_write_b128 v{22 + (ks >> 4)}, {vr(R+4*ks,4)} offset:{(ks & 15)*2304}')
        if ks == 0: pass
    p('B_noln:')
    lines = p.lines
    i0 = lines.index(f'v_add_u32 v23, {16*2304}, v22')
    lines[i0+1:i0+1] = [f's_cmp_eq_u32 s{sW}, 2', 's_cselect_b32 s34, 0xff, -1', 's_mov_b32 exec_lo, s34', 's_mov_b32 exec_hi, s34']
    p('s_mov_b64 exec, -1\ns_waitcnt lgkmcnt(0) vmcnt(0)\ns_barrier')
    if T: stamp(p, 2)
    o, st = process(p.lines); out += o
    st = gemm(out, st, 'B_G1', 'wide3', 'w1', 'w2', 0, 0)
    p = Prog()
    p(f'''s_barrier
    v_and_b32 v22, 31, v{LANE}
    s_lshl_b32 s3, s{sB}, 6
    s_sub_u32 s3, s3, 2
    v_add_u32 v22, s3, v22
    s_movk_i32 s3, 0x800
    v_cmp_gt_u32 s[74:75], s3, v22
    v_add_u32 v22, 64, v22
    v_cmp_gt_u32 s[76:77], s3, v22
    s_mul_i32 s3, s{sW}, {8*2304}
    v_add_u32 v23, s3, v{A72}''')
    for ct in range(4):
        for tt in range(3):
            a0 = (ct*3 + tt)*16
            for i in range(16): p(f'v_accvgpr_read_b32 v{ACC3+i}, a{a0+i}')
            gelu(p, list(range(ACC3, ACC3+16)), T2)
            for i in range(8):
                p(f'v_cvt_pk_bf16_f32 v{ACC3+16+i}, v{ACC3+2*i}, v{ACC3+2*i+1}')
                if tt != 1: p(f'v_cndmask_b32 v{ACC3+16+i}, 0, v{ACC3+16+i}, s[{74 if tt == 0 else 76}:{75 if tt == 0 else 77}]')
            if tt == 2: p('s_mov_b32 exec_lo, 0xff\ns_mov_b32 exec_hi, 0xff')
            for c in range(2): p(f'ds_write_b128 v23, {vr(ACC3+16+4*c,4)} offset:{(2*ct + c)*2304 + tt*512}')
            if tt == 2: p('s_mov_b64 exec, -1')
    p(f's_lshl_b32 s3, s{sB}, 16\ns_lshl_b32 s34, s{sW}, 13\ns_add_u32 s3, s3, s34\ns_add_u32 s{sG0}, s3, {WS_G}\ns_add_u32 s3, s3, {WS_XN}')
    def chunk_soff(ct, tt, c): return tt*32768 + (2*ct + c)*1024
    for ct in range(4):
        for tt in range(2):
            p(f's_add_u32 s34, s3, {tt*32768 + ct*2048}')
            for c in range(2): p(f'buffer_load_dwordx4 {vr(X1 + 16*ct + 8*tt + 4*c, 4)}, v{AL}, {SRD}, s34 offen offset:{c*1024} sc1')
    p(f's_waitcnt lgkmcnt(0) vmcnt(0)\ns_barrier')
    if T: stamp(p, 3)
    o, st = process(p.lines, carry=st); out += o
    st = gemm(out, st, 'B_G2', 'wide2', 'w2', 'w3', 0, sF)
    p = Prog()
    p('v_mov_b32 v18, 0\nv_mov_b32 v19, 0')
    for ct in range(4):
        for tt in range(2):
            for i in range(8):
                r = X1 + 16*ct + 8*tt + i; a = (ct*2 + tt)*16 + 2*i
                p(f'''v_accvgpr_read_b32 v24, a{a}
                v_accvgpr_read_b32 v25, a{a+1}
                v_cvt_pk_bf16_f32 v26, v24, v25
                v_lshlrev_b32 v24, 16, v26
                v_and_b32 v25, 0xffff0000, v26
                v_lshlrev_b32 v26, 16, v{r}
                v_and_b32 v27, 0xffff0000, v{r}
                v_add_f32 v24, v24, v26
                v_add_f32 v25, v25, v27
                v_cvt_pk_bf16_f32 v{r}, v24, v25
                v_dot2c_f32_bf16 v{18+tt}, s{sONE}, v{r}''')
    def xwave(a, b_):
        xsum32(p, a, 21); xsum32(p, b_, 21)
        p(f'''s_lshl_b32 s3, s{sW}, 8
        v_add_u32 v22, s3, v{AST}
        ds_write2_b32 v22, v{a}, v{b_} offset0:0 offset1:32
        s_waitcnt lgkmcnt(0)
        s_barrier''')
        for w_ in range(4): p(f'ds_read2_b32 {vr(24+2*w_,2)}, v{AST} offset0:{64*w_} offset1:{64*w_+32}')
        p(f'''v_add_f32 v24, v24, v26
        v_add_f32 v25, v25, v27
        v_add_f32 v28, v28, v30
        v_add_f32 v29, v29, v31
        v_add_f32 v{a}, v24, v28
        v_add_f32 v{b_}, v25, v29
        s_barrier''')
    xwave(18, 19)
    p('v_mul_f32 v18, 0x3b000000, v18\nv_mul_f32 v19, 0x3b000000, v19\nv_mov_b32 v20, 0\nv_mov_b32 v17, 0')
    for ct in range(4):
        for tt in range(2):
            for i in range(8):
                r = X1 + 16*ct + 8*tt + i; s_ = 20 if tt == 0 else 17
                p(f'''v_lshlrev_b32 v24, 16, v{r}
                v_and_b32 v25, 0xffff0000, v{r}
                v_sub_f32 v24, v24, v{18+tt}
                v_sub_f32 v25, v25, v{18+tt}
                v_fmac_f32 v{s_}, v24, v24
                v_fmac_f32 v{s_}, v25, v25''')
    xwave(20, 17)
    p('v_mul_f32 v20, 0x3b000000, v20\nv_mul_f32 v17, 0x3b000000, v17')
    lnfin(p, 18, 20); lnfin(p, 19, 17)
    p(f'''
    s_lshl_b32 s3, s{sW}, 14
    v_add_u32 v23, s3, v{A64}''')
    for ct in range(4):
        for tt in range(2):
            rs = 20 if tt == 0 else 17
            for c in range(2):
                for i in range(4):
                    r = X1 + 16*ct + 8*tt + 4*c + i
                    lnapply(p, T2+4*c+i, r, 18+tt, rs)
                p(f'ds_write_b128 v23, {vr(T2+4*c,4)} offset:{(2*ct + c)*2048 + tt*512}')
    p(f's_mov_b32 s51, 6\ns_waitcnt lgkmcnt(0)\ns_barrier')
    for i in range(128): p(f'v_accvgpr_write_b32 a{i}, 0')
    if T: stamp(p, 4)
    p('B_F:')
    p(f's_add_u32 s{sFN}, s{sF}, 1\ns_cmp_eq_u32 s{sFN}, 6\ns_cselect_b32 s{sFN}, 0, s{sFN}')
    o, st = process(p.lines, carry=st); out += o
    st = gemm(out, st, 'B_G3', 'narrow', 'w3', 'w4', sF, sF)
    p = Prog()
    p(f's_lshl_b32 s3, s{sW}, 13\nv_add_u32 v23, s3, v{AU}')
    for ct in range(2):
        for tt in range(2):
            A = ACC3 + 32*ct + 16*tt
            gelu(p, list(range(A, A + 16)), T2)
            for i in range(8): p(f'v_cvt_pk_bf16_f32 v{A+i}, v{A+2*i}, v{A+2*i+1}')
    p('s_barrier')
    for ct in range(2):
        for tt in range(2):
            A = ACC3 + 32*ct + 16*tt
            for c in range(2): p(f'ds_write_b128 v23, {vr(A+4*c,4)} offset:{(2*ct + c)*2048 + tt*512}')
    p(f's_waitcnt lgkmcnt(0)\ns_barrier')
    o, st = process(p.lines, carry=st); out += o
    st = gemm(out, st, 'B_G4', 'wide2', 'w4', 'w3', sF, sFN, zero_first=False)
    p = Prog(); p(f's_mov_b32 s{sF}, s{sFN}\ns_sub_u32 s51, s51, 1\ns_cmp_lg_u32 s51, 0\ns_cbranch_scc1 B_F')
    if T: stamp(p, 5)
    p(f's_mov_b32 s3, {f32(-LOG2E)}')
    for ct in range(4):
        for tt in range(2):
            p(f's_add_u32 s34, s{sG0}, {tt*32768 + ct*2048}')
            for c in range(2):
                Y = ACC3; E = ACC3 + 8; D = ACC3 + 16 + 4*c
                for i in range(4):
                    r = X1 + 16*ct + 8*tt + 4*c + i; a = (ct*2 + tt)*16 + 8*c + 2*i
                    p(f'''v_accvgpr_read_b32 v24, a{a}
                    v_accvgpr_read_b32 v25, a{a+1}
                    v_cvt_pk_bf16_f32 v26, v24, v25
                    v_lshlrev_b32 v24, 16, v26
                    v_and_b32 v25, 0xffff0000, v26
                    v_lshlrev_b32 v26, 16, v{r}
                    v_and_b32 v27, 0xffff0000, v{r}
                    v_add_f32 v24, v24, v26
                    v_add_f32 v25, v25, v27
                    v_cvt_pk_bf16_f32 v26, v24, v25
                    v_lshlrev_b32 v{Y+2*i}, 16, v26
                    v_and_b32 v{Y+2*i+1}, 0xffff0000, v26''')
                for i in range(8): p(f'v_mul_f32 v{E+i}, s3, v{Y+i}')
                for i in range(8): p(f'v_exp_f32 v{E+i}, v{E+i}')
                for i in range(8): p(f'v_add_f32 v{E+i}, 1.0, v{E+i}')
                for i in range(8): p(f'v_rcp_f32 v{E+i}, v{E+i}')
                for i in range(8): p(f'v_mul_f32 v{Y+i}, v{Y+i}, v{E+i}')
                for i in range(4): p(f'v_cvt_pk_bf16_f32 v{D+i}, v{Y+2*i}, v{Y+2*i+1}')
                p(f'buffer_store_dwordx4 {vr(D,4)}, v{AL}, {SRD}, s34 offen offset:{c*1024} sc1')
    p(f'''s_waitcnt vmcnt(0)
    s_barrier
    s_cmp_lg_u32 s{sW}, 0
    s_cbranch_scc1 L_DONE
    v_mov_b32 v20, 0
    v_mov_b32 v21, 1
    s_lshl_b32 s3, s{sB}, 2
    s_add_u32 s3, s3, {F_G}''')
    set_flag(p, 21, 's3', 20)
    p('s_branch L_DONE')
    o, st = process(p.lines, carry=st); out += o
```

```python
from common import *
def mf32(d, a, b, c): return f'v_mfma_f32_16x16x32_bf16 {vr(d,4)}, {a if isinstance(a,str) else vr(a,4)}, {vr(b,4)}, {c if isinstance(c,str) else vr(c,4)}'
def mf16(d, a, b, c): return f'v_mfma_f32_16x16x16_bf16 {vr(d,4)}, {vr(a,2)}, {vr(b,2)}, {vr(c,4)}'
def cv(d, a): return f'v_cvt_pk_bf16_f32 v{d}, v{a}, v{a+1}'

def s3(out, opt):
    from main import stamp
    T = opt.get('time')
    AL, ATR, AVM, ZERO, NINF, ONE1 = 1, 2, 3, 4, 5, 6
    T0 = 8
    ONES, K, Q, V, KM, VM = 16, 20, 52, 84, 116, 132
    S00, S01, S11, SM0, SM1 = 148, 152, 156, 160, 164
    PX0, PX1, PM0, PM1, L0, L1 = 168, 172, 176, 178, 180, 184
    O = 188
    sH, sS, sKV, sQ, sKM, sO, sFO, sFC, sNEED, sLD = 41, 42, 43, 44, 45, 46, 48, 49, 50, 51
    MASK = 52
    sSC, sL2E = 62, 63
    p = Prog()
    p(f'''R_S3:
    s_barrier
    s_and_b32 s3, s{sRANK}, 7
    s_lshl_b32 s3, s3, 2
    s_add_u32 s{sH}, s3, s{sW}
    s_sub_u32 s3, s{sXCC}, 2
    s_lshl_b32 s3, s3, 2
    s_lshr_b32 s34, s{sRANK}, 3
    s_add_u32 s{sS}, s3, s34
    s_lshl_b32 s{sLD}, s{sW}, 12
    s_mov_b32 s{sSC}, 0x3db504f3
    s_mov_b32 s{sL2E}, 0x3fb8aa3b
    v_and_b32 v8, 63, v0
    v_lshlrev_b32 v{AL}, 4, v8
    v_and_b32 v9, 15, v8               ; n
    v_lshrrev_b32 v10, 4, v8           ; g
    v_lshrrev_b32 v11, 1, v10
    v_lshlrev_b32 v11, 4, v11
    v_and_b32 v12, 1, v10
    v_lshl_add_u32 v11, v12, 2, v11
    v_lshrrev_b32 v12, 2, v9
    v_add_u32 v11, v11, v12
    v_and_b32 v12, 3, v9
    v_lshlrev_b32 v12, 3, v12
    v_lshl_add_u32 v11, v11, 5, v12
    v_add_u32 v{ATR}, s{sLD}, v11
    v_lshlrev_b32 v11, 5, v9
    v_lshl_add_u32 v11, v10, 3, v11
    v_add_u32 v{AVM}, s{sLD}, v11
    v_lshlrev_b32 v11, 2, v10
    v_cmp_le_u32 s[{MASK}:{MASK+1}], v11, v9
    v_add_u32 v11, 1, v11
    v_cmp_le_u32 s[{MASK+2}:{MASK+3}], v11, v9
    v_add_u32 v11, 1, v11
    v_cmp_le_u32 s[{MASK+4}:{MASK+5}], v11, v9
    v_add_u32 v11, 1, v11
    v_cmp_le_u32 s[{MASK+6}:{MASK+7}], v11, v9
    v_mov_b32 v{ZERO}, 0
    v_mov_b32 v{NINF}, 0xff800000
    v_mov_b32 v{ONE1}, 1
    v_mov_b32 v{PX0+2}, 0
    v_mov_b32 v{PX0+3}, 0
    v_mov_b32 v{PM0+1}, 0
    v_mov_b32 v{PM1+1}, 0
    v_lshlrev_b32 v11, 2, v9
    v_and_b32 v12, 7, v8
    v_lshlrev_b32 v12, 2, v12
    s_lshl_b32 s60, s{sH}, 6
    s_add_u32 s{sFC}, s60, {F_CH}
    s_add_u32 s60, s60, {F_KV}
    s_lshl_b32 s61, s{sH}, 5
    s_add_u32 s61, s61, {F_Q}
    ''')
    for d in range(8): p(f'v_mov_b32 v{VM+2*d+1}, 0')
    wait_flags(p, 'S3_kv', 11, 's60', 16, 13, sleep=4)
    wait_flags(p, 'S3_q', 12, 's61', 16, 13, sleep=4)
    if T: stamp(p, 5)
    o, st = process(p.lines); out += o
    b = Prog()
    b(f'''S3_L:
    s_lshl_b32 s3, s{sS}, 5
    s_add_u32 s3, s3, s{sH}
    s_lshl_b32 s{sKV}, s3, 14
    s_add_u32 s{sKV}, s{sKV}, {WS_KV}
    s_lshl_b32 s{sQ}, s3, 13
    s_add_u32 s{sQ}, s{sQ}, {WS_Q}
    s_lshl_b32 s{sKM}, s3, 12
    s_add_u32 s{sKM}, s{sKM}, {WS_KVM}
    s_lshl_b32 s{sFO}, s3, 2
    s_add_u32 s{sFO}, s{sFO}, {F_O}
    s_lshl_b32 s3, s{sS}, 6
    s_add_u32 s3, s3, s{sH}
    s_lshl_b32 s{sO}, s3, 12
    s_add_u32 s{sO}, s{sO}, {WS_O}
    s_add_u32 s{sNEED}, s{sS}, 1''')
    def ld8(dst, sb):
        for f in range(8):
            if f == 4: b(f's_add_u32 s{sb}, s{sb}, 4096')
            b(f'buffer_load_dwordx4 {vr(dst+4*f,4)}, v{AL}, {SRD}, s{sb} offen offset:{(f&3)*1024} sc1')
    ld8(K, sKV); ld8(Q, sQ); b(f's_add_u32 s{sKV}, s{sKV}, 4096'); ld8(V, sKV)
    for (d, kt, qt) in ((S00, 0, 0), (S01, 0, 1), (S11, 1, 1)):
        for ks in range(4): b(mf32(d, K + 16*kt + 4*ks, Q + 16*qt + 4*ks, '0' if ks == 0 else d))
    def scale(a_):
        rnd2(b, a_, a_ + 1)
        b(f'v_mul_f32 v{a_}, s{sSC}, v{a_}\nv_mul_f32 v{a_+1}, s{sSC}, v{a_+1}')
        rnd2(b, a_, a_ + 1)
    for a_ in range(S00, S00 + 12, 2): scale(a_)
    for d in (S00, S11):
        for r in range(4): b(f'v_cndmask_b32 v{d+r}, v{NINF}, v{d+r}, s[{MASK+2*r}:{MASK+2*r+1}]')
    b(f'''v_max3_f32 v{T0}, v{S00}, v{S00+1}, v{S00+2}
    v_max_f32 v{T0}, v{T0}, v{S00+3}
    v_max3_f32 v{T0+1}, v{S01}, v{S01+1}, v{S01+2}
    v_max3_f32 v{T0+1}, v{T0+1}, v{S01+3}, v{S11}
    v_max3_f32 v{T0+1}, v{T0+1}, v{S11+1}, v{S11+2}
    v_max_f32 v{T0+1}, v{T0+1}, v{S11+3}''')
    b(f'''s_mov_b32 s3, 0
    s_branch S3_ch_go
    S3_ch:
    v_readfirstlane_b32 s34, v{T0+2}
    s_sub_u32 s34, s{sNEED}, s34
    s_cmp_le_u32 s34, {opt.get('s3near', 2)}
    s_cbranch_scc1 S3_ch_near
    s_sleep {opt.get('s3far', 40)}
    S3_ch_near:
    s_sleep {opt.get('s3slp', 4)}
    S3_ch_go:
    buffer_load_dword v{T0+2}, v{ZERO}, {SRD}, s{sFC} offen sc1
    {tmo(3)}
    s_waitcnt vmcnt(0)
    v_cmp_gt_u32 vcc, s{sNEED}, v{T0+2}
    s_cbranch_vccnz S3_ch''')
    b(f's_mov_b32 m0, s{sLD}')
    for i in range(4): b(f'buffer_load_dwordx4 v{AL}, {SRD}, s{sKM} offen offset:{i*1024} sc1 lds')
    b('s_waitcnt vmcnt(0)')
    for ks in range(4):
        for h in range(2): b(f'ds_read_b64_tr_b16 {vr(KM + 4*ks + 2*h, 2)}, v{ATR} offset:{ks*1024 + h*256}')
    for d in range(8): b(f'ds_read_b32 v{VM+2*d}, v{AVM} offset:{d*512 + 4}')
    for qt, d in ((0, SM0), (1, SM1)):
        for ks in range(4): b(mf32(d, KM + 4*ks, Q + 16*qt + 4*ks, '0' if ks == 0 else d))
    scale(SM0); scale(SM1)
    for qt, d in ((0, SM0), (1, SM1)): b(f'v_max3_f32 v{T0+qt}, v{T0+qt}, v{d}, v{d+1}')
    def xlane(op):
        for sw in ('16', '32'):
            for qt in range(2): b(f'v_mov_b32 v{T0+2+qt}, v{T0+qt}')
            for qt in range(2): b(f'v_permlane{sw}_swap_b32 v{T0+qt}, v{T0+2+qt}')
            for qt in range(2): b(f'{op} v{T0+qt}, v{T0+qt}, v{T0+2+qt}')
    xlane('v_max_f32')
    RG = ([SM0, SM0+1] + list(range(S00, S00+4)), [SM1, SM1+1] + list(range(S01, S01+8)))
    for qt in range(2): b(f'v_mul_f32 v{T0+qt}, s{sL2E}, v{T0+qt}')
    for qt, regs in enumerate(RG):
        for r in regs: b(f'v_fma_f32 v{r}, v{r}, s{sL2E}, -v{T0+qt}')
        for r in regs: b(f'v_exp_f32 v{r}, v{r}')
    for qt, regs in enumerate(RG):
        b(f'v_add_f32 v{T0+qt}, v{regs[0]}, v{regs[1]}')
        for r in regs[2:]: b(f'v_add_f32 v{T0+qt}, v{T0+qt}, v{r}')
    xlane('v_add_f32')
    for qt in range(2): b(f'v_rcp_f32 v{T0+qt}, v{T0+qt}')
    for qt, regs in enumerate(RG):
        for r in regs: b(f'v_mul_f32 v{r}, v{r}, v{T0+qt}')
    b(cv(PM0, SM0)); b(cv(PM1, SM1)); b(cv(PX0, S00)); b(cv(PX0+1, S00+2))
    for i in range(4): b(cv(PX1+i, S01+2*i))
    for qt, (px, pm) in enumerate(((PX0, PM0), (PX1, PM1))):
        for d in range(8): b(mf32(O + 32*qt + 4*d, V + 4*d, px, '0'))
        for d in range(8): b(mf16(O + 32*qt + 4*d, VM + 2*d, pm, O + 32*qt + 4*d))
    for qt in range(2):
        if qt: b(f's_add_u32 s{sO}, s{sO}, {32*4096}')
        for kk in range(4):
            A = O + 32*qt + 8*kk
            for i in range(4): b(cv(A+i, A+2*i))
            b(f'buffer_store_dwordx4 {vr(A,4)}, v{AL}, {SRD}, s{sO} offen offset:{kk*1024} sc1')
    b('s_waitcnt vmcnt(0)')
    set_flag(b, ONE1, f's{sFO}', ZERO)
    b(f's_add_u32 s{sS}, s{sS}, 8\ns_cmp_lt_u32 s{sS}, 64\ns_cbranch_scc1 S3_L')
    o, st = loop(b.lines, st); out += ['.p2align 6'] + o + ['s_branch L_DONE']

def s4(out, opt):
    from main import stamp
    T = opt.get('time')
    AL, AF, AX, AG, ZERO, AR = 1, 2, 3, 4, 5, 6
    X, G, ACC, PR, B = 8, 10, 12, 24, 64
    sCS, sQT, sS, sO, sFO, sX, sGo, sFG, sLD, sPB = 41, 42, 43, 44, 45, 46, 48, 49, 66, 50
    SRDW, SRDX, SRDO = 's[68:71]', 's[52:55]', 's[56:59]'
    L_P = 131072
    p = Prog()
    p(f'''R_S4:
    s_barrier
    s_and_b32 s{sCS}, s{sRANK}, 15
    s_lshr_b32 s{sQT}, s{sRANK}, 4
    s_sub_u32 s{sS}, s{sXCC}, 4
    s_mov_b32 s68, s14
    s_mov_b32 s69, s15
    s_mov_b32 s70, 0x400000
    s_mov_b32 s71, 0x20000
    s_mov_b32 s52, s4
    s_mov_b32 s53, s5
    s_mov_b32 s54, 0x200000
    s_mov_b32 s55, 0x20000
    s_mov_b32 s56, s28
    s_mov_b32 s57, s29
    s_mov_b32 s58, 0x200000
    s_mov_b32 s59, 0x20000
    s_lshl_b32 s{sLD}, s{sW}, 15
    s_lshl_b32 s67, s{sW}, 20
    s_lshl_b32 s3, s{sCS}, 6
    s_add_u32 s67, s67, s3
    v_and_b32 v8, 63, v0
    v_lshlrev_b32 v{AL}, 4, v8
    v_lshrrev_b32 v9, 2, v8
    v_and_b32 v10, 3, v8
    v_lshlrev_b32 v10, 4, v10
    v_lshl_add_u32 v20, v9, 10, v10
    v_and_b32 v9, 15, v8                  ; n
    v_lshrrev_b32 v10, 4, v8              ; g
    v_lshrrev_b32 v11, 2, v9
    v_lshl_add_u32 v11, v10, 2, v11       ; row = 4g + r
    v_and_b32 v12, 3, v9
    v_lshlrev_b32 v12, 3, v12
    v_lshl_add_u32 v11, v11, 6, v12
    v_add_u32 v21, s{sLD}, v11
    ''')
    def dma(c):
        for i in range(16):
            p(f's_add_u32 m0, s{sLD}, {(c & 1)*16384 + i*1024}\ns_add_u32 s3, s67, {(c*256 + i*16)*1024}\nbuffer_load_dwordx4 v20, {SRDW}, s3 offen lds')
    dma(0); dma(1)
    p(f'''
    v_and_b32 v11, 7, v8
    v_lshlrev_b32 v{AF}, 2, v11
    v_mov_b32 v{ZERO}, 0
    s_and_b32 s3, s{sW}, 1
    s_lshl_b32 s34, s{sCS}, 1
    s_add_u32 s34, s34, s3
    s_lshl_b32 s35, s{sQT}, 4
    v_add_u32 v11, s35, v9
    v_lshlrev_b32 v12, 10, v11
    v_lshl_add_u32 v12, v10, 3, v12
    s_lshl_b32 s60, s34, 5
    v_add_u32 v{AX}, s60, v12
    v_and_b32 v12, 1, v10
    v_lshl_add_u32 v12, v12, 5, v11
    v_lshlrev_b32 v12, 4, v12
    v_lshrrev_b32 v13, 1, v10
    v_lshl_add_u32 v12, v13, 3, v12
    s_lshl_b32 s60, s34, 10
    v_add_u32 v{AG}, s60, v12
    s_lshl_b32 s3, s3, 10
    s_add_u32 s3, s3, {L_P}
    v_add_u32 v{AR}, s3, v{AL}
    s_lshl_b32 s3, s{sW}, 11
    s_add_u32 s3, s3, {L_P}
    v_add_u32 v7, s3, v{AL}
    ''')
    for c in range(4):
        p(f's_waitcnt vmcnt({16 if c < 3 else 0})')
        for ct in range(2):
            for jj in range(8):
                for h in range(2):
                    d = (ct*32 + 8*c + jj)*4 + 2*h
                    p(f'ds_read_b64_tr_b16 a[{d}:{d+1}], v21 offset:{(c & 1)*16384 + (32*jj + 16*h)*64 + ct*32}')
                if jj & 3 == 3: p('s_waitcnt lgkmcnt(0)')
        if c + 2 < 4: dma(c + 2)
    if T: stamp(p, 5)
    o, st = process(p.lines); out += o
    b = Prog()
    b(f'''S4_L:
    s_lshl_b32 s3, s{sS}, 1
    s_add_u32 s3, s3, s{sQT}
    s_lshl_b32 s3, s3, 2
    s_add_u32 s3, s3, s{sW}
    s_lshl_b32 s{sO}, s3, 15
    s_add_u32 s{sO}, s{sO}, {WS_O}
    s_lshl_b32 s{sFO}, s{sS}, 7
    s_lshl_b32 s3, s{sW}, 5
    s_add_u32 s{sFO}, s{sFO}, s3
    s_add_u32 s{sFO}, s{sFO}, {F_O}
    s_lshl_b32 s{sX}, s{sS}, 15
    s_add_u32 s{sGo}, s{sX}, {WS_G}
    s_cmp_ge_u32 s{sW}, 2
    s_cbranch_scc1 S4_nog
    s_lshr_b32 s{sFG}, s{sS}, 1
    s_lshl_b32 s{sFG}, s{sFG}, 2
    s_add_u32 s{sFG}, s{sFG}, {F_G}''')
    wait_flags(b, 'S4_g', ZERO, f's{sFG}', 1, 14, sleep=8)
    b(f'''buffer_load_dwordx2 {vr(X,2)}, v{AX}, {SRDX}, s{sX} offen
    buffer_load_dwordx2 {vr(G,2)}, v{AG}, {SRD}, s{sGo} offen sc1
    S4_nog:''')
    wait_flags(b, 'S4_o', AF, f's{sFO}', 1, 14, sleep=opt.get('s4slp', 4))
    for j in range(32):
        b(f'buffer_load_dwordx4 {vr(B+4*j,4)}, v{AL}, {SRD}, s{sO} offen offset:{(j&3)*1024} sc1')
        if j & 3 == 3: b(f's_add_u32 s{sO}, s{sO}, 4096')
    for j in range(32):
        for ct in range(2): b(mf32(ACC + 4*ct, ar((ct*32 + j)*4, 4), B + 4*j, '0' if j == 0 else ACC + 4*ct))
    b(f'''ds_write_b128 v7, {vr(ACC,4)}
    ds_write_b128 v7, {vr(ACC+4,4)} offset:1024
    s_waitcnt lgkmcnt(0)
    s_barrier
    s_cmp_ge_u32 s{sW}, 2
    s_cbranch_scc1 S4_next''')
    for w_ in range(4): b(f'ds_read_b128 {vr(PR+4*w_,4)}, v{AR} offset:{w_*2048}')
    for r in range(4):
        b(f'v_add_f32 v{PR+r}, v{PR+r}, v{PR+4+r}\nv_add_f32 v{PR+8+r}, v{PR+8+r}, v{PR+12+r}\nv_add_f32 v{PR+r}, v{PR+r}, v{PR+8+r}')
    for i in range(2):
        b(f'''v_cvt_pk_bf16_f32 v{PR+4}, v{PR+2*i}, v{PR+2*i+1}
        v_lshlrev_b32 v{PR+5}, 16, v{PR+4}
        v_and_b32 v{PR+6}, 0xffff0000, v{PR+4}
        v_lshlrev_b32 v{PR+7}, 16, v{G+i}
        v_and_b32 v{PR+8}, 0xffff0000, v{G+i}
        v_mul_f32 v{PR+5}, v{PR+5}, v{PR+7}
        v_mul_f32 v{PR+6}, v{PR+6}, v{PR+8}
        v_cvt_pk_bf16_f32 v{PR+4}, v{PR+5}, v{PR+6}
        v_lshlrev_b32 v{PR+5}, 16, v{PR+4}
        v_and_b32 v{PR+6}, 0xffff0000, v{PR+4}
        v_lshlrev_b32 v{PR+7}, 16, v{X+i}
        v_and_b32 v{PR+8}, 0xffff0000, v{X+i}
        v_add_f32 v{PR+5}, v{PR+5}, v{PR+7}
        v_add_f32 v{PR+6}, v{PR+6}, v{PR+8}
        v_cvt_pk_bf16_f32 v{PR+12+i}, v{PR+5}, v{PR+6}''')
    b(f'''buffer_store_dwordx2 {vr(PR+12,2)}, v{AX}, {SRDO}, s{sX} offen {opt.get('omod', '')}
    S4_next:
    v_xor_b32 v7, 0x2000, v7
    v_xor_b32 v{AR}, 0x2000, v{AR}
    s_add_u32 s{sS}, s{sS}, 4
    s_cmp_lt_u32 s{sS}, 64
    s_cbranch_scc1 S4_L''')
    o, st = loop(b.lines, st); out += ['.p2align 6'] + o + ['s_branch L_DONE']
```

```python
import sys
from common import *
import s01
NAME = 'recurrent_scan__memory_aug_recurrent_mem_tr__mixer_s_mlp__prompt_kernel'

def stamp(p, i):
    p(f's_memrealtime s[96:97]\ns_waitcnt lgkmcnt(0)\ns_mov_b32 s{80+i}, s96')

def build(opt={}):
    roles = opt.get('roles', 'CBWAO')
    T = opt.get('time')
    p = Prog()
    entry(p)
    if T:
        for i in range(8): p(f's_mov_b32 s{80+i}, 0')
        stamp(p, 0)
    xm = opt.get('xmap', (0, 4, 5, 6, 7, 2, 3, 1))
    if tuple(xm) != tuple(range(8)):
        p(f's_lshl_b32 s3, s{sXCC}, 2\ns_lshr_b32 s{sXCC}, {sum(x << (4*i) for i, x in enumerate(xm))}, s3\ns_and_b32 s{sXCC}, s{sXCC}, 7')
    register(p)
    p(f's_cmp_ge_u32 s{sRANK}, 32\ns_cbranch_scc1 L_EXIT')
    if T: stamp(p, 1)
    p(f's_cmp_eq_u32 s{sXCC}, 0\ns_cbranch_scc1 {"R_CHAIN" if "C" in roles else "L_DONE"}')
    p(f's_cmp_eq_u32 s{sXCC}, 1\ns_cbranch_scc1 {"R_BPATH" if "B" in roles else "L_DONE"}')
    lines = []
    if 'W' in roles:
        p(f'''s_sub_u32 s3, s{sXCC}, 2
        s_lshl_b32 s3, s3, 5
        s_add_u32 s3, s3, s{sRANK}
        s_mul_i32 s52, s3, 21846
        s_lshr_b32 s52, s52, 16
        s_mul_i32 s34, s52, 3
        s_cmp_lg_u32 s34, s3
        s_cbranch_scc1 L_noS0''')
        s01.s0(p, 52)
        p('L_noS0:\n@wait_reset')
        s01.s1_start(p)
        if T: stamp(p, 2)
        s01.s1_weights(p)
        if T: stamp(p, 3)
        o, st = process(p.lines); lines += o
        st = s01.s1_main(lines, st)
        p = Prog()
        if T: stamp(p, 4)
    if 'A' in roles or 'O' in roles:
        import s34
        p(f's_cmp_ge_u32 s{sXCC}, 4\ns_cbranch_scc1 {"R_S4" if "O" in roles else "L_DONE"}')
        if 'A' not in roles: p('s_branch L_DONE')
        o, st = process(p.lines); lines += o
        if 'A' in roles: s34.s3(lines, opt)
        if 'O' in roles: s34.s4(lines, opt)
    else:
        p('s_branch L_DONE')
        o, st = process(p.lines); lines += o
    if 'B' in roles:
        import s2
        s2.bpath(lines, opt)
    if 'C' in roles:
        import chain
        chain.role(lines, opt)
    q = Prog()
    q('L_ABORT:')
    q('L_DONE:')
    if T:
        stamp(q, 7)
        q(f'''s_lshl_b32 s3, s{sXCC}, 5
        s_add_u32 s3, s3, s{sRANK}
        s_lshl_b32 s3, s3, 2
        s_add_u32 s3, s3, s{sW}
        s_lshl_b32 s3, s3, 5
        s_add_u32 s3, s3, {WS_DBG}
        v_mov_b32 v1, 0''')
        for i in range(8): q(f'v_mov_b32 v{4+i}, s{80+i}')
        q(f'''s_mov_b64 exec, 1
        buffer_store_dwordx4 v[4:7], v1, {SRD}, s3 offen
        buffer_store_dwordx4 v[8:11], v1, {SRD}, s3 offen offset:16''')
    if opt.get('hdbg'):
        q(f'''s_memrealtime s[96:97]
        s_waitcnt lgkmcnt(0)
        s_mov_b64 exec, 1
        s_not_b32 s3, s80
        v_mov_b32 v1, 48
        v_mov_b32 v2, s3
        global_atomic_umax v1, v2, s[30:31]
        v_mov_b32 v1, 52
        v_mov_b32 v2, s96
        global_atomic_umax v1, v2, s[30:31]
        s_lshl_b32 s3, s{sXCC}, 7
        s_lshl_b32 s34, s{sRANK}, 2
        s_add_u32 s3, s3, s34
        s_add_u32 s3, s3, s{sW}
        s_cmp_lg_u32 s3, 0
        s_cbranch_scc1 L_hd1
        v_mov_b32 v4, s80
        v_mov_b32 v5, s83
        v_mov_b32 v6, s84
        v_mov_b32 v7, s96
        v_mov_b32 v1, 8
        global_store_dwordx2 v1, v[4:5], s[30:31]
        global_store_dwordx2 v1, v[6:7], s[30:31] offset:8
        v_mov_b32 v4, s81
        v_mov_b32 v5, s82
        global_store_dwordx2 v1, v[4:5], s[30:31] offset:16
        L_hd1:
        s_cmp_lg_u32 s3, 128
        s_cbranch_scc1 L_hd2
        v_mov_b32 v1, 40
        v_mov_b32 v4, s96
        global_store_dword v1, v4, s[30:31]
        L_hd2:
        s_cmp_lg_u32 s3, 256
        s_cbranch_scc1 L_hd3
        v_mov_b32 v1, 56
        v_mov_b32 v4, s83
        v_mov_b32 v5, s84
        global_store_dwordx2 v1, v[4:5], s[30:31]
        L_hd3:''')
    q('L_EXIT:\ns_endpgm')
    o, _ = process(q.lines); lines += o
    return header(['grid=(256,1,1) block=(256,1,1) lds=163840'], f'; opt {opt}\n' if opt else '') + kernel_open(NAME) + fmt(lines) + '.section .rodata,"a"\n' + descriptor(NAME)

if __name__ == '__main__':
    o = eval(sys.argv[2]) if len(sys.argv) > 2 else {}
    open(sys.argv[1], 'w').write(build(o))
```

```python
from asmlib import *
from layout import *
import common

MEMA, KW, QT, AQK, ACCV, S = 0, 32, 64, 80, 96, 104
IDX, AL0, AL1, AL2, ATR, AQKW, AOW, AP = 116, 117, 118, 119, 120, 121, 122, 123
T0, T1, T2, T3 = 124, 125, 126, 127
WV0, WO0 = 128, 192
SRD = 's[36:39]'
sH, sSTEP, sMEM, sMEM2, sPUB, sIN, sIN2, sW = 40, 41, 42, 43, 44, 45, 46, 47
sPART = 48
sK, sK2, sV, sV2, sPF = 56, 57, 58, 59, 74
sODD = 62
sVAL = 86
sLIM = 88
sC = 64
sRETRY = 65
sRB = 61
sKVM, sFCH, sFKV, sNEED = 60, 89, 90, 91
sSLOT, sDLT, sC2, sKB = 92, 93, 73, 76
SRDW = 's[68:71]'

def vr(a, n): return f'v[{a}:{a+n-1}]' if n > 1 else f'v{a}'
def ar(a, n): return f'a[{a}:{a+n-1}]'
def wq(u, t): return ar((u*8+t)*8, 8)
def wk(u, t): return ar(128 + (u*8+t)*8, 8)
def wv0(t): return vr(WV0 + 8*t, 8)
def wo0(t): return vr(WO0 + 8*t, 8)
def smf(acc, a, b): return f'v_smfmac_f32_16x16x64_bf16 {vr(acc,4)}, {vr(a,4)}, {b}, v{IDX}'
def mf32(d, a, b, c): return f'v_mfma_f32_16x16x32_bf16 {vr(d,4)}, {vr(a,4)}, {vr(b,4)}, {c if isinstance(c,str) else vr(c,4)}'
def mf16(d, a, b, c): return f'v_mfma_f32_16x16x16_bf16 {vr(d,4)}, {vr(a,2)}, {vr(b,2)}, {c if isinstance(c,str) else vr(c,4)}'
def lin(off):
    r = (AL0, AL1, AL2)[off >> 16]
    return r, off & 0xffff
def rd128(dst, off):
    r, o = lin(off); return f'ds_read_b128 {vr(dst,4)}, v{r} offset:{o}'

def startup(p, dbg_ctr_off=64, opt_pf=1, early=True):
    p(f'''
    v_and_b32 v65, 63, v0
    v_lshrrev_b32 v66, 6, v0
    v_readfirstlane_b32 s{sW}, v66
    v_and_b32 v67, 15, v65            ; n
    v_lshrrev_b32 v68, 4, v65         ; g
    v_lshlrev_b32 v{AL0}, 4, v65
    v_add_u32 v{AL1}, 0x10000, v{AL0}
    v_add_u32 v{AL2}, 0x20000, v{AL0}
    v_lshlrev_b32 v{AP}, 2, v65       ; lane*4
    v_lshlrev_b32 v69, 4, v67
    v_lshl_add_u32 v78, v68, 2, v69
    v_lshrrev_b32 v69, 2, v67
    v_lshlrev_b32 v69, 6, v69
    v_and_b32 v70, 3, v67
    v_lshl_add_u32 v69, v70, 2, v69
    v_lshl_add_u32 v{T3}, v68, 4, v69
    s_mov_b32 s36, s32
    s_mov_b32 s37, s33
    s_mov_b32 s38, {WS_SIZE}
    s_mov_b32 s39, 0x20000
    v_lshrrev_b32 v69, 1, v67
    v_lshlrev_b32 v69, 10, v69
    v_and_b32 v70, 1, v67
    v_lshlrev_b32 v70, 2, v70
    v_lshl_add_u32 v70, v68, 3, v70
    v_add_u32 v69, v69, v70
    s_lshl_b32 s3, s{sH}, 5
    v_add_u32 v69, s3, v69
    global_load_dword v76, v69, s[6:7]
    v_mov_b32 v72, -1
    v_mov_b32 v73, -1
    v_mov_b32 v74, -1
    v_mov_b32 v75, -1
    s_mul_i32 s3, s{sH}, {INBOX_STRIDE}
    s_add_u32 s{sIN}, s3, {WS_INBOX}
    s_lshl_b32 s3, s{sW}, 11
    s_add_u32 s3, s3, s{sIN}
    s_add_u32 s34, s3, {INBOX_SLOT}
    buffer_store_dwordx4 v[72:75], v{AL0}, {SRD}, s3 offen
    buffer_store_dwordx4 v[72:75], v{AL0}, {SRD}, s3 offen offset:1024
    buffer_store_dwordx4 v[72:75], v{AL0}, {SRD}, s34 offen
    buffer_store_dwordx4 v[72:75], v{AL0}, {SRD}, s34 offen offset:1024
    s_add_u32 s34, s34, {INBOX_SLOT}
    buffer_store_dwordx4 v[72:75], v{AL0}, {SRD}, s34 offen
    buffer_store_dwordx4 v[72:75], v{AL0}, {SRD}, s34 offen offset:1024
    s_lshl_b32 s3, s{sH}, 8
    s_add_u32 s{sPUB}, s3, {WS_MEMS}
    s_add_u32 s3, s{sPUB}, 8192
    buffer_store_dword v72, v{AP}, {SRD}, s3 offen
    v_lshlrev_b32 v69, 1, v68
    v_xor_b32 v69, v69, v67                  ; n ^ (g<<1)
    v_lshlrev_b32 v69, 4, v69
    v_lshl_add_u32 v80, v68, 13, v69
    v_xor_b32 v81, 0x80, v80              ; off1
    s_lshr_b32 s3, s{sW}, 1
    s_lshl_b32 s3, s3, 7
    v_xor_b32 v82, s3, v{AL0}
    v_xor_b32 v83, 0x20, v82
    v_xor_b32 v84, 0x40, v82
    v_xor_b32 v85, 0x60, v82
    v_lshrrev_b32 v69, 2, v67               ; r
    v_and_b32 v70, 3, v67                   ; c
    v_and_b32 v71, 1, v68
    v_lshl_add_u32 v71, v71, 2, v69          ; f = r | (g&1)<<2
    v_lshlrev_b32 v71, 5, v71
    v_lshl_add_u32 v71, v70, 3, v71          ; f*32 + 8c
    v_lshl_add_u32 v69, v68, 3, v69          ; row = 8g + r
    v_lshl_add_u32 v86, v69, 8, v71
    s_lshl_b32 s3, s{sW}, 6
    v_xor_b32 v86, s3, v86                ; pair 2w
    v_xor_b32 v87, 0x20, v86              ; pair 2w+1
    v_add_u32 v86, {L_W}, v86
    v_add_u32 v87, {L_W}, v87
    v_lshrrev_b32 v69, 2, v67
    v_and_b32 v71, 1, v69                   ; r&1
    v_lshrrev_b32 v69, 1, v69
    v_lshl_add_u32 v69, v69, 2, v71
    v_lshl_add_u32 v69, v68, 3, v69         ; row
    v_and_b32 v90, 1, v68
    v_lshl_add_u32 v71, v90, 2, v71         ; f = (r&1) | (g&1)<<2
    v_lshlrev_b32 v71, 5, v71
    v_lshl_add_u32 v71, v70, 3, v71
    v_lshl_add_u32 v88, v69, 10, v71
    s_lshl_b32 s3, s{sW}, 5
    v_xor_b32 v88, s3, v88
    v_xor_b32 v89, 0x80, v88
    v_xor_b32 v90, 0x40, v88
    v_xor_b32 v91, 0xc0, v88
    v_add_u32 v88, {L_W}, v88
    v_add_u32 v89, {L_W}, v89
    v_add_u32 v90, {L_W}, v90
    v_add_u32 v91, {L_W}, v91
    s_lshl_b32 s66, s{sW}, 12
    s_add_u32 s66, s66, {L_W}
    s_mov_b32 s70, 0x400000
    s_mov_b32 s71, 0x20000
    ''')
    def dma(c):
        mat = c >> 3; t = c & 7
        if t == 0:
            src = (14, 8, 10, 12)[mat]
            p(f's_mov_b32 s68, s{src}\ns_mov_b32 s69, s{src+1}')
            if mat == 0:
                p(f's_lshl_b32 s67, s{sH}, 17\ns_lshl_b32 s3, s{sW}, 12\ns_add_u32 s67, s67, s3')
            else:
                p(f's_lshl_b32 s67, s{sH}, 8\ns_lshl_b32 s3, s{sW}, 17\ns_add_u32 s67, s67, s3')
        for i in range(4):
            p(f's_add_u32 m0, s66, {t*16384 + i*1024}')
            if mat == 0:
                p(f's_add_u32 s3, s67, {(t^4)*16384 + i*1024}')
                p(f'buffer_load_dwordx4 v{82+i}, {SRDW}, s3 offen lds')
            else:
                p(f's_add_u32 s3, s67, {t*64*8192 + i*4*8192}')
                p(f'buffer_load_dwordx4 v{80+(i>>1)}, {SRDW}, s3 offen lds')
    for c in range(8): dma(c)
    p(f'''
    v_and_b32 v69, 1, v67
    v_mov_b32 v70, 0x4444
    v_mov_b32 v71, 0xeeee
    v_cmp_eq_u32 s[{sODD}:{sODD+1}], 1, v69
    v_cndmask_b32 v{IDX}, v70, v71, s[{sODD}:{sODD+1}]
    ; aTR: (d0 + r)*32 + 8c, d0 = 16*(g>>1) + 4*(g&1)
    v_lshrrev_b32 v69, 1, v68
    v_lshlrev_b32 v69, 4, v69
    v_and_b32 v70, 1, v68
    v_lshl_add_u32 v69, v70, 2, v69
    v_lshrrev_b32 v70, 2, v67
    v_add_u32 v69, v69, v70
    v_and_b32 v70, 3, v67
    v_lshlrev_b32 v70, 3, v70
    v_lshl_add_u32 v{ATR}, v69, 5, v70
    ; aQKW: n*32 + 8g
    v_lshlrev_b32 v69, 5, v67
    v_lshl_add_u32 v{AQKW}, v68, 3, v69
    v_lshrrev_b32 v69, 2, v67
    v_and_b32 v70, 1, v67
    v_lshl_add_u32 v69, v69, 1, v70
    v_lshlrev_b32 v69, 5, v69
    v_and_b32 v70, 1, v68
    v_lshl_add_u32 v69, v70, 4, v69
    v_lshrrev_b32 v70, 1, v68
    v_lshl_add_u32 v69, v70, 3, v69         ; m*32 + (g&1)*16 + (g>>1)*8
    v_add_u32 v70, {L_O}, v69
    v_add_u32 v71, {L_DUM}, v69
    v_and_b32 v69, 2, v67
    v_cmp_eq_u32 vcc, 0, v69
    s_lshl_b32 s3, s{sW}, 9               ; (w>>1)*1024 + (w&1)*512
    v_add_u32 v70, s3, v70
    v_cndmask_b32 v{AOW}, v71, v70, vcc
    v_lshrrev_b32 v69, 3, v67
    v_xor_b32 v69, v69, v67
    v_and_b32 v69, 7, v69                   ; e
    v_and_b32 v70, 3, v69
    v_cmp_eq_u32 vcc, 3, v70
    v_mov_b32 v71, 0x3f80
    v_mov_b32 v77, 0x3f800000
    v_cndmask_b32 v71, v71, v77, vcc
    v_cndmask_b32 v70, v70, 0, vcc
    v_or_b32 v70, 12, v70
    v_mul_u32_u24 v70, 0x1111, v70
    ds_write_b32 v{AP}, v70 offset:{L_DUM + 1024}
    v_cmp_gt_u32 vcc, 4, v69
    v_cndmask_b32 v92, 0, v71, vcc
    v_cndmask_b32 v93, v71, 0, vcc
    v_mov_b32 v94, v92
    v_mov_b32 v95, v93
    ds_write_b128 v{AL0}, v[92:95] offset:{L_SEL}
    s_waitcnt lgkmcnt(0)
    v_mov_b32 v92, 0x3f803f80
    v_mov_b32 v93, 0x3f803f80
    v_mov_b32 v94, 0x3f803f80
    v_mov_b32 v95, 0x3f803f80
    ds_write_b128 v{AL0}, v[92:95] offset:{L_ONE}
    s_mov_b32 s{sLIM}, 0x53800000          ; 2^40
    v_mov_b32 v{T1}, 0
    s_mov_b32 s{sVAL}, 0x33333333
    s_mov_b32 s{sVAL+1}, 0x33333333
    s_mov_b32 s{sODD}, 0
    s_mov_b32 s{sODD+1}, -1
    s_mov_b32 s{sC}, 0x3e0293ee           ; log2(e)/sqrt(128)
    ''')
    issued = 7
    def allowed(c): return 4 * (issued - c)
    c = 0
    while c < 32:
        mat = c >> 3; t = c & 7
        if mat == 0:
            first = t == 0
            p(f's_waitcnt vmcnt({allowed(c+3)})')
            if first:
                p(f'''@wait_reset
                v_min_u32 v76, -2, v76
                buffer_store_dword v76, v78, {SRD}, s{sPUB} offen
                v_mov_b32 v79, v0''')
            p('s_barrier')
            for tt in range(8):
                for q, o in enumerate((0, 2048, 32768, 34816)):
                    d = (0 if first else WO0) + tt*8 + 2*q
                    p(f'ds_read_b64_tr_b16 v[{d}:{d+1}], v{88 + (tt&1) + 2*(q&1)} offset:{o + (tt>>1)*256}')
                if tt & 1: p('s_waitcnt lgkmcnt(0)')
            p('s_barrier')
            if first: p('v_add_u32 v88, 0x10000, v88\nv_add_u32 v89, 0x10000, v89\nv_add_u32 v90, 0x10000, v90\nv_add_u32 v91, 0x10000, v91')
            for k in range(4): dma(c + 8 + k)
            issued += 4; c += 4
            continue
        p(f's_waitcnt vmcnt({allowed(c) + (3 if early and c >= 28 else 0)})')
        p('s_barrier')
        if early and c == 23:
            p(f'''v_mov_b32 v69, {D_CHINIT}
            v_and_b32 v70, 63, v{AP}
            s_lshl_b32 s3, s{sH}, 6
            s_add_u32 s3, s3, {F_KV}
            @junk global_load_dword v66, v69, s[30:31] sc1
            @junk global_load_dword v67, v69, s[30:31] offset:{D_INIT - D_CHINIT} sc1
            @junk buffer_load_dword v68, v70, {SRD}, s3 offen sc1''')
        if early and c == 27:
            p(f'''v_lshlrev_b32 v69, 3, v{AL0}
            s_mul_i32 s3, s{sW}, {INBOX_SLOT}
            s_add_u32 s3, s3, s{sIN}
            s_cmp_eq_u32 s{sW}, 3
            s_cselect_b32 s3, {WS_MEMS}, s3
            @junk buffer_load_dword v65, v69, {SRD}, s3 offen sc1
            s_mov_b32 s3, {WS_MEMS + 8192}
            @junk buffer_load_dword v65, v69, {SRD}, s3 offen sc1
            s_getpc_b64 s[34:35]
            C_pc:
            s_add_u32 s34, s34, C_code - C_pc
            s_addc_u32 s35, s35, 0
            s_lshl_b32 s3, s{sW}, 13
            v_add_u32 v69, s3, v69
            v_min_u32 v69, L_DONE - C_code - 4, v69
            @junk global_load_dword v65, v69, s[34:35]''')
        if early and c == 30:
            p(f'''s_mov_b32 s77, 0
            v_cmp_gt_u32 vcc, 32, v66
            s_cbranch_vccnz C_late
            v_cmp_gt_u32 vcc, 1, v67
            s_cbranch_vccnz C_late
            v_cmp_gt_u32 vcc, 1, v68
            s_cbranch_vccnz C_late
            s_mov_b32 s77, 1
            s_lshl_b32 s3, s{sH}, 14
            s_lshl_b32 s34, s{sW}, 11
            s_add_u32 s35, s3, {WS_KV + 8192}
            s_add_u32 s3, s3, s34
            s_add_u32 s3, s3, {WS_KV}
            s_add_u32 m0, s34, {L_K}
            v_lshlrev_b32 v69, 3, v{AL0}
            buffer_load_dwordx4 v{AL0}, {SRD}, s3 offen sc1 lds
            buffer_load_dwordx4 v{AL0}, {SRD}, s3 offen offset:1024 sc1 lds
            @junk buffer_load_dword v65, v69, {SRD}, s35 offen sc1
            C_late:''')
        if c == 12:
            p(f'''v_mov_b32 v69, {dbg_ctr_off}
            v_mov_b32 v70, 1
            v_cmp_eq_u32 vcc, 0, v79
            s_and_saveexec_b64 s[34:35], vcc
            s_cbranch_execz L_noinc
            global_atomic_add v69, v70, s[30:31]
            L_noinc:
            s_mov_b64 exec, s[34:35]''')
        for u in range(2):
            for q, o in enumerate((0, 1024, 8192, 9216)):
                if mat < 3:
                    d = (mat-1)*128 + (u*8+t)*8 + 2*q
                    p(f'ds_read_b64_tr_b16 a[{d}:{d+1}], v{86+u} offset:{o + (t&3)*16384}')
                else:
                    d = (WV0 + 8*t if u == 0 else 96) + 2*q
                    p(f'ds_read_b64_tr_b16 v[{d}:{d+1}], v{86+u} offset:{o + (t&3)*16384}')
        p('s_waitcnt lgkmcnt(0)\ns_barrier')
        if t == 3: p('v_add_u32 v86, 0x10000, v86\nv_add_u32 v87, 0x10000, v87')
        if t == 7: p('v_subrev_u32 v86, 0x10000, v86\nv_subrev_u32 v87, 0x10000, v87')
        if mat == 3:
            if t == 0: p(f'v_add_u32 v90, s66, v{AL0}')
            if t == 4: p('v_add_u32 v90, 0x10000, v90')
            for k, r in enumerate((96, 100, 8*t, 8*t+4)):
                p(f'ds_write_b128 v90, v[{r}:{r+3}] offset:{(t&3)*16384 + k*1024}')
            p('s_waitcnt lgkmcnt(0)')
        if c + 8 < 32:
            dma(c + 8); issued += 1
        c += 1
    p(f'''
    s_mov_b32 s{sSTEP}, 0
    s_mov_b32 s{sMEM}, {WS_MEMS}
    s_mov_b32 s{sMEM2}, {WS_MEMS + 4096}
    s_add_u32 s{sPUB}, s{sPUB}, 8192
    s_mov_b32 s{sSLOT}, 0
    s_mov_b32 s{sC2}, {INBOX_SLOT}
    s_lshl_b32 s3, s{sW}, 11
    s_add_u32 s3, s3, s{sIN}
    s_mov_b32 s{sKB}, {L_K}
    s_add_u32 s{sV2}, s3, {2*INBOX_SLOT}
    s_add_u32 s{sIN2}, s{sIN}, 4096
    s_mul_i32 s3, s{sW}, {INBOX_STRIDE}
    s_lshl_b32 s34, s{sH}, 8
    s_add_u32 s3, s3, s34
    s_add_u32 s{sPART}, s3, {WS_INBOX}
    ''')
    for t in range(1, 8): p(f's_add_u32 s{sPART+t}, s{sPART}, {4*t*INBOX_STRIDE}')
    p(f'''
    s_lshl_b32 s3, s{sH}, 14
    s_add_u32 s{sK}, s3, {WS_KV}
    s_add_u32 s{sK2}, s{sK}, 4096
    s_lshl_b32 s34, s{sW}, 11
    s_add_u32 s{sV}, s{sK}, 8192
    s_add_u32 s{sPF}, s{sK}, {opt_pf*32*16384}
    s_add_u32 s{sPF+1}, s{sV}, {32*16384}
    s_cmp_eq_u32 s{sW}, 2
    s_cselect_b32 s{sPF}, s{sPF+1}, s{sPF}
    s_add_u32 s{sV}, s{sV}, s34
    s_lshl_b32 s3, s{sH}, 12
    s_add_u32 s{sKVM}, s3, {WS_KVM - 32*4096}
    s_lshl_b32 s3, s{sH}, 6
    s_add_u32 s{sFCH}, s3, {F_CH}
    s_add_u32 s{sFKV}, s3, {F_KV}
    s_mov_b32 s{sRETRY}, 0
    s_mov_b32 s{sRB}, 0
    ''')
    for r in range(0, 24, 2): p(f'v_mov_b64 {vr(AQK+r,2)}, 0')

def kdma(p):
    L = []
    for half, so in ((0, sK), (1, sK2)):
        L.append(f's_mov_b32 m0, {L_K + half*4096}')
        for i in range(4): L.append(f'buffer_load_dwordx4 v{AL0}, {SRD}, s{so} offen offset:{i*1024} sc1 lds')
    return L
def vdma(p):
    L = []
    for half, so in ((0, sV), (1, sV2)):
        L.append(f's_mov_b32 m0, {L_V + half*4096}')
        for i in range(4): L.append(f'buffer_load_dwordx4 v{AL0}, {SRD}, s{so} offen offset:{i*1024} sc1 lds')
    return L

def step(w, nsteps, opt, var=0):
    p = Prog(); slow = Prog()
    tag = f'{w}' if w else f'0v{var}'
    Q0, Q1, K0, K1 = AQK, AQK+4, AQK+8, AQK+12
    V0, V1 = ACCV, ACCV+4
    SX0, SX1, SM = S, S+4, S+8
    def wl(u, t): return L_W + t*16384 + w*4096 + u*2048
    def wrd(slot, u, t): return rd128(KW + 8*slot, wl(u, t)) + '\n' + rd128(KW + 8*slot + 4, wl(u, t) + 1024)
    nst = [0]; pastS7 = [False]
    def stamp():
        i = nst[0]; nst[0] += 1
        if opt.get('trace'):
            if opt.get('w0st') and i in (1, 2, 3) and not pastS7[0]: return
            if i in opt['trace']:
                p(f's_cmp_eq_u32 s{sSTEP}, {opt.get("at", 41)}\ns_cbranch_scc0 TR{tag}_{i}\ns_memrealtime s[96:97]\ns_waitcnt lgkmcnt(0)\ns_mov_b32 s{4+i}, s96\nTR{tag}_{i}:')
            return
        if i not in opt.get('stamps', ()): return
        if opt.get('w0st') and i in (1, 2, 3) and not pastS7[0]: return
        p(f's_memtime s[96:97]\ns_waitcnt lgkmcnt(0)\ns_sub_u32 s99, s96, s98\ns_mov_b32 s98, s96\ns_add_u32 s{4+i}, s{4+i}, s99')
    def epi(acc): return [f'v_add_f32 v{acc}, v{acc}, v{acc+1}', f'v_add_f32 v{acc+2}, v{acc+2}, v{acc+3}', f'v_cvt_pk_bf16_f32 v{acc}, v{acc}, v{acc+2}']
    def epq(acc):
        e = epi(acc)
        return e[:2] + [f'v_mul_f32 v{acc}, s{sC}, v{acc}', f'v_mul_f32 v{acc+2}, s{sC}, v{acc+2}'] + e[2:]
    def qkw(base, u, acc): return f'ds_write_b32 v{AQKW}, v{acc} offset:{base + (32*w + 16*u)*32}'
    def trd(dst, base, ks, h): return f'ds_read_b64_tr_b16 {vr(dst + 4*ks + 2*h, 2)}, v{ATR} offset:{base + ks*1024 + h*256}'
    def mloc(t): return L_Q + t*1024 if t < 4 else L_V + (t-4)*1024
    def gld(dst, t): return f'buffer_load_dwordx4 {vr(dst,4)}, v{AL0}, {SRD}, s{sMEM if t < 4 else sMEM2} offen offset:{(t&3)*1024} sc1'
    def mwr(src, t): return f'ds_write_b128 v{AL0}, {vr(src,4)} offset:{mloc(t)}'
    def mx(first, m, k):
        if first: return f'v_max3_u32 v{T0}, v{m}, v{m+1}, v{m+2}' if k == 0 else f'v_max_u32 v{T0}, v{T0}, v{m+3}'
        return f'v_max3_u32 v{T0}, v{T0}, v{m+2*k}, v{m+2*k+1}'
    CMP = f'v_cmp_eq_u32 vcc, -1, v{T0}'
    TMO = lambda r: f's_add_u32 s{r}, s{r}, 1\ns_cmp_gt_u32 s{r}, {LIMIT}\ns_cbranch_scc1 L_ABORT'
    own = (w + 3) & 3
    fb = (own + 4,)
    LB, NEG = QT + 4, QT + 12
    D = opt.get('D', 2)
    def v1s(t): return smf(V1, MEMA + 4*t, vr(KW + 8*(t & 3), 8))
    def v0s(t): return smf(V0, MEMA + 4*t, wv0(t))
    def qs(u, t): return smf(Q0 + 4*u, MEMA + 4*t, wq(u, t))
    def ks_(u, t): return smf(K0 + 4*u, MEMA + 4*t, wk(u, t))
    full = not opt.get('proto')
    rb2 = opt.get('rb2') and w == 0
    p(f'HA{tag}:')
    sp = opt.get('sp', 0)
    for i in range(D - 1):
        p(gld(S + 4*i, own))
        p(TMO(sRETRY) if i == 0 else 's_nop 2')
        if rb2 and i == 0:
            p(f's_waitcnt vmcnt({4 if opt.get("kpos") in ("mid", "end") else 2})')
            for k in range(4): p(wrd(k, 0, k))
            continue
        for _ in range(sp): p('s_nop 7')
    p(f'HL{tag}:')
    for i in range(D):
        m = S + 4*i
        p('@nowait ' + gld(S + 4*((i + D - 1) % D), own))
        p(f's_waitcnt vmcnt({D-1})')
        p(mwr(m, own)); p(mx(1, m, 0)); p(mx(1, m, 1)); p(CMP)
        p(f'v_mov_b64 {vr(MEMA + 4*own, 2)}, {vr(m, 2)}\nv_mov_b64 {vr(MEMA + 4*own + 2, 2)}, {vr(m + 2, 2)}')
        p(f's_cbranch_vccz HK{tag}')
    p(TMO(sRETRY)); p(f's_branch HL{tag}')
    p(f'HK{tag}:')
    p(f'@vm {D-1}')
    p(gld(LB, own + 4))
    if w == 0: p(f'buffer_store_dword v{NEG}, v{AP}, {SRD}, s{sPUB} offen')
    if opt.get('trace'):
        nst[0] = 9; stamp(); nst[0] = 0
    rf = lambda t: wrd(t & 3, 0, t).split('\n')
    p(qs(0, own)); p(v1s(own)); p(rf(own + 4)[0]); p(qs(1, own)); p(rf(own + 4)[1]); p(ks_(0, own)); p(ks_(1, own))
    p('s_waitcnt lgkmcnt(2)')
    p('s_barrier')
    stamp()
    oth = [t for t in range(4) if t != own]
    for t in oth: p(rd128(MEMA + 4*t, mloc(t)))
    if opt.get('log') and w == 1:
        p(f's_{"memrealtime" if opt["log"] == 2 else "memtime"} s[96:97]\ns_waitcnt lgkmcnt(0)\ns_mov_b32 m0, s{sSTEP}\nv_writelane_b32 v{T3}, s96, m0')
    p(v0s(own))
    vm = []
    pub = f'buffer_store_dwordx4 {vr(QT,4)}, v{AL0}, {SRD}, s{sKVM} offen offset:{w*1024} sc1' if full else None
    if w == 3 and full:
        p(f's_sub_u32 s3, s{sSTEP}, 1\ns_max_i32 s3, s3, 0\nv_mov_b32 v{T2}, s3')
        vm.append((0, f's_mov_b64 exec, 1\nbuffer_store_dword v{T2}, v{AL0}, {SRD}, s{sFCH} offen sc1\ns_mov_b64 exec, -1'))
        vm.append((2, f'v_and_b32 v{T2}, 63, v{AP}\n@junk buffer_load_dword v{T3}, v{T2}, {SRD}, s{sFKV} offen sc1'))
    if w in (1, 2):
        p(f'v_lshlrev_b32 v{T2}, 3, v{AL0}')
        vm.append((opt.get('gg', (4, 8))[w-1], f'@junk buffer_load_dword v{T3}, v{T2}, {SRD}, s{sPF} offen sc1'))
    seq = []
    xa = opt.get('xa', 2)
    for t in oth: seq += [qs(0, t), v1s(t), qs(1, t), ks_(0, t), ks_(1, t)]
    v0l = [v0s(t) for t in oth + [4, 5, 6, 7]]
    seq += v0l[:xa]
    B0 = len(seq)
    for t in range(4, 8): seq += [qs(0, t), v1s(t), qs(1, t)]
    P2 = len(seq)
    rest = v0l[xa:]
    nmid_ = len(rest) - 4
    seq += [ks_(0, t) for t in range(4, 8)] + rest[:nmid_] + [ks_(1, t) for t in range(4, 8)] + rest[nmid_:]
    NP = len(seq) - P2
    gap = [[] for _ in seq]
    def put(g, *ins):
        for x in ins: gap[g] += x.split('\n')
    sbw, sbb = opt.get('sbw', 8), opt.get('sbb', 13)
    put(1, rf(oth[0] + 4)[0]); put(2, rf(oth[0] + 4)[1]); put(6, rf(oth[1] + 4)[0]); put(7, rf(oth[1] + 4)[1])
    put(sbw, mwr(LB, own + 4))
    for i, x in enumerate((mx(1, LB, 0), mx(1, LB, 1), CMP)): put(sbw + 1 + i, x)
    put(sbb, f's_cbranch_vccnz SB{tag}\nSBR{tag}:', 's_waitcnt lgkmcnt(0)', 's_barrier', rd128(MEMA + 16, mloc(4)))
    g = sbb + 1
    for x in [rd128(MEMA + 4*tt, mloc(tt)) for tt in range(5, 8)] + rf(oth[2] + 4):
        put(g, x); g += 1
    VX0, VX1, OA0, OA1 = (MEMA + 4*t for t in [own] + oth)
    LACC, ONES, PX, E0 = MEMA+16, MEMA+20, MEMA+24, MEMA+28
    assert xa >= 1
    gv = max(sbb + 1, 16)
    put(gv, f'buffer_load_dwordx4 {vr(VX0,4)}, v{AL0}, {SRD}, s{sV} offen sc1')
    put(gv + 1, f'buffer_load_dwordx4 {vr(VX1,4)}, v{AL0}, {SRD}, s{sV} offen offset:1024 sc1')
    kpos, rpos = opt.get('kpos', 'S7'), opt.get('rpos', 'B4')
    rst = [f'buffer_store_dwordx4 {vr(NEG,4)}, v{AL0}, {SRD}, s{sV2} offen offset:{i*1024}' for i in range(2)]
    kdm = [f's_mov_b32 m0, {L_K + w*2048}\nbuffer_load_dwordx4 v{AL0}, {SRD}, s{sK} offen sc1 lds',
           f'buffer_load_dwordx4 v{AL0}, {SRD}, s{sK} offen offset:1024 sc1 lds']
    if rpos == 'P1':
        rg = opt.get('rg', ((0, 4), (3, 5), (4, 0), (5, 3)))[w]
        for i in range(2): put(rg[i], rst[i])
    gk = gv + 2
    if kpos == 'P1': put(gk, kdm[0]); put(gk + 1, kdm[1])
    else: gk = gv
    assert kpos != 'P1'
    gs = gk + opt.get('gsl', 2)
    for i, x in vm: put(min(gs + i, P2 - 1), x)
    if pub: put(gs + opt.get('pg', (0, 1, 2, 3))[w], pub)
    kr = [rd128(KW + 4*f, L_K + f*1024) for f in range(8)]
    for i in range(4):
        g0 = max(B0 + 3*i + 1, g)
        put(g0, kr[2*i]); put(min(g0 + 1, P2 - 1) if i < 3 else P2 - 1, kr[2*i + 1])
    e0, e1 = epq(Q0), epq(Q1)
    qtr = [trd(QT, L_Q, ks, h) for ks in range(4) for h in range(2)]
    ek0, ek1, ev0, ev1 = epi(K0), epi(K1), epi(V0), epi(V1)
    G = lambda k: min(P2 + k, len(seq) - 1)
    kend = P2 + 4 + nmid_ + 3
    put(G(0), e0[0], e0[1]); put(G(1), e0[2], e0[3]); put(G(2), e0[4], e1[0]); put(G(3), qkw(L_Q, 0, Q0), e1[1])
    put(G(4), e1[2], e1[3]); put(G(5), e1[4]); put(G(6), qkw(L_Q, 1, Q1))
    put(G(7), ek0[0], ek0[1]); put(G(8), ek0[2]); put(G(9), qkw(L_KM, 0, K0))
    gb = opt.get('gb', 10)
    put(G(gb), 's_waitcnt lgkmcnt(1)', 's_barrier')
    e1g = kend + 2 - P2
    put(G(e1g), ek1[0], ek1[1])
    put(G(gb + 1), qtr[0], qtr[1])
    put(G(max(e1g + 1, gb + 1)), ek1[2], qkw(L_KM, 1, K1))
    put(G(gb + 2), qtr[2], qtr[3])
    put(len(seq) - 1, qtr[4], qtr[5])
    for i, (m_, gg) in enumerate(zip(seq, gap)):
        p(m_)
        for x in gg: p(x)
        if i == B0 - 1 or i == G(gb): stamp()
    PM = T0
    def sx(tile, ks): return mf32(S + 4*tile, KW + 16*tile + 4*ks, QT + 4*ks, '0' if ks == 0 else S + 4*tile)
    def sm(ks): return mf32(SM, AQK + 4*ks, QT + 4*ks, '0' if ks == 0 else SM)
    def ex(d, r): return f'v_exp_f32 v{d}, v{r}'
    def cv(d, a_): return f'v_cvt_pk_bf16_f32 v{d}, v{a_}, v{a_+1}'
    ktr = [trd(AQK, L_KM, ks, h) for ks in range(4) for h in range(2)]
    p(sx(0, 0)); p(qtr[6])
    p(sx(1, 0)); p(qtr[7])
    p(sx(0, 1)); p(ev1[0]); p(ev1[1])
    p(sx(1, 1))
    p('s_waitcnt lgkmcnt(6)'); p('s_barrier'); stamp()
    p(sx(0, 2)); p(ktr[0]); p(ktr[1])
    p(sx(0, 3)); p(ktr[2]); p(ktr[3])
    p(sx(1, 2)); p(ktr[4]); p(ktr[5])
    p(sx(1, 3)); p(ktr[6]); p(ktr[7])
    p(ex(E0, SX0)); p(ex(E0+1, SX0+1))
    p(sm(0)); p(rd128(ONES, L_ONE))
    p(sm(1))
    p(sm(2))
    p(sm(3)); p(ex(E0+2, SX0+2))
    p(ex(E0+3, SX0+3)); p(cv(PX, E0)); p(ex(E0, SX1)); p(cv(PX+1, E0+2)); p(ex(E0+1, SX1+1))
    p(ex(E0+2, SX1+2)); p(ex(E0+3, SX1+3)); p(cv(PX+2, E0)); p(ex(E0, SM)); p(cv(PX+3, E0+2)); p(ex(E0+1, SM+1))
    stamp()
    p(ev1[2])
    p(mf32(LACC, ONES, PX, '0')); p(cv(PM, E0)); p(ev0[0])
    p(mf32(OA0, VX0, PX, '0')); p(ev0[1]); p(f'v_mov_b32 v{V1+1}, 0')
    p(mf32(OA1, VX1, PX, '0')); p(ev0[2]); p(f'v_mov_b32 v{V0+1}, 0')
    p(mf16(LACC, ONES, PM, LACC))
    if full: p(qkw(L_KM + 4, 1, V1))
    p(mf16(OA0, V0, PM, OA0))
    if full: p(qkw(L_KM + 4, 0, V0))
    p(mf16(OA1, V1, PM, OA1))
    p(f'v_rcp_f32 v{T2}, v{LACC}')
    p(f'v_mov_b64 {vr(AQK,2)}, 0')
    p(f'v_max_f32 v{E0}, v{T2}, v{LACC}')
    p(f'v_cmp_nge_f32 vcc, s{sLIM}, v{E0}')
    for r in range(4): p(f'v_mul_f32 v{OA0+r}, v{OA0+r}, v{T2}')
    p(f's_and_b64 s[34:35], vcc, s[{sVAL}:{sVAL+1}]'); p(f's_cbranch_scc1 FB{tag}'); p(f'FBC{tag}:')
    p(cv(OA0, OA0)); p(cv(OA0+1, OA0+2))
    p(f'ds_write_b64 v{AOW}, {vr(OA0,2)}')
    for r in (0, 2): p(f'v_pk_mul_f32 {vr(OA1+r,2)}, {vr(OA1+r,2)}, {vr(T2,2)} op_sel_hi:[1,0]')
    p(cv(OA1, OA1)); p(cv(OA1+1, OA1+2))
    p(f'ds_write_b64 v{AOW}, {vr(OA1,2)} offset:256')
    slow(f'FB{tag}:')
    slow(f"""s_nop 7
    v_max3_f32 v{T2}, v{SX0}, v{SX0+1}, v{SX0+2}
    v_max3_f32 v{T2}, v{T2}, v{SX0+3}, v{SX1}
    v_max3_f32 v{T2}, v{T2}, v{SX1+1}, v{SX1+2}
    v_max3_f32 v{T2}, v{T2}, v{SX1+3}, v{SM}
    v_max_f32 v{T2}, v{T2}, v{SM+1}
    v_mov_b32 v{E0}, v{T2}
    v_permlane16_swap_b32 v{T2}, v{E0}
    v_max_f32 v{T2}, v{T2}, v{E0}
    v_mov_b32 v{E0}, v{T2}
    v_permlane32_swap_b32 v{T2}, v{E0}
    v_max_f32 v{T2}, v{T2}, v{E0}""")
    for k in range(5):
        for j in range(2): slow(f'v_sub_f32 v{E0+j}, v{S+2*k+j}, v{T2}')
        for j in range(2): slow(ex(E0+j, E0+j))
        slow(cv(PX + k if k < 4 else PM, E0))
    slow(mf32(LACC, ONES, PX, '0')); slow(mf32(OA0, VX0, PX, '0')); slow(mf32(OA1, VX1, PX, '0'))
    slow(mf16(LACC, ONES, PM, LACC)); slow(mf16(OA0, V0, PM, OA0)); slow(mf16(OA1, V1, PM, OA1))
    slow(f'v_rcp_f32 v{T2}, v{LACC}')
    for r in range(4): slow(f'v_mul_f32 v{OA0+r}, v{OA0+r}, v{T2}')
    slow(f's_nop 7\ns_branch FBC{tag}')
    stamp()
    acc = [AQK, AQK+4, AQK+8, AQK+12, MEMA+16, MEMA+20, MEMA+24, MEMA+28]
    land = [KW, KW+8, KW+16, KW+24, MEMA, QT+8, S, ACCV]
    for r in list(range(AQK+2, AQK+16, 2)) + list(range(MEMA+16, MEMA+32, 2)): p(f'v_mov_b64 {vr(r,2)}, 0')
    w1 = []
    for t in range(8): w1 += [rd128(land[t], wl(1, t)), rd128(land[t] + 4, wl(1, t) + 1024)]
    npre = opt.get('w1pre', 0)
    for x in w1[:npre]: p(x)
    p(f's_waitcnt lgkmcnt({npre})'); p('s_barrier')
    stamp()
    OP = QT
    p(rd128(OP, L_O)); p(rd128(OP+4, L_O + 1024))
    nmid = opt.get('w1mid', 6)
    for x in w1[npre:npre+nmid]: p(x)
    w1 = w1[npre+nmid:]
    def pst(t): return f'buffer_store_dword v{acc[t]}, v{AP}, {SRD}, s{sPART+t} offen'
    book = [f's_add_u32 s{sSTEP}, s{sSTEP}, 1', f's_xor_b32 s{sMEM}, s{sMEM}, 8192', f's_xor_b32 s{sMEM2}, s{sMEM2}, 8192',
            f's_add_u32 s{sSLOT}, s{sSLOT}, 1', f's_cmp_eq_u32 s{sSLOT}, 3\ns_cselect_b32 s{sDLT}, {(-2*INBOX_SLOT) & 0xffffffff}, s{sC2}\ns_cselect_b32 s{sSLOT}, 0, s{sSLOT}']
    book += [f's_add_u32 s{sV}, s{sV}, {32*16384}']
    if w in (1, 2): book += [f's_add_u32 s{sPF}, s{sPF}, {32*16384}']
    es = [epi(acc[t]) for t in range(8)]
    for t in range(8):
        p(smf(acc[t], OP, wo0(t)))
        if w1: p(w1.pop(0))
        elif book: p(book.pop(0))
        if t >= 2: p(es[t-2][2])
        p(smf(acc[t], OP+4, vr(land[t], 8)))
        if t >= 2: p(pst(t-2))
        if w1 and (t < 1 or opt.get('w1both', 1)): p(w1.pop(0))
        elif book: p(book.pop(0))
        if t >= 1: p(es[t-1][0]); p(es[t-1][1])
    p(es[6][2]); p(pst(6))
    p(es[7][0]); p(es[7][1]); p(es[7][2]); p(pst(7))
    pastS7[0] = True
    stamp()
    if kpos == 'S7': p('\n'.join(kdm))
    if rpos == 'S7': p('\n'.join(rst))
    if full:
        p(rd128(QT, L_KM + w*1024))
        book.append(f's_add_u32 s{sKVM}, s{sKVM}, {32*4096}')
        if w == 3:
            p(f"""s_add_u32 s{sNEED}, s{sSTEP}, 2
            s_lshr_b32 s{sNEED}, s{sNEED}, 2
            s_add_u32 s{sNEED}, s{sNEED}, 1
            s_min_u32 s{sNEED}, s{sNEED}, 16""")
            slow(f'KVW:\nv_and_b32 v{T2}, 63, v{AP}')
            common.wait_flags(slow, 'KVL', T2, f's{sFKV}', f's{sNEED}', T3)
            slow('s_branch KVR')
    if w == 0: p(rd128(S, L_SEL)); p(f'ds_read_b32 v{S+4}, v{AP} offset:{L_DUM + 1024}\nv_mov_b64 {vr(S+8,2)}, 0\nv_mov_b64 {vr(S+10,2)}, 0')
    adv = [f's_add_u32 s{sV2}, s{sIN}, {w*2048}', f's_add_u32 s{sIN}, s{sIN}, s{sDLT}'] + ([f's_add_u32 s{sIN2}, s{sIN2}, s{sDLT}'] if w == 0 else [])
    late = (kdm if kpos == 'B4' or (w == 0 and kpos in ('mid', 'end')) else []) + ([] if rpos != 'B4' else rst)
    adv += [f's_add_u32 s{sK}, s{sK}, {32*16384}']
    adv = late + adv
    hk1 = []
    for t in range(8): hk1 += [f's_add_u32 s{sPART+t}, s{sPART+t}, s{sDLT}', f'v_mov_b64 {vr(AQK+2*t,2)}, 0']
    pre = [x for i in range(4) for x in wrd(i, 0, i).split('\n')]
    z2 = [f'v_mov_b64 {vr(AQK+r,2)}, 0' for r in range(16, 24, 2)] + [f'v_mov_b64 {vr(NEG,2)}, -1', f'v_mov_b64 {vr(NEG+2,2)}, -1']
    hk2 = []
    for i, x in enumerate(pre): hk2 += [x] + ([z2[i]] if i < len(z2) else [])
    for b_ in book: p(b_)
    if w == 0:
        R0, R = S + 4, S + 8
        def ibl(base): return [f'buffer_load_dwordx4 {vr(base+4*u,4)}, v{AL0}, {SRD}, s{sIN if u < 4 else sIN2} offen offset:{(u&3)*1024} sc1' for u in range(8)]
        def red(q, base): q(f'v_smfmac_f32_16x16x64_bf16 {vr(R,4)}, {vr(S,4)}, {vr(base, 8)}, v{S+4}')
        loads = ibl(MEMA)
        if rb2:
            for _ in range(opt.get('dly', (0, 0, 0))[var]): p('s_nop 3')
            p('\n'.join(loads))
            p('\n'.join(hk1 + z2))
            for _ in range(opt['rb2'] - 1): p('s_nop 3')
            p('\n'.join('@junk ' + l for l in ibl(KW)))
        else:
            if var >= 1: p('\n'.join(hk1))
            if var >= 2: p('\n'.join(hk2))
            for _ in range(opt.get('dly', (0, 0, 0))[var]): p('s_nop 3')
            if opt.get('w0st'): sv = nst[0]; nst[0] = 1; stamp(); nst[0] = sv
            p('\n'.join(loads))
            if var < 1: p('\n'.join(hk1))
            if var < 2: p('\n'.join(hk2))
        p(f'RBR{tag}:')
        for u in range(4):
            red(p, MEMA + 8*u)
            if opt.get('w0st') and u in (0, 3): sv = nst[0]; nst[0] = 2 if u == 0 else 3; stamp(); nst[0] = sv
        p(f'v_cmp_u_f32 vcc, v{R}, v{R}')
        p(f'v_cvt_pk_bf16_f32 v{R}, v{R}, v{R+2}')
        p(f's_cbranch_vccnz RBC{tag}\nRBD{tag}:')
        if opt.get('b4') == 2: p('s_barrier')
        p(f'buffer_store_dword v{R}, v{T3}, {SRD}, s{sPUB} offen')
        if opt.get('b4') == 1: p('s_barrier')
        p(f's_xor_b32 s{sPUB}, s{sPUB}, 8192')
        p('\n'.join(adv))
        if opt.get('hist'):
            p(f's_lshl_b32 s3, s{sSTEP}, 13\ns_add_u32 s3, s3, {WS_G}\ns_lshl_b32 s34, s{sH}, 8\ns_add_u32 s3, s3, s34\nbuffer_store_dword v{R}, v{T3}, {SRD}, s3 offen')
        slow(f'RBC{tag}:')
        if not rb2:
            for u in range(8): slow(mx(u == 0, MEMA + 4*u, 0)); slow(mx(u == 0, MEMA + 4*u, 1))
            slow(CMP); slow(f's_cbranch_vccz RBD{tag}')
        zr = f'v_mov_b64 {vr(R,2)}, 0\nv_mov_b64 {vr(R+2,2)}, 0'
        slow(f'RB{tag}:'); slow('\n'.join('@nowait ' + l for l in loads)); slow(TMO(sRB)); slow(zr)
        if rb2:
            for u in range(4):
                slow(f's_waitcnt vmcnt({14 - 2*u})'); red(slow, KW + 8*u)
            slow(f'v_cmp_u_f32 vcc, v{R}, v{R}\nv_cvt_pk_bf16_f32 v{R}, v{R}, v{R+2}\ns_cbranch_vccz RBD{tag}')
            for u in range(8): slow(mx(u == 0, KW + 4*u, 0)); slow(mx(u == 0, KW + 4*u, 1))
            slow(CMP); slow(f's_cbranch_vccz RBD{tag}')
            slow('\n'.join('@nowait ' + l for l in ibl(KW))); slow(zr)
        slow(f's_branch RBR{tag}')
    else:
        p('\n'.join(hk1))
        if kpos == 'mid': p('\n'.join(kdm))
        p('\n'.join(hk2))
        if kpos == 'end':
            for _ in range(opt.get('kdl', 0)): p('s_nop 7')
            p('\n'.join(kdm))
        if full and w == 3: p(f's_waitcnt vmcnt({8 + 2*(kpos in ("S7", "mid", "end")) + 2*(rpos == "S7")})\nv_cmp_gt_u32 vcc, s{sNEED}, v{T3}\ns_cbranch_vccnz KVW\nKVR:')
        if opt.get('b4'): p('s_barrier')
        p('\n'.join(adv))
        slp = opt.get('slp3', opt.get('slp')) if w == 3 else opt.get('slp')
        if slp: p(f's_sleep {slp}')
        for _ in range(opt.get('slpn', 0)): p('s_nop 7')
    stamp()
    p(f's_cmp_lt_u32 s{sSTEP}, {nsteps}\ns_cbranch_scc1 HA{tag}')
    if True:
        n = len(fb)
        sets = (LB, S)
        slow(f'SB{tag}:')
        slow('@wait_reset')
        for i, t in enumerate(fb): slow('@nowait ' + gld(sets[0] + 4*i, t))
        slow(TMO(sRB)); slow('s_nop 15')
        slow(f'SL{tag}:')
        for k in range(2):
            for i, t in enumerate(fb): slow('@nowait ' + gld(sets[1-k] + 4*i, t))
            slow(f's_waitcnt vmcnt({n})')
            for i, t in enumerate(fb): slow('@nowait ' + mwr(sets[k] + 4*i, t))
            for i, t in enumerate(fb): slow('@nowait ' + mx(i == 0, sets[k] + 4*i, 0)); slow('@nowait ' + mx(i == 0, sets[k] + 4*i, 1))
            slow(CMP); slow(f's_cbranch_vccz SK{tag}')
        slow(TMO(sRB)); slow(f's_branch SL{tag}')
        slow(f'SK{tag}:'); slow(f's_waitcnt lgkmcnt(0) vmcnt(0)\ns_branch SBR{tag}')
    slow(f'CE{tag}:'); slow('\n'.join(z2 if rb2 else hk2)); slow(f's_branch HA{tag}')
    fin = Prog()
    if var == 0:
        fin(f'FIN{w}:')
        if rb2: fin('s_waitcnt vmcnt(0)\n' + '\n'.join(pre))
        fr = (own, own + 4)
        fin(f'FL{w}:')
        for i, t in enumerate(fr): fin(gld(S + 4*i, t))
        fin(TMO(sRETRY))
        for i, t in enumerate(fr): fin(mx(i == 0, S + 4*i, 0)); fin(mx(i == 0, S + 4*i, 1))
        fin(CMP); fin(f's_cbranch_vccnz FL{w}')
        fin('s_waitcnt lgkmcnt(0)\ns_barrier')
        for i, t in enumerate(fr): fin(mwr(S + 4*i, t))
        fin(f'buffer_store_dwordx4 {vr(QT,4)}, v{AL0}, {SRD}, s{sKVM} offen offset:{w*1024} sc1\ns_add_u32 s{sKVM}, s{sKVM}, {32*4096}')
        fin('s_waitcnt lgkmcnt(0)\ns_barrier')
        for t in range(8): fin(rd128(MEMA + 4*t, mloc(t)))
        for t in range(8):
            fin(v1s(t))
            if t < 4: fin(wrd(t, 0, t + 4))
            fin(ks_(0, t)); fin(ks_(1, t)); fin(v0s(t))
        fin('s_barrier')
        for a_, off, u in ((V1, 4, 1), (K0, 0, 0), (K1, 0, 1), (V0, 4, 0)):
            fin('\n'.join(epi(a_))); fin(qkw(L_KM + off, u, a_))
        fin('s_waitcnt lgkmcnt(0)\ns_barrier')
        fin(rd128(QT, L_KM + w*1024))
        fin(f'buffer_store_dwordx4 {vr(QT,4)}, v{AL0}, {SRD}, s{sKVM} offen offset:{w*1024} sc1\ns_waitcnt vmcnt(0)\ns_barrier')
        if w == 0:
            fin(f'v_mov_b32 v{T0}, 64\ns_mov_b64 exec, 1\nbuffer_store_dword v{T0}, v{AL0}, {SRD}, s{sFCH} offen sc1\ns_mov_b64 exec, -1')
        if opt.get('log') and w == 1:
            fin(f's_lshl_b32 s3, s{sH}, 8\ns_add_u32 s3, s3, {WS_DBG + 0x10000}\nbuffer_store_dword v{T3}, v{AP}, {SRD}, s3 offen')
        if opt.get('stamps') or opt.get('trace'):
            fin(f's_lshl_b32 s3, s{sH}, 2\ns_add_u32 s3, s3, {w}\ns_lshl_b32 s3, s3, 6\ns_add_u32 s3, s3, {WS_DBG + 0x20000}')
            for i in range(12): fin(f'v_mov_b32 v{i}, s{4+i}')
            fin('s_mov_b64 exec, 1')
            for i in range(3): fin(f'buffer_store_dwordx4 {vr(4*i,4)}, v{AL0}, {SRD}, s3 offen offset:{16*i}')
            fin('s_mov_b64 exec, -1')
        if opt.get('dbgstart'): fin(f's_mul_i32 s{sRETRY}, s77, 63')
        if opt.get('time'): fin(f's_mov_b32 s85, s{sRETRY}\ns_mov_b32 s86, s{sRB}')
        fin('s_branch L_DONE')
    return p.lines, slow.lines, fin.lines

DEF = dict(D=3, sp=2, dly=(9, 0, 0), vb=(32, 32), rb2=1, w1mid=7, b4=1, rpos='P1', gg=(2, 7), pg=(4, 5, 6, 8), kpos='end', kdl=5, rg=((9, 11), (10, 12), (0, 4), (3, 5)))
def role(out, opt):
    from main import stamp
    o2 = dict(DEF); o2.update(opt); opt = o2
    T = opt.get('time')
    p = Prog()
    p('R_CHAIN:')
    startup(p, D_CHINIT, 2 if opt.get('kpos') == 'P1' else 1, opt.get('early', 1))
    if not opt.get('early', 1): p('s_mov_b32 s77, 0')
    if T: stamp(p, 2)
    p(f's_lshl_b32 s3, s{sW}, 11\ns_add_u32 s{sK}, s{sK}, s3\ns_cmp_eq_u32 s77, 1\ns_cbranch_scc1 C_go')
    common.wait_dbg(p, 'C_init', D_CHINIT, 32)
    common.wait_dbg(p, 'C_init2', D_INIT, 1)
    p(f'v_and_b32 v{T2}, 63, v{AP}')
    common.wait_flags(p, 'C_kv', T2, f's{sFKV}', 1, T0)
    p(f'''s_lshl_b32 s3, s{sW}, 11
    s_add_u32 m0, s3, {L_K}
    s_nop 0
    buffer_load_dwordx4 v{AL0}, {SRD}, s{sK} offen sc1 lds
    buffer_load_dwordx4 v{AL0}, {SRD}, s{sK} offen offset:1024 sc1 lds
    s_waitcnt vmcnt(0)
    C_go:
    s_waitcnt vmcnt(1)
    s_barrier
    s_add_u32 s{sK}, s{sK}, {32*16384}''')
    if T: stamp(p, 3); p('s_memtime s[94:95]\ns_waitcnt lgkmcnt(0)\ns_mov_b32 s98, s94')
    if opt.get('stamps') or opt.get('trace'):
        for i in range(12): p(f's_mov_b32 s{4+i}, 0')
    vb = opt.get('vb', (12, 20))
    p(f"""s_cmp_eq_u32 s{sW}, 1
    s_cbranch_scc1 CE1
    s_cmp_eq_u32 s{sW}, 2
    s_cbranch_scc1 CE2
    s_cmp_eq_u32 s{sW}, 3
    s_cbranch_scc1 CE3
    s_cmp_lt_u32 s{sH}, {vb[0]}
    s_cbranch_scc1 CE0v0
    s_cmp_lt_u32 s{sH}, {vb[1]}
    s_cbranch_scc1 CE0v1
    s_branch CE0v2""")
    o, st = process(p.lines); out += o + ['.p2align 7', 'C_code:']
    for w, var in ((0, 0), (0, 1), (0, 2), (1, 0), (2, 0), (3, 0)):
        body, slow, fin = step(w, 63, opt, var)
        import re
        for pat in opt.get('drop', ()): body = [l for l in body if not re.search(pat, l)]
        o, st = loop(body, State())
        o = hoist_waits(o)
        o_, st = loop(o, State())
        assert o_ == o
        if T:
            q = Prog(); stamp(q, 4); q('s_memtime s[96:97]\ns_waitcnt lgkmcnt(0)\ns_sub_u32 s82, s96, s94' if not opt.get('dbgstart') else ''); o += process(q.lines)[0]
        out += ['.p2align 6'] + o + [f's_branch FIN{w}'] + process(slow)[0]
        if fin: out += process(['s_waitcnt lgkmcnt(0)', 's_nop 7'] + fin)[0][2:]
```

```python
from asmlib import *
from layout import *
SRD = 's[36:39]'
sRANK, sW, sXCC = 40, 47, 72
def vr(a, n): return f'v[{a}:{a+n-1}]' if n > 1 else f'v{a}'
def ar(a, n): return f'a[{a}:{a+n-1}]'
def tmo(r, lab='L_ABORT'): return f's_add_u32 s{r}, s{r}, 1\ns_cmp_gt_u32 s{r}, {LIMIT}\ns_cbranch_scc1 {lab}'

def entry(p, nwg=256):
    p(f'''
    s_cmp_ge_u32 s2, {nwg}
    s_cbranch_scc1 L_EXIT
    s_load_dwordx16 s[4:19], s[0:1], 0
    s_load_dwordx8 s[20:27], s[0:1], 64
    s_load_dwordx4 s[28:31], s[0:1], 96
    s_load_dwordx2 s[32:33], s[0:1], 112
    s_getreg_b32 s{sXCC}, hwreg(HW_REG_XCC_ID, 0, 3)
    v_lshrrev_b32 v66, 6, v0
    v_readfirstlane_b32 s{sW}, v66
    s_waitcnt lgkmcnt(0)
    s_mov_b32 s36, s32
    s_mov_b32 s37, s33
    s_mov_b32 s38, {WS_SIZE}
    s_mov_b32 s39, 0x20000
    ''')

def register(p, pre=None):
    nyoung = 2 if pre else 0
    p(f'''
    s_lshl_b32 s3, s{sXCC}, 5
    v_mov_b32 v1, s3
    v_mov_b32 v2, 1
    v_mov_b32 v4, 0
    v_cmp_eq_u32 vcc, 0, v0
    s_and_saveexec_b64 s[34:35], vcc
    s_cbranch_execz L_reg_skip
    global_atomic_add v3, v1, v2, s[30:31] sc0
    L_reg_skip:
    s_mov_b64 exec, s[34:35]
    ''')
    if pre: pre(p)
    p(f'''
    s_cmp_lg_u32 s2, 1
    s_cbranch_scc1 L_noclear
    v_mov_b32 v8, 0
    v_mov_b32 v9, 0
    v_mov_b32 v10, 0
    v_mov_b32 v11, 0
    v_lshlrev_b32 v5, 4, v0
    @nowait buffer_store_dwordx4 v[8:11], v5, {SRD}, 0 offen sc1
    v_add_u32 v5, 0x1000, v5
    @nowait buffer_store_dwordx4 v[8:11], v5, {SRD}, 0 offen sc1
    v_add_u32 v5, 0x1000, v5
    @nowait buffer_store_dwordx4 v[8:11], v5, {SRD}, 0 offen sc1
    v_add_u32 v5, 0x1000, v5
    @nowait buffer_store_dwordx4 v[8:11], v5, {SRD}, 0 offen sc1
    s_waitcnt vmcnt(0)
    s_barrier
    v_mov_b32 v5, {D_INIT}
    s_mov_b64 exec, 1
    global_store_dword v5, v2, s[30:31] sc1
    s_mov_b64 exec, -1
    L_noclear:
    v_cmp_eq_u32 vcc, 0, v0
    s_and_saveexec_b64 s[34:35], vcc
    s_cbranch_execz L_reg_skip2
    s_waitcnt vmcnt({nyoung})
    ds_write_b32 v4, v3
    s_waitcnt lgkmcnt(0)
    L_reg_skip2:
    s_mov_b64 exec, s[34:35]
    s_barrier
    ds_read_b32 v3, v4
    s_waitcnt lgkmcnt(0)
    v_readfirstlane_b32 s{sRANK}, v3
    s_barrier
    @wait_reset
    ''')

def wait_dbg(p, lab, off, val, vt=1, st=3):
    p(f'''
    v_mov_b32 v{vt}, {off}
    s_mov_b32 s{st}, 0
    {lab}:
    global_load_dword v{vt+1}, v{vt}, s[30:31] sc1
    {tmo(st)}
    s_waitcnt vmcnt(0)
    v_readfirstlane_b32 s34, v{vt+1}
    s_cmp_lt_u32 s34, {val}
    s_cbranch_scc1 {lab}
    ''')

def wait_flags(p, lab, voff, soff, need, vt, st=3, sleep=1):
    p(f'''
    s_mov_b32 s{st}, 0
    s_branch {lab}_go
    {lab}:
    s_sleep {sleep}
    {lab}_go:
    buffer_load_dword v{vt}, v{voff}, {SRD}, {soff} offen sc1
    {tmo(st)}
    s_waitcnt vmcnt(0)
    v_cmp_gt_u32 vcc, {need}, v{vt}
    s_cbranch_vccnz {lab}
    ''')

def set_flag(p, vval, soff, voff):
    p(f's_mov_b64 exec, 1\nbuffer_store_dword v{vval}, v{voff}, {SRD}, {soff} offen sc1\ns_mov_b64 exec, -1')

def rnd(p, r):
    p(f'v_cvt_pk_bf16_f32 v{r}, v{r}, v{r}\nv_and_b32 v{r}, 0xffff0000, v{r}')
def rnd2(p, a, b):
    p(f'v_cvt_pk_bf16_f32 v{b}, v{a}, v{b}\nv_lshlrev_b32 v{a}, 16, v{b}\nv_and_b32 v{b}, 0xffff0000, v{b}')
```

```python
import sys
from common import *
import s01
NAME = 'recurrent_scan__memory_aug_recurrent_mem_tr__mixer_s_mlp__prompt_kernel'

def stamp(p, i):
    p(f's_memrealtime s[96:97]\ns_waitcnt lgkmcnt(0)\ns_mov_b32 s{80+i}, s96')

def build(opt={}):
    roles = opt.get('roles', 'CBWAO')
    T = opt.get('time')
    p = Prog()
    entry(p)
    if T:
        for i in range(8): p(f's_mov_b32 s{80+i}, 0')
        stamp(p, 0)
    xm = opt.get('xmap', (0, 4, 5, 6, 7, 2, 3, 1))
    if tuple(xm) != tuple(range(8)):
        p(f's_lshl_b32 s3, s{sXCC}, 2\ns_lshr_b32 s{sXCC}, {sum(x << (4*i) for i, x in enumerate(xm))}, s3\ns_and_b32 s{sXCC}, s{sXCC}, 7')
    def pre(p):
        p(f'''s_mov_b32 s68, s14
        s_mov_b32 s69, s15
        s_cmp_eq_u32 s{sXCC}, 0
        s_cselect_b32 s70, 0x400000, 0
        s_cmp_eq_u32 s2, 1
        s_cselect_b32 s70, 0, s70
        s_mov_b32 s71, 0x20000
        s_lshr_b32 s3, s2, 3
        s_and_b32 s3, s3, 31
        s_lshl_b32 s3, s3, 17
        s_add_u32 s3, s3, 0x10000
        v_lshlrev_b32 v6, 7, v0
        @junk buffer_load_dword v7, v6, s[68:71], s3 offen
        s_add_u32 s3, s3, 0x8000
        @junk buffer_load_dword v7, v6, s[68:71], s3 offen''')
    register(p, pre if opt.get('pre', 1) else None)
    p(f's_cmp_ge_u32 s{sRANK}, 32\ns_cbranch_scc1 L_EXIT')
    if T: stamp(p, 1)
    p(f's_cmp_eq_u32 s{sXCC}, 0\ns_cbranch_scc1 {"R_CHAIN" if "C" in roles else "L_DONE"}')
    p('s_waitcnt vmcnt(0)')
    p(f's_cmp_eq_u32 s{sXCC}, 1\ns_cbranch_scc1 {"R_BPATH" if "B" in roles else "L_DONE"}')
    lines = []
    if 'W' in roles:
        p(f'''s_sub_u32 s3, s{sXCC}, 2
        s_lshl_b32 s3, s3, 5
        s_add_u32 s3, s3, s{sRANK}
        s_mul_i32 s52, s3, 21846
        s_lshr_b32 s52, s52, 16
        s_mul_i32 s34, s52, 3
        s_cmp_lg_u32 s34, s3
        s_cbranch_scc1 L_noS0''')
        s01.s0(p, 52)
        p('L_noS0:\n@wait_reset')
        s01.s1_start(p)
        if T: stamp(p, 2)
        s01.s1_weights(p)
        if T: stamp(p, 3)
        o, st = process(p.lines); lines += o
        st = s01.s1_main(lines, st)
        p = Prog()
        if T: stamp(p, 4)
    if 'A' in roles or 'O' in roles:
        import s34
        p(f's_cmp_ge_u32 s{sXCC}, {8 - opt.get("nteam", 4)}\ns_cbranch_scc1 {"R_S4" if "O" in roles else "L_DONE"}')
        p(f's_cmp_ge_u32 s{sXCC}, 4\ns_cbranch_scc1 L_DONE')
        if 'A' not in roles: p('s_branch L_DONE')
        o, st = process(p.lines); lines += o
        if 'A' in roles: s34.s3(lines, opt)
        if 'O' in roles: s34.s4(lines, opt)
    else:
        p('s_branch L_DONE')
        o, st = process(p.lines); lines += o
    if 'B' in roles:
        import s2
        s2.bpath(lines, opt)
    if 'C' in roles:
        import chain
        chain.role(lines, opt)
    q = Prog()
    q('L_ABORT:')
    q('L_DONE:')
    if T:
        stamp(q, 7)
        q(f'''s_lshl_b32 s3, s{sXCC}, 5
        s_add_u32 s3, s3, s{sRANK}
        s_lshl_b32 s3, s3, 2
        s_add_u32 s3, s3, s{sW}
        s_lshl_b32 s3, s3, 5
        s_add_u32 s3, s3, {WS_DBG}
        v_mov_b32 v1, 0''')
        for i in range(8): q(f'v_mov_b32 v{4+i}, s{80+i}')
        q(f'''s_mov_b64 exec, 1
        buffer_store_dwordx4 v[4:7], v1, {SRD}, s3 offen
        buffer_store_dwordx4 v[8:11], v1, {SRD}, s3 offen offset:16''')
    if opt.get('hdbg'):
        q(f'''s_memrealtime s[96:97]
        s_waitcnt lgkmcnt(0)
        s_mov_b64 exec, 1
        s_not_b32 s3, s80
        v_mov_b32 v1, 48
        v_mov_b32 v2, s3
        global_atomic_umax v1, v2, s[30:31]
        v_mov_b32 v1, 52
        v_mov_b32 v2, s96
        global_atomic_umax v1, v2, s[30:31]
        s_lshl_b32 s3, s{sXCC}, 7
        s_lshl_b32 s34, s{sRANK}, 2
        s_add_u32 s3, s3, s34
        s_add_u32 s3, s3, s{sW}
        s_cmp_lg_u32 s3, 0
        s_cbranch_scc1 L_hd1
        v_mov_b32 v4, s80
        v_mov_b32 v5, s83
        v_mov_b32 v6, s84
        v_mov_b32 v7, s96
        v_mov_b32 v1, 8
        global_store_dwordx2 v1, v[4:5], s[30:31]
        global_store_dwordx2 v1, v[6:7], s[30:31] offset:8
        v_mov_b32 v4, s81
        v_mov_b32 v5, s82
        global_store_dwordx2 v1, v[4:5], s[30:31] offset:16
        L_hd1:
        s_cmp_lg_u32 s3, 128
        s_cbranch_scc1 L_hd2
        v_mov_b32 v1, 40
        v_mov_b32 v4, s96
        global_store_dword v1, v4, s[30:31]
        L_hd2:
        s_cmp_lg_u32 s3, 256
        s_cbranch_scc1 L_hd3
        v_mov_b32 v1, 56
        v_mov_b32 v4, s83
        v_mov_b32 v5, s84
        global_store_dwordx2 v1, v[4:5], s[30:31]
        L_hd3:''')
    q('L_EXIT:\ns_endpgm')
    o, _ = process(q.lines); lines += o
    return header(['grid=(256,1,1) block=(256,1,1) lds=163840'], f'; opt {opt}\n' if opt else '') + kernel_open(NAME) + fmt(lines) + '.section .rodata,"a"\n' + descriptor(NAME)

if __name__ == '__main__':
    o = eval(sys.argv[2]) if len(sys.argv) > 2 else {}
    open(sys.argv[1], 'w').write(build(o))
```

```python
from asmlib import *
from layout import *
import common

MEMA, KW, QT, AQK, ACCV, S = 0, 32, 64, 80, 96, 104
IDX, AL0, AL1, AL2, ATR, AQKW, AOW, AP = 116, 117, 118, 119, 120, 121, 122, 123
T0, T1, T2, T3 = 124, 125, 126, 127
WV0, WO0 = 128, 192
SRD = 's[36:39]'
sH, sSTEP, sMEM, sMEM2, sPUB, sIN, sIN2, sW = 40, 41, 42, 43, 44, 45, 46, 47
sPART = 48
sK, sK2, sV, sV2, sPF = 56, 57, 58, 59, 74
sODD = 62
sVAL = 86
sLIM = 88
sC = 64
sRETRY = 65
sRB = 61
sKVM, sFCH, sFKV, sNEED = 60, 89, 90, 91
sSLOT, sDLT, sC2, sKB = 92, 93, 73, 76
SRDW = 's[68:71]'

def vr(a, n): return f'v[{a}:{a+n-1}]' if n > 1 else f'v{a}'
def ar(a, n): return f'a[{a}:{a+n-1}]'
def wq(u, t): return ar((u*8+t)*8, 8)
def wk(u, t): return ar(128 + (u*8+t)*8, 8)
def wv0(t): return vr(WV0 + 8*t, 8)
def wo0(t): return vr(WO0 + 8*t, 8)
def smf(acc, a, b): return f'v_smfmac_f32_16x16x64_bf16 {vr(acc,4)}, {vr(a,4)}, {b}, v{IDX}'
def mf32(d, a, b, c): return f'v_mfma_f32_16x16x32_bf16 {vr(d,4)}, {vr(a,4)}, {vr(b,4)}, {c if isinstance(c,str) else vr(c,4)}'
def mf16(d, a, b, c): return f'v_mfma_f32_16x16x16_bf16 {vr(d,4)}, {vr(a,2)}, {vr(b,2)}, {c if isinstance(c,str) else vr(c,4)}'
def lin(off):
    r = (AL0, AL1, AL2)[off >> 16]
    return r, off & 0xffff
def rd128(dst, off):
    r, o = lin(off); return f'ds_read_b128 {vr(dst,4)}, v{r} offset:{o}'

def startup(p, dbg_ctr_off=64, opt_pf=1, early=True):
    p(f'''
    v_and_b32 v65, 63, v0
    v_lshrrev_b32 v66, 6, v0
    v_readfirstlane_b32 s{sW}, v66
    v_and_b32 v67, 15, v65            ; n
    v_lshrrev_b32 v68, 4, v65         ; g
    v_lshlrev_b32 v{AL0}, 4, v65
    v_add_u32 v{AL1}, 0x10000, v{AL0}
    v_add_u32 v{AL2}, 0x20000, v{AL0}
    v_lshlrev_b32 v{AP}, 2, v65       ; lane*4
    v_lshlrev_b32 v69, 4, v67
    v_lshl_add_u32 v78, v68, 2, v69
    v_lshrrev_b32 v69, 2, v67
    v_lshlrev_b32 v69, 6, v69
    v_and_b32 v70, 3, v67
    v_lshl_add_u32 v69, v70, 2, v69
    v_lshl_add_u32 v{T3}, v68, 4, v69
    s_mov_b32 s36, s32
    s_mov_b32 s37, s33
    s_mov_b32 s38, {WS_SIZE}
    s_mov_b32 s39, 0x20000
    v_lshrrev_b32 v69, 1, v67
    v_lshlrev_b32 v69, 10, v69
    v_and_b32 v70, 1, v67
    v_lshlrev_b32 v70, 2, v70
    v_lshl_add_u32 v70, v68, 3, v70
    v_add_u32 v69, v69, v70
    s_lshl_b32 s3, s{sH}, 5
    v_add_u32 v69, s3, v69
    global_load_dword v76, v69, s[6:7]
    v_mov_b32 v72, -1
    v_mov_b32 v73, -1
    v_mov_b32 v74, -1
    v_mov_b32 v75, -1
    s_mul_i32 s3, s{sH}, {INBOX_STRIDE}
    s_add_u32 s{sIN}, s3, {WS_INBOX}
    s_lshl_b32 s3, s{sW}, 11
    s_add_u32 s3, s3, s{sIN}
    s_add_u32 s34, s3, {INBOX_SLOT}
    buffer_store_dwordx4 v[72:75], v{AL0}, {SRD}, s3 offen
    buffer_store_dwordx4 v[72:75], v{AL0}, {SRD}, s3 offen offset:1024
    buffer_store_dwordx4 v[72:75], v{AL0}, {SRD}, s34 offen
    buffer_store_dwordx4 v[72:75], v{AL0}, {SRD}, s34 offen offset:1024
    s_add_u32 s34, s34, {INBOX_SLOT}
    buffer_store_dwordx4 v[72:75], v{AL0}, {SRD}, s34 offen
    buffer_store_dwordx4 v[72:75], v{AL0}, {SRD}, s34 offen offset:1024
    s_lshl_b32 s3, s{sH}, 8
    s_add_u32 s{sPUB}, s3, {WS_MEMS}
    s_add_u32 s3, s{sPUB}, 8192
    buffer_store_dword v72, v{AP}, {SRD}, s3 offen
    v_lshlrev_b32 v69, 1, v68
    v_xor_b32 v69, v69, v67                  ; n ^ (g<<1)
    v_lshlrev_b32 v69, 4, v69
    v_lshl_add_u32 v80, v68, 13, v69
    v_xor_b32 v81, 0x80, v80              ; off1
    s_lshr_b32 s3, s{sW}, 1
    s_lshl_b32 s3, s3, 7
    v_xor_b32 v82, s3, v{AL0}
    v_xor_b32 v83, 0x20, v82
    v_xor_b32 v84, 0x40, v82
    v_xor_b32 v85, 0x60, v82
    v_lshrrev_b32 v69, 2, v67               ; r
    v_and_b32 v70, 3, v67                   ; c
    v_and_b32 v71, 1, v68
    v_lshl_add_u32 v71, v71, 2, v69          ; f = r | (g&1)<<2
    v_lshlrev_b32 v71, 5, v71
    v_lshl_add_u32 v71, v70, 3, v71          ; f*32 + 8c
    v_lshl_add_u32 v69, v68, 3, v69          ; row = 8g + r
    v_lshl_add_u32 v86, v69, 8, v71
    s_lshl_b32 s3, s{sW}, 6
    v_xor_b32 v86, s3, v86                ; pair 2w
    v_xor_b32 v87, 0x20, v86              ; pair 2w+1
    v_add_u32 v86, {L_W}, v86
    v_add_u32 v87, {L_W}, v87
    v_lshrrev_b32 v69, 2, v67
    v_and_b32 v71, 1, v69                   ; r&1
    v_lshrrev_b32 v69, 1, v69
    v_lshl_add_u32 v69, v69, 2, v71
    v_lshl_add_u32 v69, v68, 3, v69         ; row
    v_and_b32 v90, 1, v68
    v_lshl_add_u32 v71, v90, 2, v71         ; f = (r&1) | (g&1)<<2
    v_lshlrev_b32 v71, 5, v71
    v_lshl_add_u32 v71, v70, 3, v71
    v_lshl_add_u32 v88, v69, 10, v71
    s_lshl_b32 s3, s{sW}, 5
    v_xor_b32 v88, s3, v88
    v_xor_b32 v89, 0x80, v88
    v_xor_b32 v90, 0x40, v88
    v_xor_b32 v91, 0xc0, v88
    v_add_u32 v88, {L_W}, v88
    v_add_u32 v89, {L_W}, v89
    v_add_u32 v90, {L_W}, v90
    v_add_u32 v91, {L_W}, v91
    s_lshl_b32 s66, s{sW}, 12
    s_add_u32 s66, s66, {L_W}
    s_mov_b32 s70, 0x400000
    s_mov_b32 s71, 0x20000
    ''')
    def dma(c):
        mat = c >> 3; t = c & 7
        if t == 0:
            src = (14, 8, 10, 12)[mat]
            p(f's_mov_b32 s68, s{src}\ns_mov_b32 s69, s{src+1}')
            if mat == 0:
                p(f's_lshl_b32 s67, s{sH}, 17\ns_lshl_b32 s3, s{sW}, 12\ns_add_u32 s67, s67, s3')
            else:
                p(f's_lshl_b32 s67, s{sH}, 8\ns_lshl_b32 s3, s{sW}, 17\ns_add_u32 s67, s67, s3')
        for i in range(4):
            p(f's_add_u32 m0, s66, {t*16384 + i*1024}')
            if mat == 0:
                p(f's_add_u32 s3, s67, {(t^4)*16384 + i*1024}')
                p(f'buffer_load_dwordx4 v{82+i}, {SRDW}, s3 offen lds')
            else:
                p(f's_add_u32 s3, s67, {t*64*8192 + i*4*8192}')
                p(f'buffer_load_dwordx4 v{80+(i>>1)}, {SRDW}, s3 offen lds')
    for c in range(8): dma(c)
    p(f'''
    v_and_b32 v69, 1, v67
    v_mov_b32 v70, 0x4444
    v_mov_b32 v71, 0xeeee
    v_cmp_eq_u32 s[{sODD}:{sODD+1}], 1, v69
    v_cndmask_b32 v{IDX}, v70, v71, s[{sODD}:{sODD+1}]
    ; aTR: (d0 + r)*32 + 8c, d0 = 16*(g>>1) + 4*(g&1)
    v_lshrrev_b32 v69, 1, v68
    v_lshlrev_b32 v69, 4, v69
    v_and_b32 v70, 1, v68
    v_lshl_add_u32 v69, v70, 2, v69
    v_lshrrev_b32 v70, 2, v67
    v_add_u32 v69, v69, v70
    v_and_b32 v70, 3, v67
    v_lshlrev_b32 v70, 3, v70
    v_lshl_add_u32 v{ATR}, v69, 5, v70
    ; aQKW: n*32 + 8g
    v_lshlrev_b32 v69, 5, v67
    v_lshl_add_u32 v{AQKW}, v68, 3, v69
    v_lshrrev_b32 v69, 2, v67
    v_and_b32 v70, 1, v67
    v_lshl_add_u32 v69, v69, 1, v70
    v_lshlrev_b32 v69, 5, v69
    v_and_b32 v70, 1, v68
    v_lshl_add_u32 v69, v70, 4, v69
    v_lshrrev_b32 v70, 1, v68
    v_lshl_add_u32 v69, v70, 3, v69         ; m*32 + (g&1)*16 + (g>>1)*8
    v_add_u32 v70, {L_O}, v69
    v_add_u32 v71, {L_DUM}, v69
    v_and_b32 v69, 2, v67
    v_cmp_eq_u32 vcc, 0, v69
    s_lshl_b32 s3, s{sW}, 9               ; (w>>1)*1024 + (w&1)*512
    v_add_u32 v70, s3, v70
    v_cndmask_b32 v{AOW}, v71, v70, vcc
    v_lshrrev_b32 v69, 3, v67
    v_xor_b32 v69, v69, v67
    v_and_b32 v69, 7, v69                   ; e
    v_and_b32 v70, 3, v69
    v_cmp_eq_u32 vcc, 3, v70
    v_mov_b32 v71, 0x3f80
    v_mov_b32 v77, 0x3f800000
    v_cndmask_b32 v71, v71, v77, vcc
    v_cndmask_b32 v70, v70, 0, vcc
    v_or_b32 v70, 12, v70
    v_mul_u32_u24 v70, 0x1111, v70
    ds_write_b32 v{AP}, v70 offset:{L_DUM + 1024}
    v_cmp_gt_u32 vcc, 4, v69
    v_cndmask_b32 v92, 0, v71, vcc
    v_cndmask_b32 v93, v71, 0, vcc
    v_mov_b32 v94, v92
    v_mov_b32 v95, v93
    ds_write_b128 v{AL0}, v[92:95] offset:{L_SEL}
    s_waitcnt lgkmcnt(0)
    v_mov_b32 v92, 0x3f803f80
    v_mov_b32 v93, 0x3f803f80
    v_mov_b32 v94, 0x3f803f80
    v_mov_b32 v95, 0x3f803f80
    ds_write_b128 v{AL0}, v[92:95] offset:{L_ONE}
    s_mov_b32 s{sLIM}, 0x53800000          ; 2^40
    v_mov_b32 v{T1}, 0
    s_mov_b32 s{sVAL}, 0x33333333
    s_mov_b32 s{sVAL+1}, 0x33333333
    s_mov_b32 s{sODD}, 0
    s_mov_b32 s{sODD+1}, -1
    s_mov_b32 s{sC}, 0x3e0293ee           ; log2(e)/sqrt(128)
    ''')
    issued = 7
    def allowed(c): return 4 * (issued - c)
    c = 0
    while c < 32:
        mat = c >> 3; t = c & 7
        if mat == 0:
            first = t == 0
            p(f's_waitcnt vmcnt({allowed(c+3)})')
            if first:
                p(f'''@wait_reset
                v_min_u32 v76, -2, v76
                buffer_store_dword v76, v78, {SRD}, s{sPUB} offen
                v_mov_b32 v79, v0''')
            p('s_barrier')
            for tt in range(8):
                for q, o in enumerate((0, 2048, 32768, 34816)):
                    d = (0 if first else WO0) + tt*8 + 2*q
                    p(f'ds_read_b64_tr_b16 v[{d}:{d+1}], v{88 + (tt&1) + 2*(q&1)} offset:{o + (tt>>1)*256}')
                if tt & 1: p('s_waitcnt lgkmcnt(0)')
            p('s_barrier')
            if first: p('v_add_u32 v88, 0x10000, v88\nv_add_u32 v89, 0x10000, v89\nv_add_u32 v90, 0x10000, v90\nv_add_u32 v91, 0x10000, v91')
            for k in range(4): dma(c + 8 + k)
            issued += 4; c += 4
            continue
        p(f's_waitcnt vmcnt({allowed(c) + (3 if early and c >= 28 else 0)})')
        p('s_barrier')
        if early and c == 23:
            p(f'''v_mov_b32 v69, {D_CHINIT}
            v_and_b32 v70, 63, v{AP}
            s_lshl_b32 s3, s{sH}, 6
            s_add_u32 s3, s3, {F_KV}
            @junk global_load_dword v66, v69, s[30:31] sc1
            @junk global_load_dword v67, v69, s[30:31] offset:{D_INIT - D_CHINIT} sc1
            @junk buffer_load_dword v68, v70, {SRD}, s3 offen sc1''')
        if early and c == 27:
            p(f'''v_lshlrev_b32 v69, 3, v{AL0}
            s_mul_i32 s3, s{sW}, {INBOX_SLOT}
            s_add_u32 s3, s3, s{sIN}
            s_cmp_eq_u32 s{sW}, 3
            s_cselect_b32 s3, {WS_MEMS}, s3
            @junk buffer_load_dword v65, v69, {SRD}, s3 offen sc1
            s_mov_b32 s3, {WS_MEMS + 8192}
            @junk buffer_load_dword v65, v69, {SRD}, s3 offen sc1
            s_getpc_b64 s[34:35]
            C_pc:
            s_add_u32 s34, s34, C_code - C_pc
            s_addc_u32 s35, s35, 0
            s_lshl_b32 s3, s{sW}, 13
            v_add_u32 v69, s3, v69
            v_min_u32 v69, L_DONE - C_code - 4, v69
            @junk global_load_dword v65, v69, s[34:35]''')
        if early and c == 30:
            p(f'''s_mov_b32 s77, 0
            v_cmp_gt_u32 vcc, 32, v66
            s_cbranch_vccnz C_late
            v_cmp_gt_u32 vcc, 1, v67
            s_cbranch_vccnz C_late
            v_cmp_gt_u32 vcc, 1, v68
            s_cbranch_vccnz C_late
            s_mov_b32 s77, 1
            s_lshl_b32 s3, s{sH}, 14
            s_lshl_b32 s34, s{sW}, 11
            s_add_u32 s35, s3, {WS_KV + 8192}
            s_add_u32 s3, s3, s34
            s_add_u32 s3, s3, {WS_KV}
            s_add_u32 m0, s34, {L_K}
            v_lshlrev_b32 v69, 3, v{AL0}
            buffer_load_dwordx4 v{AL0}, {SRD}, s3 offen sc1 lds
            buffer_load_dwordx4 v{AL0}, {SRD}, s3 offen offset:1024 sc1 lds
            @junk buffer_load_dword v65, v69, {SRD}, s35 offen sc1
            C_late:''')
        if c == 12:
            p(f'''v_mov_b32 v69, {dbg_ctr_off}
            v_mov_b32 v70, 1
            v_cmp_eq_u32 vcc, 0, v79
            s_and_saveexec_b64 s[34:35], vcc
            s_cbranch_execz L_noinc
            global_atomic_add v69, v70, s[30:31]
            L_noinc:
            s_mov_b64 exec, s[34:35]''')
        for u in range(2):
            for q, o in enumerate((0, 1024, 8192, 9216)):
                if mat < 3:
                    d = (mat-1)*128 + (u*8+t)*8 + 2*q
                    p(f'ds_read_b64_tr_b16 a[{d}:{d+1}], v{86+u} offset:{o + (t&3)*16384}')
                else:
                    d = (WV0 + 8*t if u == 0 else 96) + 2*q
                    p(f'ds_read_b64_tr_b16 v[{d}:{d+1}], v{86+u} offset:{o + (t&3)*16384}')
        p('s_waitcnt lgkmcnt(0)\ns_barrier')
        if t == 3: p('v_add_u32 v86, 0x10000, v86\nv_add_u32 v87, 0x10000, v87')
        if t == 7: p('v_subrev_u32 v86, 0x10000, v86\nv_subrev_u32 v87, 0x10000, v87')
        if mat == 3:
            if t == 0: p(f'v_add_u32 v90, s66, v{AL0}')
            if t == 4: p('v_add_u32 v90, 0x10000, v90')
            for k, r in enumerate((96, 100, 8*t, 8*t+4)):
                p(f'ds_write_b128 v90, v[{r}:{r+3}] offset:{(t&3)*16384 + k*1024}')
            p('s_waitcnt lgkmcnt(0)')
        if c + 8 < 32:
            dma(c + 8); issued += 1
        c += 1
    p(f'''
    s_mov_b32 s{sSTEP}, 0
    s_mov_b32 s{sMEM}, {WS_MEMS}
    s_mov_b32 s{sMEM2}, {WS_MEMS + 4096}
    s_add_u32 s{sPUB}, s{sPUB}, 8192
    s_mov_b32 s{sSLOT}, 0
    s_mov_b32 s{sC2}, {INBOX_SLOT}
    s_lshl_b32 s3, s{sW}, 11
    s_add_u32 s3, s3, s{sIN}
    s_mov_b32 s{sKB}, {L_K}
    s_add_u32 s{sV2}, s3, {2*INBOX_SLOT}
    s_add_u32 s{sIN2}, s{sIN}, 4096
    s_mul_i32 s3, s{sW}, {INBOX_STRIDE}
    s_lshl_b32 s34, s{sH}, 8
    s_add_u32 s3, s3, s34
    s_add_u32 s{sPART}, s3, {WS_INBOX}
    ''')
    for t in range(1, 8): p(f's_add_u32 s{sPART+t}, s{sPART}, {4*t*INBOX_STRIDE}')
    p(f'''
    s_lshl_b32 s3, s{sH}, 14
    s_add_u32 s{sK}, s3, {WS_KV}
    s_add_u32 s{sK2}, s{sK}, 4096
    s_lshl_b32 s34, s{sW}, 11
    s_add_u32 s{sV}, s{sK}, 8192
    s_add_u32 s{sPF}, s{sK}, {opt_pf*32*16384}
    s_add_u32 s{sPF+1}, s{sV}, {32*16384}
    s_cmp_eq_u32 s{sW}, 2
    s_cselect_b32 s{sPF}, s{sPF+1}, s{sPF}
    s_add_u32 s{sV}, s{sV}, s34
    s_lshl_b32 s3, s{sH}, 12
    s_add_u32 s{sKVM}, s3, {WS_KVM - 32*4096}
    s_lshl_b32 s3, s{sH}, 6
    s_add_u32 s{sFCH}, s3, {F_CH}
    s_add_u32 s{sFKV}, s3, {F_KV}
    s_mov_b32 s{sRETRY}, 0
    s_mov_b32 s{sRB}, 0
    ''')
    for r in range(0, 24, 2): p(f'v_mov_b64 {vr(AQK+r,2)}, 0')

def kdma(p):
    L = []
    for half, so in ((0, sK), (1, sK2)):
        L.append(f's_mov_b32 m0, {L_K + half*4096}')
        for i in range(4): L.append(f'buffer_load_dwordx4 v{AL0}, {SRD}, s{so} offen offset:{i*1024} sc1 lds')
    return L
def vdma(p):
    L = []
    for half, so in ((0, sV), (1, sV2)):
        L.append(f's_mov_b32 m0, {L_V + half*4096}')
        for i in range(4): L.append(f'buffer_load_dwordx4 v{AL0}, {SRD}, s{so} offen offset:{i*1024} sc1 lds')
    return L

def step(w, nsteps, opt, var=0):
    p = Prog(); slow = Prog()
    tag = f'{w}' if w else f'0v{var}'
    Q0, Q1, K0, K1 = AQK, AQK+4, AQK+8, AQK+12
    V0, V1 = ACCV, ACCV+4
    SX0, SX1, SM = S, S+4, S+8
    def wl(u, t): return L_W + t*16384 + w*4096 + u*2048
    def wrd(slot, u, t): return rd128(KW + 8*slot, wl(u, t)) + '\n' + rd128(KW + 8*slot + 4, wl(u, t) + 1024)
    nst = [0]; pastS7 = [False]
    def stamp():
        i = nst[0]; nst[0] += 1
        if opt.get('trace'):
            if opt.get('w0st') and i in (1, 2, 3) and not pastS7[0]: return
            if i in opt['trace']:
                p(f's_cmp_eq_u32 s{sSTEP}, {opt.get("at", 41)}\ns_cbranch_scc0 TR{tag}_{i}\ns_memrealtime s[96:97]\ns_waitcnt lgkmcnt(0)\ns_mov_b32 s{4+i}, s96\nTR{tag}_{i}:')
            return
        if i not in opt.get('stamps', ()): return
        if opt.get('w0st') and i in (1, 2, 3) and not pastS7[0]: return
        p(f's_memtime s[96:97]\ns_waitcnt lgkmcnt(0)\ns_sub_u32 s99, s96, s98\ns_mov_b32 s98, s96\ns_add_u32 s{4+i}, s{4+i}, s99')
    def epi(acc): return [f'v_add_f32 v{acc}, v{acc}, v{acc+1}', f'v_add_f32 v{acc+2}, v{acc+2}, v{acc+3}', f'v_cvt_pk_bf16_f32 v{acc}, v{acc}, v{acc+2}']
    def epq(acc):
        e = epi(acc)
        return e[:2] + [f'v_mul_f32 v{acc}, s{sC}, v{acc}', f'v_mul_f32 v{acc+2}, s{sC}, v{acc+2}'] + e[2:]
    def qkw(base, u, acc): return f'ds_write_b32 v{AQKW}, v{acc} offset:{base + (32*w + 16*u)*32}'
    def trd(dst, base, ks, h): return f'ds_read_b64_tr_b16 {vr(dst + 4*ks + 2*h, 2)}, v{ATR} offset:{base + ks*1024 + h*256}'
    def mloc(t): return L_Q + t*1024 if t < 4 else L_V + (t-4)*1024
    def gld(dst, t): return f'buffer_load_dwordx4 {vr(dst,4)}, v{AL0}, {SRD}, s{sMEM if t < 4 else sMEM2} offen offset:{(t&3)*1024} sc1'
    def mwr(src, t): return f'ds_write_b128 v{AL0}, {vr(src,4)} offset:{mloc(t)}'
    def mx(first, m, k):
        if first: return f'v_max3_u32 v{T0}, v{m}, v{m+1}, v{m+2}' if k == 0 else f'v_max_u32 v{T0}, v{T0}, v{m+3}'
        return f'v_max3_u32 v{T0}, v{T0}, v{m+2*k}, v{m+2*k+1}'
    CMP = f'v_cmp_eq_u32 vcc, -1, v{T0}'
    TMO = lambda r: f's_add_u32 s{r}, s{r}, 1\ns_cmp_gt_u32 s{r}, {LIMIT}\ns_cbranch_scc1 L_ABORT'
    own = (w + 3) & 3
    fb = (own + 4,)
    LB, NEG = QT + 4, QT + 12
    D = opt.get('D', 2)
    def v1s(t): return smf(V1, MEMA + 4*t, vr(KW + 8*(t & 3), 8))
    def v0s(t): return smf(V0, MEMA + 4*t, wv0(t))
    def qs(u, t): return smf(Q0 + 4*u, MEMA + 4*t, wq(u, t))
    def ks_(u, t): return smf(K0 + 4*u, MEMA + 4*t, wk(u, t))
    full = not opt.get('proto')
    rb2 = opt.get('rb2') and w == 0
    p(f'HA{tag}:')
    sp = opt.get('sp', 0)
    for _ in range(opt.get('pd', (0, 0))[1 if w else 0]): p('s_nop 7')
    for i in range(D - 1):
        p(gld(S + 4*i, own))
        p(TMO(sRETRY) if i == 0 else 's_nop 2')
        if rb2 and i == 0:
            p(f's_waitcnt vmcnt({4 if opt.get("kpos") in ("mid", "end") else 2})')
            for k in range(4): p(wrd(k, 0, k))
            continue
        for _ in range(sp): p('s_nop 7')
    rf = lambda t: wrd(t & 3, 0, t).split('\n')
    def head(q):
        q(gld(LB, own + 4))
        if w == 0: q(f'buffer_store_dword v{NEG}, v{AP}, {SRD}, s{sPUB} offen')
        q(qs(0, own)); q(v1s(own)); q(rf(own + 4)[0]); q(qs(1, own)); q(rf(own + 4)[1]); q(ks_(0, own)); q(ks_(1, own))
    spec = opt.get('spec', 0)
    p(f'HL{tag}:')
    for i in range(D):
        m = S + 4*i
        p('@nowait ' + gld(S + 4*((i + D - 1) % D), own))
        p(f's_waitcnt vmcnt({D-1})')
        cp = [f'v_mov_b64 {vr(MEMA + 4*own, 2)}, {vr(m, 2)}', f'v_mov_b64 {vr(MEMA + 4*own + 2, 2)}, {vr(m + 2, 2)}']
        if spec and i == D - 1:
            p(smf(Q0, m, wq(0, own))); p(mwr(m, own))
            p(smf(Q1, m, wq(1, own))); p(mx(1, m, 0))
            p(smf(K0, m, wk(0, own))); p(mx(1, m, 1)); p(CMP)
            p(smf(K1, m, wk(1, own))); p(f's_cbranch_vccnz HR{tag}')
            p(f'@vm {D-1}')
            p(gld(LB, own + 4)); p(cp[0])
            p(smf(V1, m, vr(KW + 8*own, 8)))
            if w == 0: p(f'buffer_store_dword v{NEG}, v{AP}, {SRD}, s{sPUB} offen')
            p(rf(own + 4)[0]); p(rf(own + 4)[1]); p(cp[1])
            p(f'HJ{tag}:')
        else:
            p(mwr(m, own)); p(mx(1, m, 0)); p(mx(1, m, 1)); p(CMP); p(cp[0]); p(cp[1])
            p(f's_cbranch_vccz HK{tag}' if i < D - 1 else f's_cbranch_vccnz HR{tag}')
    slow(f'HR{tag}:'); slow(TMO(sRETRY))
    if spec:
        slow('s_nop 7')
        for r in range(0, 16, 2): slow(f'v_mov_b64 {vr(AQK + r, 2)}, 0')
    slow(f's_branch HL{tag}')
    if spec:
        slow(f'HK{tag}:'); slow('s_waitcnt lgkmcnt(1)\n@wait_reset'); head(slow); slow(f's_branch HJ{tag}')
    else:
        p(f'HK{tag}:')
        p(f'@vm {D-1}')
        p('s_waitcnt lgkmcnt(1)')
        head(p)
    if opt.get('trace'):
        nst[0] = 9; stamp(); nst[0] = 0
    p('s_waitcnt lgkmcnt(2)')
    p('s_barrier')
    stamp()
    oth = [t for t in range(4) if t != own]
    for t in oth: p(rd128(MEMA + 4*t, mloc(t)))
    if opt.get('log') and w == 1:
        p(f's_{"memrealtime" if opt["log"] == 2 else "memtime"} s[96:97]\ns_waitcnt lgkmcnt(0)\ns_mov_b32 m0, s{sSTEP}\nv_writelane_b32 v{T3}, s96, m0')
    p(v0s(own))
    vm = []
    pub = f'buffer_store_dwordx4 {vr(QT,4)}, v{AL0}, {SRD}, s{sKVM} offen offset:{w*1024} sc1' if full else None
    if w == 3 and full:
        p(f's_sub_u32 s3, s{sSTEP}, 1\ns_max_i32 s3, s3, 0\nv_mov_b32 v{T2}, s3')
        vm.append((0, f's_mov_b64 exec, 1\nbuffer_store_dword v{T2}, v{AL0}, {SRD}, s{sFCH} offen sc1\ns_mov_b64 exec, -1'))
        vm.append((2, f'v_and_b32 v{T2}, 63, v{AP}\n@junk buffer_load_dword v{T3}, v{T2}, {SRD}, s{sFKV} offen sc1'))
    if w in (1, 2):
        p(f'v_lshlrev_b32 v{T2}, 3, v{AL0}')
        vm.append((opt.get('gg', (4, 8))[w-1], f'@junk buffer_load_dword v{T3}, v{T2}, {SRD}, s{sPF} offen sc1'))
    seq = []
    xa = opt.get('xa', 2)
    for t in oth: seq += [qs(0, t), v1s(t), qs(1, t), ks_(0, t), ks_(1, t)]
    v0l = [v0s(t) for t in oth + [4, 5, 6, 7]]
    seq += v0l[:xa]
    B0 = len(seq)
    for t in range(4, 8): seq += [qs(0, t), v1s(t), qs(1, t)]
    P2 = len(seq)
    rest = v0l[xa:]
    nmid_ = len(rest) - 4
    seq += [ks_(0, t) for t in range(4, 8)] + rest[:nmid_] + [ks_(1, t) for t in range(4, 8)] + rest[nmid_:]
    NP = len(seq) - P2
    gap = [[] for _ in seq]
    def put(g, *ins):
        for x in ins: gap[g] += x.split('\n')
    sbw, sbb = opt.get('sbw', 8), opt.get('sbb', 13)
    put(1, rf(oth[0] + 4)[0]); put(2, rf(oth[0] + 4)[1]); put(6, rf(oth[1] + 4)[0]); put(7, rf(oth[1] + 4)[1])
    put(sbw, mwr(LB, own + 4))
    for i, x in enumerate((mx(1, LB, 0), mx(1, LB, 1), CMP)): put(sbw + 1 + i, x)
    put(sbb, f's_cbranch_vccnz SB{tag}\nSBR{tag}:', 's_waitcnt lgkmcnt(0)', 's_barrier', rd128(MEMA + 16, mloc(4)))
    g = sbb + 1
    for x in [rd128(MEMA + 4*tt, mloc(tt)) for tt in range(5, 8)] + rf(oth[2] + 4):
        put(g, x); g += 1
    VX0, VX1, OA0, OA1 = (MEMA + 4*t for t in [own] + oth)
    LACC, ONES, PX, E0 = MEMA+16, MEMA+20, MEMA+24, MEMA+28
    assert xa >= 1
    gv = max(sbb + 1, 16)
    put(gv, f'buffer_load_dwordx4 {vr(VX0,4)}, v{AL0}, {SRD}, s{sV} offen sc1')
    put(gv + 1, f'buffer_load_dwordx4 {vr(VX1,4)}, v{AL0}, {SRD}, s{sV} offen offset:1024 sc1')
    kpos, rpos = opt.get('kpos', 'S7'), opt.get('rpos', 'B4')
    rst = [f'buffer_store_dwordx4 {vr(NEG,4)}, v{AL0}, {SRD}, s{sV2} offen offset:{i*1024}' for i in range(2)]
    kdm = [f's_mov_b32 m0, {L_K + w*2048}\nbuffer_load_dwordx4 v{AL0}, {SRD}, s{sK} offen sc1 lds',
           f'buffer_load_dwordx4 v{AL0}, {SRD}, s{sK} offen offset:1024 sc1 lds']
    if rpos == 'P1':
        rg = opt.get('rg', ((0, 4), (3, 5), (4, 0), (5, 3)))[w]
        for i in range(2): put(rg[i], rst[i])
    gk = gv + 2
    if kpos == 'P1': put(gk, kdm[0]); put(gk + 1, kdm[1])
    else: gk = gv
    assert kpos != 'P1'
    gs = gk + opt.get('gsl', 2)
    for i, x in vm: put(min(gs + i, P2 - 1), x)
    if pub: put(gs + opt.get('pg', (0, 1, 2, 3))[w], pub)
    kr = [rd128(KW + 4*f, L_K + f*1024) for f in range(8)]
    for i in range(4):
        g0 = max(B0 + 3*i + 1, g)
        put(g0, kr[2*i]); put(min(g0 + 1, P2 - 1) if i < 3 else P2 - 1, kr[2*i + 1])
    e0, e1 = epq(Q0), epq(Q1)
    qtr = [trd(QT, L_Q, ks, h) for ks in range(4) for h in range(2)]
    ek0, ek1, ev0, ev1 = epi(K0), epi(K1), epi(V0), epi(V1)
    G = lambda k: min(P2 + k, len(seq) - 1)
    kend = P2 + 4 + nmid_ + 3
    put(G(0), e0[0], e0[1]); put(G(1), e0[2], e0[3]); put(G(2), e0[4], e1[0]); put(G(3), qkw(L_Q, 0, Q0), e1[1])
    put(G(4), e1[2], e1[3]); put(G(5), e1[4]); put(G(6), qkw(L_Q, 1, Q1))
    put(G(7), ek0[0], ek0[1]); put(G(8), ek0[2]); put(G(9), qkw(L_KM, 0, K0))
    gb = opt.get('gb', 10)
    put(G(gb), 's_waitcnt lgkmcnt(1)', 's_barrier')
    e1g = kend + 2 - P2
    put(G(e1g), ek1[0], ek1[1])
    put(G(gb + 1), qtr[0], qtr[1])
    put(G(max(e1g + 1, gb + 1)), ek1[2], qkw(L_KM, 1, K1))
    put(G(gb + 2), qtr[2], qtr[3])
    put(len(seq) - 1, qtr[4], qtr[5])
    for i, (m_, gg) in enumerate(zip(seq, gap)):
        p(m_)
        for x in gg: p(x)
        if i == B0 - 1 or i == G(gb): stamp()
    PM = T0
    def sx(tile, ks): return mf32(S + 4*tile, KW + 16*tile + 4*ks, QT + 4*ks, '0' if ks == 0 else S + 4*tile)
    def sm(ks): return mf32(SM, AQK + 4*ks, QT + 4*ks, '0' if ks == 0 else SM)
    def ex(d, r): return f'v_exp_f32 v{d}, v{r}'
    def cv(d, a_): return f'v_cvt_pk_bf16_f32 v{d}, v{a_}, v{a_+1}'
    ktr = [trd(AQK, L_KM, ks, h) for ks in range(4) for h in range(2)]
    p(sx(0, 0)); p(qtr[6])
    p(sx(1, 0)); p(qtr[7])
    p(sx(0, 1)); p(ev1[0]); p(ev1[1])
    p(sx(1, 1))
    p('s_waitcnt lgkmcnt(6)'); p('s_barrier'); stamp()
    p(sx(0, 2)); p(ktr[0]); p(ktr[1])
    p(sx(0, 3)); p(ktr[2]); p(ktr[3])
    p(sx(1, 2)); p(ktr[4]); p(ktr[5])
    p(sx(1, 3)); p(ktr[6]); p(ktr[7])
    p(ex(E0, SX0)); p(ex(E0+1, SX0+1))
    p(sm(0)); p(rd128(ONES, L_ONE))
    p(sm(1))
    p(sm(2))
    p(sm(3)); p(ex(E0+2, SX0+2))
    p(ex(E0+3, SX0+3)); p(cv(PX, E0)); p(ex(E0, SX1)); p(cv(PX+1, E0+2)); p(ex(E0+1, SX1+1))
    p(ex(E0+2, SX1+2)); p(ex(E0+3, SX1+3)); p(cv(PX+2, E0)); p(ex(E0, SM)); p(cv(PX+3, E0+2)); p(ex(E0+1, SM+1))
    stamp()
    p(ev1[2])
    p(mf32(LACC, ONES, PX, '0')); p(cv(PM, E0)); p(ev0[0])
    p(mf32(OA0, VX0, PX, '0')); p(ev0[1]); p(f'v_mov_b32 v{V1+1}, 0')
    p(mf32(OA1, VX1, PX, '0')); p(ev0[2]); p(f'v_mov_b32 v{V0+1}, 0')
    p(mf16(LACC, ONES, PM, LACC))
    if full: p(qkw(L_KM + 4, 1, V1))
    p(mf16(OA0, V0, PM, OA0))
    if full: p(qkw(L_KM + 4, 0, V0))
    p(mf16(OA1, V1, PM, OA1))
    p(f'v_rcp_f32 v{T2}, v{LACC}')
    p(f'v_mov_b64 {vr(AQK,2)}, 0')
    p(f'v_max_f32 v{E0}, v{T2}, v{LACC}')
    p(f'v_cmp_nge_f32 vcc, s{sLIM}, v{E0}')
    for r in range(4): p(f'v_mul_f32 v{OA0+r}, v{OA0+r}, v{T2}')
    p(f's_and_b64 s[34:35], vcc, s[{sVAL}:{sVAL+1}]'); p(f's_cbranch_scc1 FB{tag}'); p(f'FBC{tag}:')
    p(cv(OA0, OA0)); p(cv(OA0+1, OA0+2))
    p(f'ds_write_b64 v{AOW}, {vr(OA0,2)}')
    for r in (0, 2): p(f'v_pk_mul_f32 {vr(OA1+r,2)}, {vr(OA1+r,2)}, {vr(T2,2)} op_sel_hi:[1,0]')
    p(cv(OA1, OA1)); p(cv(OA1+1, OA1+2))
    p(f'ds_write_b64 v{AOW}, {vr(OA1,2)} offset:256')
    slow(f'FB{tag}:')
    slow(f"""s_nop 7
    v_max3_f32 v{T2}, v{SX0}, v{SX0+1}, v{SX0+2}
    v_max3_f32 v{T2}, v{T2}, v{SX0+3}, v{SX1}
    v_max3_f32 v{T2}, v{T2}, v{SX1+1}, v{SX1+2}
    v_max3_f32 v{T2}, v{T2}, v{SX1+3}, v{SM}
    v_max_f32 v{T2}, v{T2}, v{SM+1}
    v_mov_b32 v{E0}, v{T2}
    v_permlane16_swap_b32 v{T2}, v{E0}
    v_max_f32 v{T2}, v{T2}, v{E0}
    v_mov_b32 v{E0}, v{T2}
    v_permlane32_swap_b32 v{T2}, v{E0}
    v_max_f32 v{T2}, v{T2}, v{E0}""")
    for k in range(5):
        for j in range(2): slow(f'v_sub_f32 v{E0+j}, v{S+2*k+j}, v{T2}')
        for j in range(2): slow(ex(E0+j, E0+j))
        slow(cv(PX + k if k < 4 else PM, E0))
    slow(mf32(LACC, ONES, PX, '0')); slow(mf32(OA0, VX0, PX, '0')); slow(mf32(OA1, VX1, PX, '0'))
    slow(mf16(LACC, ONES, PM, LACC)); slow(mf16(OA0, V0, PM, OA0)); slow(mf16(OA1, V1, PM, OA1))
    slow(f'v_rcp_f32 v{T2}, v{LACC}')
    for r in range(4): slow(f'v_mul_f32 v{OA0+r}, v{OA0+r}, v{T2}')
    slow(f's_nop 7\ns_branch FBC{tag}')
    stamp()
    acc = [AQK, AQK+4, AQK+8, AQK+12, MEMA+16, MEMA+20, MEMA+24, MEMA+28]
    land = [KW, KW+8, KW+16, KW+24, MEMA, QT+8, S, ACCV]
    for r in list(range(AQK+2, AQK+16, 2)) + list(range(MEMA+16, MEMA+32, 2)): p(f'v_mov_b64 {vr(r,2)}, 0')
    w1 = []
    for t in range(8): w1 += [rd128(land[t], wl(1, t)), rd128(land[t] + 4, wl(1, t) + 1024)]
    npre = opt.get('w1pre', 0)
    for x in w1[:npre]: p(x)
    p(f's_waitcnt lgkmcnt({npre})'); p('s_barrier')
    stamp()
    OP = QT
    p(rd128(OP, L_O)); p(rd128(OP+4, L_O + 1024))
    nmid = opt.get('w1mid', 6)
    for x in w1[npre:npre+nmid]: p(x)
    w1 = w1[npre+nmid:]
    def pst(t): return f'buffer_store_dword v{acc[t]}, v{AP}, {SRD}, s{sPART+t} offen'
    book = [f's_add_u32 s{sSTEP}, s{sSTEP}, 1', f's_xor_b32 s{sMEM}, s{sMEM}, 8192', f's_xor_b32 s{sMEM2}, s{sMEM2}, 8192',
            f's_add_u32 s{sSLOT}, s{sSLOT}, 1', f's_cmp_eq_u32 s{sSLOT}, 3\ns_cselect_b32 s{sDLT}, {(-2*INBOX_SLOT) & 0xffffffff}, s{sC2}\ns_cselect_b32 s{sSLOT}, 0, s{sSLOT}']
    book += [f's_add_u32 s{sV}, s{sV}, {32*16384}']
    if w in (1, 2): book += [f's_add_u32 s{sPF}, s{sPF}, {32*16384}']
    es = [epi(acc[t]) for t in range(8)]
    for t in range(8):
        p(smf(acc[t], OP, wo0(t)))
        if w1: p(w1.pop(0))
        elif book: p(book.pop(0))
        if t >= 2: p(es[t-2][2])
        p(smf(acc[t], OP+4, vr(land[t], 8)))
        if t >= 2: p(pst(t-2))
        if w1 and (t < 1 or opt.get('w1both', 1)): p(w1.pop(0))
        elif book: p(book.pop(0))
        if t >= 1: p(es[t-1][0]); p(es[t-1][1])
    p(es[6][2]); p(pst(6))
    p(es[7][0]); p(es[7][1]); p(es[7][2]); p(pst(7))
    pastS7[0] = True
    stamp()
    if kpos == 'S7': p('\n'.join(kdm))
    if rpos == 'S7': p('\n'.join(rst))
    if full:
        p(rd128(QT, L_KM + w*1024))
        book.append(f's_add_u32 s{sKVM}, s{sKVM}, {32*4096}')
        if w == 3:
            p(f"""s_add_u32 s{sNEED}, s{sSTEP}, 2
            s_lshr_b32 s{sNEED}, s{sNEED}, 2
            s_add_u32 s{sNEED}, s{sNEED}, 1
            s_min_u32 s{sNEED}, s{sNEED}, 16""")
            slow(f'KVW:\nv_and_b32 v{T2}, 63, v{AP}')
            common.wait_flags(slow, 'KVL', T2, f's{sFKV}', f's{sNEED}', T3)
            slow('s_branch KVR')
    if w == 0: p(rd128(S, L_SEL)); p(f'ds_read_b32 v{S+4}, v{AP} offset:{L_DUM + 1024}\nv_mov_b64 {vr(S+8,2)}, 0\nv_mov_b64 {vr(S+10,2)}, 0')
    adv = [f's_add_u32 s{sV2}, s{sIN}, {w*2048}', f's_add_u32 s{sIN}, s{sIN}, s{sDLT}'] + ([f's_add_u32 s{sIN2}, s{sIN2}, s{sDLT}'] if w == 0 else [])
    late = (kdm if kpos == 'B4' or (w == 0 and kpos in ('mid', 'end')) else []) + ([] if rpos != 'B4' else rst)
    adv += [f's_add_u32 s{sK}, s{sK}, {32*16384}']
    adv = late + adv
    hk1 = []
    for t in range(8): hk1 += [f's_add_u32 s{sPART+t}, s{sPART+t}, s{sDLT}', f'v_mov_b64 {vr(AQK+2*t,2)}, 0']
    pre = [x for i in range(4) for x in wrd(i, 0, i).split('\n')]
    z2 = [f'v_mov_b64 {vr(AQK+r,2)}, 0' for r in range(16, 24, 2)] + [f'v_mov_b64 {vr(NEG,2)}, -1', f'v_mov_b64 {vr(NEG+2,2)}, -1']
    hk2 = []
    for i, x in enumerate(pre): hk2 += [x] + ([z2[i]] if i < len(z2) else [])
    for b_ in book: p(b_)
    if w == 0:
        R0, R = S + 4, S + 8
        def ibl(base): return [f'buffer_load_dwordx4 {vr(base+4*u,4)}, v{AL0}, {SRD}, s{sIN if u < 4 else sIN2} offen offset:{(u&3)*1024} sc1' for u in range(8)]
        def red(q, base): q(f'v_smfmac_f32_16x16x64_bf16 {vr(R,4)}, {vr(S,4)}, {vr(base, 8)}, v{S+4}')
        loads = ibl(MEMA)
        if rb2:
            for _ in range(opt.get('dly', (0, 0, 0))[var]): p('s_nop 3')
            p('\n'.join(loads))
            p('\n'.join(hk1 + z2))
            for _ in range(opt['rb2'] - 1): p('s_nop 3')
            p('\n'.join('@junk ' + l for l in ibl(KW)))
        else:
            if var >= 1: p('\n'.join(hk1))
            if var >= 2: p('\n'.join(hk2))
            for _ in range(opt.get('dly', (0, 0, 0))[var]): p('s_nop 3')
            if opt.get('w0st'): sv = nst[0]; nst[0] = 1; stamp(); nst[0] = sv
            p('\n'.join(loads))
            if var < 1: p('\n'.join(hk1))
            if var < 2: p('\n'.join(hk2))
        p(f'RBR{tag}:')
        for u in range(4):
            red(p, MEMA + 8*u)
            if opt.get('w0st') and u in (0, 3): sv = nst[0]; nst[0] = 2 if u == 0 else 3; stamp(); nst[0] = sv
        p(f'v_cmp_u_f32 vcc, v{R}, v{R}')
        p(f'v_cvt_pk_bf16_f32 v{R}, v{R}, v{R+2}')
        p(f's_cbranch_vccnz RBC{tag}\nRBD{tag}:')
        if opt.get('b4') == 2: p('s_barrier')
        p(f'buffer_store_dword v{R}, v{T3}, {SRD}, s{sPUB} offen')
        if opt.get('b4') == 1: p('s_barrier')
        p(f's_xor_b32 s{sPUB}, s{sPUB}, 8192')
        p('\n'.join(adv))
        if opt.get('hist'):
            p(f's_lshl_b32 s3, s{sSTEP}, 13\ns_add_u32 s3, s3, {WS_G}\ns_lshl_b32 s34, s{sH}, 8\ns_add_u32 s3, s3, s34\nbuffer_store_dword v{R}, v{T3}, {SRD}, s3 offen')
        slow(f'RBC{tag}:')
        if not rb2:
            for u in range(8): slow(mx(u == 0, MEMA + 4*u, 0)); slow(mx(u == 0, MEMA + 4*u, 1))
            slow(CMP); slow(f's_cbranch_vccz RBD{tag}')
        zr = f'v_mov_b64 {vr(R,2)}, 0\nv_mov_b64 {vr(R+2,2)}, 0'
        slow(f'RB{tag}:'); slow('\n'.join('@nowait ' + l for l in loads)); slow(TMO(sRB)); slow(zr)
        if rb2:
            for u in range(4):
                slow(f's_waitcnt vmcnt({14 - 2*u})'); red(slow, KW + 8*u)
            slow(f'v_cmp_u_f32 vcc, v{R}, v{R}\nv_cvt_pk_bf16_f32 v{R}, v{R}, v{R+2}\ns_cbranch_vccz RBD{tag}')
            for u in range(8): slow(mx(u == 0, KW + 4*u, 0)); slow(mx(u == 0, KW + 4*u, 1))
            slow(CMP); slow(f's_cbranch_vccz RBD{tag}')
            slow('\n'.join('@nowait ' + l for l in ibl(KW))); slow(zr)
        slow(f's_branch RBR{tag}')
    else:
        p('\n'.join(hk1))
        if kpos == 'mid': p('\n'.join(kdm))
        p('\n'.join(hk2))
        if kpos == 'end':
            for _ in range(opt.get('kdl', 0)): p('s_nop 7')
            p('\n'.join(kdm))
        if full and w == 3: p(f's_waitcnt vmcnt({8 + 2*(kpos in ("S7", "mid", "end")) + 2*(rpos == "S7")})\nv_cmp_gt_u32 vcc, s{sNEED}, v{T3}\ns_cbranch_vccnz KVW\nKVR:')
        if opt.get('b4'): p('s_barrier')
        p('\n'.join(adv))
        slp = opt.get('slp3', opt.get('slp')) if w == 3 else opt.get('slp')
        if slp: p(f's_sleep {slp}')
        for _ in range(opt.get('slpn', 0)): p('s_nop 7')
    stamp()
    p(f's_cmp_lt_u32 s{sSTEP}, {nsteps}\ns_cbranch_scc1 HA{tag}')
    if True:
        n = len(fb)
        sets = (LB, S)
        slow(f'SB{tag}:')
        slow('@wait_reset')
        for i, t in enumerate(fb): slow('@nowait ' + gld(sets[0] + 4*i, t))
        slow(TMO(sRB)); slow('s_nop 15')
        slow(f'SL{tag}:')
        for k in range(2):
            for i, t in enumerate(fb): slow('@nowait ' + gld(sets[1-k] + 4*i, t))
            slow(f's_waitcnt vmcnt({n})')
            for i, t in enumerate(fb): slow('@nowait ' + mwr(sets[k] + 4*i, t))
            for i, t in enumerate(fb): slow('@nowait ' + mx(i == 0, sets[k] + 4*i, 0)); slow('@nowait ' + mx(i == 0, sets[k] + 4*i, 1))
            slow(CMP); slow(f's_cbranch_vccz SK{tag}')
        slow(TMO(sRB)); slow(f's_branch SL{tag}')
        slow(f'SK{tag}:'); slow(f's_waitcnt lgkmcnt(0) vmcnt(0)\ns_branch SBR{tag}')
    slow(f'CE{tag}:'); slow('\n'.join(z2 if rb2 else hk2)); slow(f's_branch HA{tag}')
    fin = Prog()
    if var == 0:
        fin(f'FIN{w}:')
        if rb2: fin('s_waitcnt vmcnt(0)\n' + '\n'.join(pre))
        fr = (own, own + 4)
        fin(f'FL{w}:')
        for i, t in enumerate(fr): fin(gld(S + 4*i, t))
        fin(TMO(sRETRY))
        for i, t in enumerate(fr): fin(mx(i == 0, S + 4*i, 0)); fin(mx(i == 0, S + 4*i, 1))
        fin(CMP); fin(f's_cbranch_vccnz FL{w}')
        fin('s_waitcnt lgkmcnt(0)\ns_barrier')
        for i, t in enumerate(fr): fin(mwr(S + 4*i, t))
        fin(f'buffer_store_dwordx4 {vr(QT,4)}, v{AL0}, {SRD}, s{sKVM} offen offset:{w*1024} sc1\ns_add_u32 s{sKVM}, s{sKVM}, {32*4096}')
        fin('s_waitcnt lgkmcnt(0)\ns_barrier')
        for t in range(8): fin(rd128(MEMA + 4*t, mloc(t)))
        for t in range(8):
            fin(v1s(t))
            if t < 4: fin(wrd(t, 0, t + 4))
            fin(ks_(0, t)); fin(ks_(1, t)); fin(v0s(t))
        fin('s_barrier')
        for a_, off, u in ((V1, 4, 1), (K0, 0, 0), (K1, 0, 1), (V0, 4, 0)):
            fin('\n'.join(epi(a_))); fin(qkw(L_KM + off, u, a_))
        fin('s_waitcnt lgkmcnt(0)\ns_barrier')
        fin(rd128(QT, L_KM + w*1024))
        fin(f'buffer_store_dwordx4 {vr(QT,4)}, v{AL0}, {SRD}, s{sKVM} offen offset:{w*1024} sc1\ns_waitcnt vmcnt(0)\ns_barrier')
        if w == 0:
            fin(f'v_mov_b32 v{T0}, 64\ns_mov_b64 exec, 1\nbuffer_store_dword v{T0}, v{AL0}, {SRD}, s{sFCH} offen sc1\ns_mov_b64 exec, -1')
        if opt.get('wb') and w == 0:
            fin(f's_cmp_lg_u32 s{sH}, 0\ns_cbranch_scc1 FINX\nbuffer_wbl2 sc1\nFINX:' if opt['wb'] == 1 else 'buffer_wbl2 sc1')
        if opt.get('log') and w == 1:
            fin(f's_lshl_b32 s3, s{sH}, 8\ns_add_u32 s3, s3, {WS_DBG + 0x10000}\nbuffer_store_dword v{T3}, v{AP}, {SRD}, s3 offen')
        if opt.get('stamps') or opt.get('trace'):
            fin(f's_lshl_b32 s3, s{sH}, 2\ns_add_u32 s3, s3, {w}\ns_lshl_b32 s3, s3, 6\ns_add_u32 s3, s3, {WS_DBG + 0x20000}')
            for i in range(12): fin(f'v_mov_b32 v{i}, s{4+i}')
            fin('s_mov_b64 exec, 1')
            for i in range(3): fin(f'buffer_store_dwordx4 {vr(4*i,4)}, v{AL0}, {SRD}, s3 offen offset:{16*i}')
            fin('s_mov_b64 exec, -1')
        if opt.get('dbgstart'): fin(f's_mul_i32 s{sRETRY}, s77, 63')
        if opt.get('time'): fin(f's_mov_b32 s85, s{sRETRY}\ns_mov_b32 s86, s{sRB}')
        fin('s_branch L_DONE')
    return p.lines, slow.lines, fin.lines

DEF = dict(D=3, sp=2, pd=(0, 2), dly=(9, 0, 0), vb=(32, 32), rb2=1, w1mid=7, b4=1, rpos='P1', gg=(2, 7), pg=(4, 5, 6, 8), kpos='end', kdl=5, rg=((9, 11), (10, 12), (0, 4), (3, 5)))
def role(out, opt):
    from main import stamp
    o2 = dict(DEF); o2.update(opt); opt = o2
    T = opt.get('time')
    p = Prog()
    p('R_CHAIN:')
    startup(p, D_CHINIT, 2 if opt.get('kpos') == 'P1' else 1, opt.get('early', 1))
    if not opt.get('early', 1): p('s_mov_b32 s77, 0')
    if T: stamp(p, 2)
    p(f's_lshl_b32 s3, s{sW}, 11\ns_add_u32 s{sK}, s{sK}, s3\ns_cmp_eq_u32 s77, 1\ns_cbranch_scc1 C_go')
    common.wait_dbg(p, 'C_init', D_CHINIT, 32)
    common.wait_dbg(p, 'C_init2', D_INIT, 1)
    p(f'v_and_b32 v{T2}, 63, v{AP}')
    common.wait_flags(p, 'C_kv', T2, f's{sFKV}', 1, T0)
    p(f'''s_lshl_b32 s3, s{sW}, 11
    s_add_u32 m0, s3, {L_K}
    s_nop 0
    buffer_load_dwordx4 v{AL0}, {SRD}, s{sK} offen sc1 lds
    buffer_load_dwordx4 v{AL0}, {SRD}, s{sK} offen offset:1024 sc1 lds
    s_waitcnt vmcnt(0)
    C_go:
    s_waitcnt vmcnt(1)
    s_barrier
    s_add_u32 s{sK}, s{sK}, {32*16384}''')
    if T: stamp(p, 3); p('s_memtime s[94:95]\ns_waitcnt lgkmcnt(0)\ns_mov_b32 s98, s94')
    if opt.get('stamps') or opt.get('trace'):
        for i in range(12): p(f's_mov_b32 s{4+i}, 0')
    vb = opt.get('vb', (12, 20))
    p(f"""s_cmp_eq_u32 s{sW}, 1
    s_cbranch_scc1 CE1
    s_cmp_eq_u32 s{sW}, 2
    s_cbranch_scc1 CE2
    s_cmp_eq_u32 s{sW}, 3
    s_cbranch_scc1 CE3
    s_cmp_lt_u32 s{sH}, {vb[0]}
    s_cbranch_scc1 CE0v0
    s_cmp_lt_u32 s{sH}, {vb[1]}
    s_cbranch_scc1 CE0v1
    s_branch CE0v2""")
    o, st = process(p.lines); out += o + ['.p2align 7', 'C_code:']
    for w, var in ((0, 0), (0, 1), (0, 2), (1, 0), (2, 0), (3, 0)):
        body, slow, fin = step(w, 63, opt, var)
        import re
        for pat in opt.get('drop', ()): body = [l for l in body if not re.search(pat, l)]
        o, st = loop(body, State())
        o = hoist_waits(o)
        o_, st = loop(o, State())
        assert o_ == o
        if T:
            q = Prog(); stamp(q, 4); q('s_memtime s[96:97]\ns_waitcnt lgkmcnt(0)\ns_sub_u32 s82, s96, s94' if not opt.get('dbgstart') else ''); o += process(q.lines)[0]
        out += ['.p2align 6'] + o + [f's_branch FIN{w}'] + process(slow)[0]
        if fin: out += process(['s_waitcnt lgkmcnt(0)', 's_nop 7'] + fin)[0][2:]
```

```python
from common import *
def mf32(d, a, b, c): return f'v_mfma_f32_16x16x32_bf16 {vr(d,4)}, {a if isinstance(a,str) else vr(a,4)}, {vr(b,4)}, {c if isinstance(c,str) else vr(c,4)}'
def mf16(d, a, b, c): return f'v_mfma_f32_16x16x16_bf16 {vr(d,4)}, {vr(a,2)}, {vr(b,2)}, {vr(c,4)}'
def cv(d, a): return f'v_cvt_pk_bf16_f32 v{d}, v{a}, v{a+1}'

def s3(out, opt):
    from main import stamp
    T = opt.get('time')
    AL, ATR, AVM, ZERO, NINF, ONE1 = 1, 2, 3, 4, 5, 6
    T0 = 8
    ONES, K, Q, V, KM, VM = 16, 20, 52, 84, 116, 132
    S00, S01, S11, SM0, SM1 = 148, 152, 156, 160, 164
    PX0, PX1, PM0, PM1, L0, L1 = 168, 172, 176, 178, 180, 184
    O = 188
    sH, sS, sKV, sQ, sKM, sO, sFO, sFC, sNEED, sLD = 41, 42, 43, 44, 45, 46, 48, 49, 50, 51
    MASK = 52
    sSC, sL2E = 62, 63
    p = Prog()
    p(f'''R_S3:
    s_barrier
    s_and_b32 s3, s{sRANK}, 7
    s_lshl_b32 s3, s3, 2
    s_add_u32 s{sH}, s3, s{sW}
    s_sub_u32 s3, s{sXCC}, 2
    s_lshl_b32 s3, s3, 2
    s_lshr_b32 s34, s{sRANK}, 3
    s_add_u32 s{sS}, s3, s34
    s_lshl_b32 s{sLD}, s{sW}, 12
    s_mov_b32 s{sSC}, 0x3db504f3
    s_mov_b32 s{sL2E}, 0x3fb8aa3b
    v_and_b32 v8, 63, v0
    v_lshlrev_b32 v{AL}, 4, v8
    v_and_b32 v9, 15, v8               ; n
    v_lshrrev_b32 v10, 4, v8           ; g
    v_lshrrev_b32 v11, 1, v10
    v_lshlrev_b32 v11, 4, v11
    v_and_b32 v12, 1, v10
    v_lshl_add_u32 v11, v12, 2, v11
    v_lshrrev_b32 v12, 2, v9
    v_add_u32 v11, v11, v12
    v_and_b32 v12, 3, v9
    v_lshlrev_b32 v12, 3, v12
    v_lshl_add_u32 v11, v11, 5, v12
    v_add_u32 v{ATR}, s{sLD}, v11
    v_lshlrev_b32 v11, 5, v9
    v_lshl_add_u32 v11, v10, 3, v11
    v_add_u32 v{AVM}, s{sLD}, v11
    v_lshlrev_b32 v11, 2, v10
    v_cmp_le_u32 s[{MASK}:{MASK+1}], v11, v9
    v_add_u32 v11, 1, v11
    v_cmp_le_u32 s[{MASK+2}:{MASK+3}], v11, v9
    v_add_u32 v11, 1, v11
    v_cmp_le_u32 s[{MASK+4}:{MASK+5}], v11, v9
    v_add_u32 v11, 1, v11
    v_cmp_le_u32 s[{MASK+6}:{MASK+7}], v11, v9
    v_mov_b32 v{ZERO}, 0
    v_mov_b32 v{NINF}, 0xff800000
    v_mov_b32 v{ONE1}, 1
    v_mov_b32 v{PX0+2}, 0
    v_mov_b32 v{PX0+3}, 0
    v_mov_b32 v{PM0+1}, 0
    v_mov_b32 v{PM1+1}, 0
    v_lshlrev_b32 v11, 2, v9
    v_and_b32 v12, 7, v8
    v_lshlrev_b32 v12, 2, v12
    s_lshl_b32 s60, s{sH}, 6
    s_add_u32 s{sFC}, s60, {F_CH}
    s_add_u32 s60, s60, {F_KV}
    s_lshl_b32 s61, s{sH}, 5
    s_add_u32 s61, s61, {F_Q}
    ''')
    for d in range(8): p(f'v_mov_b32 v{VM+2*d+1}, 0')
    wait_flags(p, 'S3_kv', 11, 's60', 16, 13, sleep=4)
    wait_flags(p, 'S3_q', 12, 's61', 16, 13, sleep=4)
    if T: stamp(p, 5)
    o, st = process(p.lines); out += o
    b = Prog()
    b(f'''S3_L:
    s_lshl_b32 s3, s{sS}, 5
    s_add_u32 s3, s3, s{sH}
    s_lshl_b32 s{sKV}, s3, 14
    s_add_u32 s{sKV}, s{sKV}, {WS_KV}
    s_lshl_b32 s{sQ}, s3, 13
    s_add_u32 s{sQ}, s{sQ}, {WS_Q}
    s_lshl_b32 s{sKM}, s3, 12
    s_add_u32 s{sKM}, s{sKM}, {WS_KVM}
    s_lshl_b32 s{sFO}, s3, 2
    s_add_u32 s{sFO}, s{sFO}, {F_O}
    s_lshl_b32 s3, s{sS}, 6
    s_add_u32 s3, s3, s{sH}
    s_lshl_b32 s{sO}, s3, 12
    s_add_u32 s{sO}, s{sO}, {WS_O}
    s_add_u32 s{sNEED}, s{sS}, 1''')
    def ld8(dst, sb):
        for f in range(8):
            if f == 4: b(f's_add_u32 s{sb}, s{sb}, 4096')
            b(f'buffer_load_dwordx4 {vr(dst+4*f,4)}, v{AL}, {SRD}, s{sb} offen offset:{(f&3)*1024} sc1')
    ld8(K, sKV); ld8(Q, sQ); b(f's_add_u32 s{sKV}, s{sKV}, 4096'); ld8(V, sKV)
    for (d, kt, qt) in ((S00, 0, 0), (S01, 0, 1), (S11, 1, 1)):
        for ks in range(4): b(mf32(d, K + 16*kt + 4*ks, Q + 16*qt + 4*ks, '0' if ks == 0 else d))
    def scale(a_):
        rnd2(b, a_, a_ + 1)
        b(f'v_mul_f32 v{a_}, s{sSC}, v{a_}\nv_mul_f32 v{a_+1}, s{sSC}, v{a_+1}')
        rnd2(b, a_, a_ + 1)
    for a_ in range(S00, S00 + 12, 2): scale(a_)
    for d in (S00, S11):
        for r in range(4): b(f'v_cndmask_b32 v{d+r}, v{NINF}, v{d+r}, s[{MASK+2*r}:{MASK+2*r+1}]')
    b(f'''v_max3_f32 v{T0}, v{S00}, v{S00+1}, v{S00+2}
    v_max_f32 v{T0}, v{T0}, v{S00+3}
    v_max3_f32 v{T0+1}, v{S01}, v{S01+1}, v{S01+2}
    v_max3_f32 v{T0+1}, v{T0+1}, v{S01+3}, v{S11}
    v_max3_f32 v{T0+1}, v{T0+1}, v{S11+1}, v{S11+2}
    v_max_f32 v{T0+1}, v{T0+1}, v{S11+3}''')
    b(f'''s_mov_b32 s3, 0
    s_branch S3_ch_go
    S3_ch:
    v_readfirstlane_b32 s34, v{T0+2}
    s_sub_u32 s34, s{sNEED}, s34
    s_cmp_le_u32 s34, {opt.get('s3near', 3)}
    s_cbranch_scc1 S3_ch_near
    s_sleep {opt.get('s3far', 40)}
    S3_ch_near:
    s_sleep {opt.get('s3slp', 2)}
    S3_ch_go:
    buffer_load_dword v{T0+2}, v{ZERO}, {SRD}, s{sFC} offen sc1
    {tmo(3)}
    s_waitcnt vmcnt(0)
    v_cmp_gt_u32 vcc, s{sNEED}, v{T0+2}
    s_cbranch_vccnz S3_ch''')
    if opt.get('tt'): stamp(b, 2)
    b(f's_mov_b32 m0, s{sLD}')
    for i in range(4): b(f'buffer_load_dwordx4 v{AL}, {SRD}, s{sKM} offen offset:{i*1024} sc1 lds')
    b('s_waitcnt vmcnt(0)')
    if opt.get('tt'): stamp(b, 3)
    for ks in range(4):
        for h in range(2): b(f'ds_read_b64_tr_b16 {vr(KM + 4*ks + 2*h, 2)}, v{ATR} offset:{ks*1024 + h*256}')
    for d in range(8): b(f'ds_read_b32 v{VM+2*d}, v{AVM} offset:{d*512 + 4}')
    for qt, d in ((0, SM0), (1, SM1)):
        for ks in range(4): b(mf32(d, KM + 4*ks, Q + 16*qt + 4*ks, '0' if ks == 0 else d))
    scale(SM0); scale(SM1)
    for qt, d in ((0, SM0), (1, SM1)): b(f'v_max3_f32 v{T0+qt}, v{T0+qt}, v{d}, v{d+1}')
    def xlane(op):
        for sw in ('16', '32'):
            for qt in range(2): b(f'v_mov_b32 v{T0+2+qt}, v{T0+qt}')
            for qt in range(2): b(f'v_permlane{sw}_swap_b32 v{T0+qt}, v{T0+2+qt}')
            for qt in range(2): b(f'{op} v{T0+qt}, v{T0+qt}, v{T0+2+qt}')
    xlane('v_max_f32')
    RG = ([SM0, SM0+1] + list(range(S00, S00+4)), [SM1, SM1+1] + list(range(S01, S01+8)))
    for qt in range(2): b(f'v_mul_f32 v{T0+qt}, s{sL2E}, v{T0+qt}')
    for qt, regs in enumerate(RG):
        for r in regs: b(f'v_fma_f32 v{r}, v{r}, s{sL2E}, -v{T0+qt}')
        for r in regs: b(f'v_exp_f32 v{r}, v{r}')
    for qt, regs in enumerate(RG):
        b(f'v_add_f32 v{T0+qt}, v{regs[0]}, v{regs[1]}')
        for r in regs[2:]: b(f'v_add_f32 v{T0+qt}, v{T0+qt}, v{r}')
    xlane('v_add_f32')
    for qt in range(2): b(f'v_rcp_f32 v{T0+qt}, v{T0+qt}')
    for qt, regs in enumerate(RG):
        for r in regs: b(f'v_mul_f32 v{r}, v{r}, v{T0+qt}')
    b(cv(PM0, SM0)); b(cv(PM1, SM1)); b(cv(PX0, S00)); b(cv(PX0+1, S00+2))
    for i in range(4): b(cv(PX1+i, S01+2*i))
    for qt, (px, pm) in enumerate(((PX0, PM0), (PX1, PM1))):
        for d in range(8): b(mf32(O + 32*qt + 4*d, V + 4*d, px, '0'))
        for d in range(8): b(mf16(O + 32*qt + 4*d, VM + 2*d, pm, O + 32*qt + 4*d))
    for qt in range(2):
        if qt: b(f's_add_u32 s{sO}, s{sO}, {32*4096}')
        for kk in range(4):
            A = O + 32*qt + 8*kk
            for i in range(4): b(cv(A+i, A+2*i))
            b(f'buffer_store_dwordx4 {vr(A,4)}, v{AL}, {SRD}, s{sO} offen offset:{kk*1024} sc1')
    if opt.get('tt'): stamp(b, 4)
    b('s_waitcnt vmcnt(0)')
    if opt.get('tt'): stamp(b, 5)
    set_flag(b, ONE1, f's{sFO}', ZERO)
    b(f's_add_u32 s{sS}, s{sS}, 8\ns_cmp_lt_u32 s{sS}, 64\ns_cbranch_scc1 S3_L')
    o, st = loop(b.lines, st); out += ['.p2align 6'] + o + ['s_branch L_DONE']

def s4(out, opt):
    from main import stamp
    T = opt.get('time')
    AL, AF, AX, AG, ZERO, AR = 1, 2, 3, 4, 5, 6
    X, G, ACC, PR, B = 8, 10, 12, 24, 64
    sCS, sQT, sS, sO, sFO, sX, sGo, sFG, sLD, sPB = 41, 42, 43, 44, 45, 46, 48, 49, 66, 50
    SRDW, SRDX, SRDO = 's[68:71]', 's[52:55]', 's[56:59]'
    L_P = 131072
    p = Prog()
    p(f'''R_S4:
    s_barrier
    s_and_b32 s{sCS}, s{sRANK}, 15
    s_lshr_b32 s{sQT}, s{sRANK}, 4
    s_sub_u32 s{sS}, s{sXCC}, 4
    s_mov_b32 s68, s14
    s_mov_b32 s69, s15
    s_mov_b32 s70, 0x400000
    s_mov_b32 s71, 0x20000
    s_mov_b32 s52, s4
    s_mov_b32 s53, s5
    s_mov_b32 s54, 0x200000
    s_mov_b32 s55, 0x20000
    s_mov_b32 s56, s28
    s_mov_b32 s57, s29
    s_mov_b32 s58, 0x200000
    s_mov_b32 s59, 0x20000
    s_lshl_b32 s{sLD}, s{sW}, 15
    s_lshl_b32 s67, s{sW}, 20
    s_lshl_b32 s3, s{sCS}, 6
    s_add_u32 s67, s67, s3
    v_and_b32 v8, 63, v0
    v_lshlrev_b32 v{AL}, 4, v8
    v_lshrrev_b32 v9, 2, v8
    v_and_b32 v10, 3, v8
    v_lshlrev_b32 v10, 4, v10
    v_lshl_add_u32 v20, v9, 10, v10
    v_and_b32 v9, 15, v8                  ; n
    v_lshrrev_b32 v10, 4, v8              ; g
    v_lshrrev_b32 v11, 2, v9
    v_lshl_add_u32 v11, v10, 2, v11       ; row = 4g + r
    v_and_b32 v12, 3, v9
    v_lshlrev_b32 v12, 3, v12
    v_lshl_add_u32 v11, v11, 6, v12
    v_add_u32 v21, s{sLD}, v11
    ''')
    def dma(c):
        for i in range(16):
            p(f's_add_u32 m0, s{sLD}, {(c & 1)*16384 + i*1024}\ns_add_u32 s3, s67, {(c*256 + i*16)*1024}\nbuffer_load_dwordx4 v20, {SRDW}, s3 offen lds')
    dma(0); dma(1)
    p(f'''
    v_and_b32 v11, 7, v8
    v_lshlrev_b32 v{AF}, 2, v11
    v_mov_b32 v{ZERO}, 0
    s_and_b32 s3, s{sW}, 1
    s_lshl_b32 s34, s{sCS}, 1
    s_add_u32 s34, s34, s3
    s_lshl_b32 s35, s{sQT}, 4
    v_add_u32 v11, s35, v9
    v_lshlrev_b32 v12, 10, v11
    v_lshl_add_u32 v12, v10, 3, v12
    s_lshl_b32 s60, s34, 5
    v_add_u32 v{AX}, s60, v12
    v_and_b32 v12, 1, v10
    v_lshl_add_u32 v12, v12, 5, v11
    v_lshlrev_b32 v12, 4, v12
    v_lshrrev_b32 v13, 1, v10
    v_lshl_add_u32 v12, v13, 3, v12
    s_lshl_b32 s60, s34, 10
    v_add_u32 v{AG}, s60, v12
    s_lshl_b32 s3, s3, 10
    s_add_u32 s3, s3, {L_P}
    v_add_u32 v{AR}, s3, v{AL}
    s_lshl_b32 s3, s{sW}, 11
    s_add_u32 s3, s3, {L_P}
    v_add_u32 v7, s3, v{AL}
    ''')
    for c in range(4):
        p(f's_waitcnt vmcnt({16 if c < 3 else 0})')
        for ct in range(2):
            for jj in range(8):
                for h in range(2):
                    d = (ct*32 + 8*c + jj)*4 + 2*h
                    p(f'ds_read_b64_tr_b16 a[{d}:{d+1}], v21 offset:{(c & 1)*16384 + (32*jj + 16*h)*64 + ct*32}')
                if jj & 3 == 3: p('s_waitcnt lgkmcnt(0)')
        if c + 2 < 4: dma(c + 2)
    if T: stamp(p, 5)
    o, st = process(p.lines); out += o
    b = Prog()
    b(f'''S4_L:
    s_lshl_b32 s3, s{sS}, 1
    s_add_u32 s3, s3, s{sQT}
    s_lshl_b32 s3, s3, 2
    s_add_u32 s3, s3, s{sW}
    s_lshl_b32 s{sO}, s3, 15
    s_add_u32 s{sO}, s{sO}, {WS_O}
    s_lshl_b32 s{sFO}, s{sS}, 7
    s_lshl_b32 s3, s{sW}, 5
    s_add_u32 s{sFO}, s{sFO}, s3
    s_add_u32 s{sFO}, s{sFO}, {F_O}
    s_lshl_b32 s{sX}, s{sS}, 15
    s_add_u32 s{sGo}, s{sX}, {WS_G}
    s_cmp_ge_u32 s{sW}, 2
    s_cbranch_scc1 S4_nog
    s_lshr_b32 s{sFG}, s{sS}, 1
    s_lshl_b32 s{sFG}, s{sFG}, 2
    s_add_u32 s{sFG}, s{sFG}, {F_G}''')
    wait_flags(b, 'S4_g', ZERO, f's{sFG}', 1, 14, sleep=8)
    b(f'''buffer_load_dwordx2 {vr(X,2)}, v{AX}, {SRDX}, s{sX} offen
    buffer_load_dwordx2 {vr(G,2)}, v{AG}, {SRD}, s{sGo} offen sc1
    S4_nog:''')
    wait_flags(b, 'S4_o', AF, f's{sFO}', 1, 14, sleep=opt.get('s4slp', 2))
    if opt.get('tt'): stamp(b, 2)
    for j in range(32):
        b(f'buffer_load_dwordx4 {vr(B+4*j,4)}, v{AL}, {SRD}, s{sO} offen offset:{(j&3)*1024} sc1')
        if j & 3 == 3: b(f's_add_u32 s{sO}, s{sO}, 4096')
    for j in range(32):
        for ct in range(2): b(mf32(ACC + 4*ct, ar((ct*32 + j)*4, 4), B + 4*j, '0' if j == 0 else ACC + 4*ct))
    if opt.get('tt'): stamp(b, 3)
    b(f'''ds_write_b128 v7, {vr(ACC,4)}
    ds_write_b128 v7, {vr(ACC+4,4)} offset:1024
    s_waitcnt lgkmcnt(0)
    s_barrier
    s_cmp_ge_u32 s{sW}, 2
    s_cbranch_scc1 S4_next''')
    for w_ in range(4): b(f'ds_read_b128 {vr(PR+4*w_,4)}, v{AR} offset:{w_*2048}')
    for r in range(4):
        b(f'v_add_f32 v{PR+r}, v{PR+r}, v{PR+4+r}\nv_add_f32 v{PR+8+r}, v{PR+8+r}, v{PR+12+r}\nv_add_f32 v{PR+r}, v{PR+r}, v{PR+8+r}')
    for i in range(2):
        b(f'''v_cvt_pk_bf16_f32 v{PR+4}, v{PR+2*i}, v{PR+2*i+1}
        v_lshlrev_b32 v{PR+5}, 16, v{PR+4}
        v_and_b32 v{PR+6}, 0xffff0000, v{PR+4}
        v_lshlrev_b32 v{PR+7}, 16, v{G+i}
        v_and_b32 v{PR+8}, 0xffff0000, v{G+i}
        v_mul_f32 v{PR+5}, v{PR+5}, v{PR+7}
        v_mul_f32 v{PR+6}, v{PR+6}, v{PR+8}
        v_cvt_pk_bf16_f32 v{PR+4}, v{PR+5}, v{PR+6}
        v_lshlrev_b32 v{PR+5}, 16, v{PR+4}
        v_and_b32 v{PR+6}, 0xffff0000, v{PR+4}
        v_lshlrev_b32 v{PR+7}, 16, v{X+i}
        v_and_b32 v{PR+8}, 0xffff0000, v{X+i}
        v_add_f32 v{PR+5}, v{PR+5}, v{PR+7}
        v_add_f32 v{PR+6}, v{PR+6}, v{PR+8}
        v_cvt_pk_bf16_f32 v{PR+12+i}, v{PR+5}, v{PR+6}''')
    b(f'''buffer_store_dwordx2 {vr(PR+12,2)}, v{AX}, {SRDO}, s{sX} offen {opt.get('omod', '')}
    S4_next:
    v_xor_b32 v7, 0x2000, v7
    v_xor_b32 v{AR}, 0x2000, v{AR}
    s_add_u32 s{sS}, s{sS}, 4
    s_cmp_lt_u32 s{sS}, 64
    s_cbranch_scc1 S4_L''')
    o, st = loop(b.lines, st); out += ['.p2align 6'] + o + ['s_branch L_DONE']
```

```python
from asmlib import *
from layout import *
import common

MEMA, KW, QT, AQK, ACCV, S = 0, 32, 64, 80, 96, 104
IDX, AL0, AL1, AL2, ATR, AQKW, AOW, AP = 116, 117, 118, 119, 120, 121, 122, 123
T0, T1, T2, T3 = 124, 125, 126, 127
WV0, WO0 = 128, 192
SRD = 's[36:39]'
sH, sSTEP, sMEM, sMEM2, sPUB, sIN, sIN2, sW = 40, 41, 42, 43, 44, 45, 46, 47
sPART = 48
sK, sK2, sV, sV2, sPF = 56, 57, 58, 59, 74
sODD = 62
sVAL = 86
sLIM = 88
sC = 64
sRETRY = 65
sRB = 61
sKVM, sFCH, sFKV, sNEED = 60, 89, 90, 91
sSLOT, sDLT, sC2, sKB = 92, 93, 73, 76
SRDW = 's[68:71]'

def vr(a, n): return f'v[{a}:{a+n-1}]' if n > 1 else f'v{a}'
def ar(a, n): return f'a[{a}:{a+n-1}]'
def wq(u, t): return ar((u*8+t)*8, 8)
def wk(u, t): return ar(128 + (u*8+t)*8, 8)
def wv0(t): return vr(WV0 + 8*t, 8)
def wo0(t): return vr(WO0 + 8*t, 8)
def smf(acc, a, b): return f'v_smfmac_f32_16x16x64_bf16 {vr(acc,4)}, {vr(a,4)}, {b}, v{IDX}'
def mf32(d, a, b, c): return f'v_mfma_f32_16x16x32_bf16 {vr(d,4)}, {vr(a,4)}, {vr(b,4)}, {c if isinstance(c,str) else vr(c,4)}'
def mf16(d, a, b, c): return f'v_mfma_f32_16x16x16_bf16 {vr(d,4)}, {vr(a,2)}, {vr(b,2)}, {c if isinstance(c,str) else vr(c,4)}'
def lin(off):
    r = (AL0, AL1, AL2)[off >> 16]
    return r, off & 0xffff
def rd128(dst, off):
    r, o = lin(off); return f'ds_read_b128 {vr(dst,4)}, v{r} offset:{o}'

def startup(p, dbg_ctr_off=64, opt_pf=1, early=True):
    p(f'''
    v_and_b32 v65, 63, v0
    v_lshrrev_b32 v66, 6, v0
    v_readfirstlane_b32 s{sW}, v66
    v_and_b32 v67, 15, v65            ; n
    v_lshrrev_b32 v68, 4, v65         ; g
    v_lshlrev_b32 v{AL0}, 4, v65
    v_add_u32 v{AL1}, 0x10000, v{AL0}
    v_add_u32 v{AL2}, 0x20000, v{AL0}
    v_lshlrev_b32 v{AP}, 2, v65       ; lane*4
    v_lshlrev_b32 v69, 4, v67
    v_lshl_add_u32 v78, v68, 2, v69
    v_lshrrev_b32 v69, 2, v67
    v_lshlrev_b32 v69, 6, v69
    v_and_b32 v70, 3, v67
    v_lshl_add_u32 v69, v70, 2, v69
    v_lshl_add_u32 v{T3}, v68, 4, v69
    s_mov_b32 s36, s32
    s_mov_b32 s37, s33
    s_mov_b32 s38, {WS_SIZE}
    s_mov_b32 s39, 0x20000
    v_lshrrev_b32 v69, 1, v67
    v_lshlrev_b32 v69, 10, v69
    v_and_b32 v70, 1, v67
    v_lshlrev_b32 v70, 2, v70
    v_lshl_add_u32 v70, v68, 3, v70
    v_add_u32 v69, v69, v70
    s_lshl_b32 s3, s{sH}, 5
    v_add_u32 v69, s3, v69
    global_load_dword v76, v69, s[6:7]
    v_mov_b32 v72, -1
    v_mov_b32 v73, -1
    v_mov_b32 v74, -1
    v_mov_b32 v75, -1
    s_mul_i32 s3, s{sH}, {INBOX_STRIDE}
    s_add_u32 s{sIN}, s3, {WS_INBOX}
    s_lshl_b32 s3, s{sW}, 11
    s_add_u32 s3, s3, s{sIN}
    s_add_u32 s34, s3, {INBOX_SLOT}
    buffer_store_dwordx4 v[72:75], v{AL0}, {SRD}, s3 offen
    buffer_store_dwordx4 v[72:75], v{AL0}, {SRD}, s3 offen offset:1024
    buffer_store_dwordx4 v[72:75], v{AL0}, {SRD}, s34 offen
    buffer_store_dwordx4 v[72:75], v{AL0}, {SRD}, s34 offen offset:1024
    s_add_u32 s34, s34, {INBOX_SLOT}
    buffer_store_dwordx4 v[72:75], v{AL0}, {SRD}, s34 offen
    buffer_store_dwordx4 v[72:75], v{AL0}, {SRD}, s34 offen offset:1024
    s_lshl_b32 s3, s{sH}, 8
    s_add_u32 s{sPUB}, s3, {WS_MEMS}
    s_add_u32 s3, s{sPUB}, 8192
    buffer_store_dword v72, v{AP}, {SRD}, s3 offen
    v_lshlrev_b32 v69, 13, v68
    v_lshl_add_u32 v69, v67, 4, v69          ; g*8192 + n*16
    s_lshl_b32 s3, s{sW}, 17
    v_add_u32 v69, s3, v69
    v_mov_b32 v71, 0x7fffffff
    v_cmp_gt_u32 vcc, 0x2000, v69
    v_cndmask_b32 v70, v69, v71, vcc
    s_lshl_b32 s3, s{sH}, 8
    s_add_u32 s{sKVM}, s3, {WS_MEMH}
    buffer_store_dwordx4 v[72:75], v70, {SRD}, s{sKVM} offen sc1
    v_add_u32 v69, 0x8000, v69
    buffer_store_dwordx4 v[72:75], v69, {SRD}, s{sKVM} offen sc1
    v_add_u32 v69, 0x8000, v69
    buffer_store_dwordx4 v[72:75], v69, {SRD}, s{sKVM} offen sc1
    v_add_u32 v69, 0x8000, v69
    buffer_store_dwordx4 v[72:75], v69, {SRD}, s{sKVM} offen sc1
    v_lshlrev_b32 v69, 1, v68
    v_xor_b32 v69, v69, v67                  ; n ^ (g<<1)
    v_lshlrev_b32 v69, 4, v69
    v_lshl_add_u32 v80, v68, 13, v69
    v_xor_b32 v81, 0x80, v80              ; off1
    s_lshr_b32 s3, s{sW}, 1
    s_lshl_b32 s3, s3, 7
    v_xor_b32 v82, s3, v{AL0}
    v_xor_b32 v83, 0x20, v82
    v_xor_b32 v84, 0x40, v82
    v_xor_b32 v85, 0x60, v82
    v_lshrrev_b32 v69, 2, v67               ; r
    v_and_b32 v70, 3, v67                   ; c
    v_and_b32 v71, 1, v68
    v_lshl_add_u32 v71, v71, 2, v69          ; f = r | (g&1)<<2
    v_lshlrev_b32 v71, 5, v71
    v_lshl_add_u32 v71, v70, 3, v71          ; f*32 + 8c
    v_lshl_add_u32 v69, v68, 3, v69          ; row = 8g + r
    v_lshl_add_u32 v86, v69, 8, v71
    s_lshl_b32 s3, s{sW}, 6
    v_xor_b32 v86, s3, v86                ; pair 2w
    v_xor_b32 v87, 0x20, v86              ; pair 2w+1
    v_add_u32 v86, {L_W}, v86
    v_add_u32 v87, {L_W}, v87
    v_lshrrev_b32 v69, 2, v67
    v_and_b32 v71, 1, v69                   ; r&1
    v_lshrrev_b32 v69, 1, v69
    v_lshl_add_u32 v69, v69, 2, v71
    v_lshl_add_u32 v69, v68, 3, v69         ; row
    v_and_b32 v90, 1, v68
    v_lshl_add_u32 v71, v90, 2, v71         ; f = (r&1) | (g&1)<<2
    v_lshlrev_b32 v71, 5, v71
    v_lshl_add_u32 v71, v70, 3, v71
    v_lshl_add_u32 v88, v69, 10, v71
    s_lshl_b32 s3, s{sW}, 5
    v_xor_b32 v88, s3, v88
    v_xor_b32 v89, 0x80, v88
    v_xor_b32 v90, 0x40, v88
    v_xor_b32 v91, 0xc0, v88
    v_add_u32 v88, {L_W}, v88
    v_add_u32 v89, {L_W}, v89
    v_add_u32 v90, {L_W}, v90
    v_add_u32 v91, {L_W}, v91
    s_lshl_b32 s66, s{sW}, 12
    s_add_u32 s66, s66, {L_W}
    s_mov_b32 s70, 0x400000
    s_mov_b32 s71, 0x20000
    ''')
    def dma(c):
        mat = c >> 3; t = c & 7
        if t == 0:
            src = (14, 8, 10, 12)[mat]
            p(f's_mov_b32 s68, s{src}\ns_mov_b32 s69, s{src+1}')
            if mat == 0:
                p(f's_lshl_b32 s67, s{sH}, 17\ns_lshl_b32 s3, s{sW}, 12\ns_add_u32 s67, s67, s3')
            else:
                p(f's_lshl_b32 s67, s{sH}, 8\ns_lshl_b32 s3, s{sW}, 17\ns_add_u32 s67, s67, s3')
        for i in range(4):
            p(f's_add_u32 m0, s66, {t*16384 + i*1024}')
            if mat == 0:
                p(f's_add_u32 s3, s67, {(t^4)*16384 + i*1024}')
                p(f'buffer_load_dwordx4 v{82+i}, {SRDW}, s3 offen lds')
            else:
                p(f's_add_u32 s3, s67, {t*64*8192 + i*4*8192}')
                p(f'buffer_load_dwordx4 v{80+(i>>1)}, {SRDW}, s3 offen lds')
    for c in range(8): dma(c)
    p(f'''
    v_and_b32 v69, 1, v67
    v_mov_b32 v70, 0x4444
    v_mov_b32 v71, 0xeeee
    v_cmp_eq_u32 s[{sODD}:{sODD+1}], 1, v69
    v_cndmask_b32 v{IDX}, v70, v71, s[{sODD}:{sODD+1}]
    ; aTR: (d0 + r)*32 + 8c, d0 = 16*(g>>1) + 4*(g&1)
    v_lshrrev_b32 v69, 1, v68
    v_lshlrev_b32 v69, 4, v69
    v_and_b32 v70, 1, v68
    v_lshl_add_u32 v69, v70, 2, v69
    v_lshrrev_b32 v70, 2, v67
    v_add_u32 v69, v69, v70
    v_and_b32 v70, 3, v67
    v_lshlrev_b32 v70, 3, v70
    v_lshl_add_u32 v{ATR}, v69, 5, v70
    ; aQKW: n*32 + 8g
    v_lshlrev_b32 v69, 5, v67
    v_lshl_add_u32 v{AQKW}, v68, 3, v69
    v_lshrrev_b32 v69, 2, v67
    v_and_b32 v70, 1, v67
    v_lshl_add_u32 v69, v69, 1, v70
    v_lshlrev_b32 v69, 5, v69
    v_and_b32 v70, 1, v68
    v_lshl_add_u32 v69, v70, 4, v69
    v_lshrrev_b32 v70, 1, v68
    v_lshl_add_u32 v69, v70, 3, v69         ; m*32 + (g&1)*16 + (g>>1)*8
    v_add_u32 v70, {L_O}, v69
    v_add_u32 v71, {L_DUM}, v69
    v_and_b32 v69, 2, v67
    v_cmp_eq_u32 vcc, 0, v69
    s_lshl_b32 s3, s{sW}, 9               ; (w>>1)*1024 + (w&1)*512
    v_add_u32 v70, s3, v70
    v_cndmask_b32 v{AOW}, v71, v70, vcc
    v_lshrrev_b32 v69, 3, v67
    v_xor_b32 v69, v69, v67
    v_and_b32 v69, 7, v69                   ; e
    v_and_b32 v70, 3, v69
    v_cmp_eq_u32 vcc, 3, v70
    v_mov_b32 v71, 0x3f80
    v_mov_b32 v77, 0x3f800000
    v_cndmask_b32 v71, v71, v77, vcc
    v_cndmask_b32 v70, v70, 0, vcc
    v_or_b32 v70, 12, v70
    v_mul_u32_u24 v70, 0x1111, v70
    ds_write_b32 v{AP}, v70 offset:{L_DUM + 1024}
    v_cmp_gt_u32 vcc, 4, v69
    v_cndmask_b32 v92, 0, v71, vcc
    v_cndmask_b32 v93, v71, 0, vcc
    v_mov_b32 v94, v92
    v_mov_b32 v95, v93
    ds_write_b128 v{AL0}, v[92:95] offset:{L_SEL}
    s_waitcnt lgkmcnt(0)
    v_mov_b32 v92, 0x3f803f80
    v_mov_b32 v93, 0x3f803f80
    v_mov_b32 v94, 0x3f803f80
    v_mov_b32 v95, 0x3f803f80
    ds_write_b128 v{AL0}, v[92:95] offset:{L_ONE}
    s_mov_b32 s{sLIM}, 0x53800000          ; 2^40
    v_mov_b32 v{T1}, 0
    s_mov_b32 s{sVAL}, 0x33333333
    s_mov_b32 s{sVAL+1}, 0x33333333
    s_mov_b32 s{sODD}, 0
    s_mov_b32 s{sODD+1}, -1
    s_mov_b32 s{sC}, 0x3e0293ee           ; log2(e)/sqrt(128)
    ''')
    issued = 7
    def allowed(c): return 4 * (issued - c)
    c = 0
    while c < 32:
        mat = c >> 3; t = c & 7
        if mat == 0:
            first = t == 0
            p(f's_waitcnt vmcnt({allowed(c+3)})')
            if first:
                p(f'''@wait_reset
                v_min_u32 v76, -2, v76
                buffer_store_dword v76, v78, {SRD}, s{sPUB} offen
                buffer_store_dword v76, v78, {SRD}, s{sKVM} offen sc1
                v_mov_b32 v79, v0''')
            p('s_barrier')
            for tt in range(8):
                for q, o in enumerate((0, 2048, 32768, 34816)):
                    d = (0 if first else WO0) + tt*8 + 2*q
                    p(f'ds_read_b64_tr_b16 v[{d}:{d+1}], v{88 + (tt&1) + 2*(q&1)} offset:{o + (tt>>1)*256}')
                if tt & 1: p('s_waitcnt lgkmcnt(0)')
            p('s_barrier')
            if first: p('v_add_u32 v88, 0x10000, v88\nv_add_u32 v89, 0x10000, v89\nv_add_u32 v90, 0x10000, v90\nv_add_u32 v91, 0x10000, v91')
            for k in range(4): dma(c + 8 + k)
            issued += 4; c += 4
            continue
        p(f's_waitcnt vmcnt({allowed(c) + (3 if early and c >= 28 else 0)})')
        p('s_barrier')
        if early and c == 23:
            p(f'''v_mov_b32 v69, {D_CHINIT}
            v_and_b32 v70, 63, v{AP}
            s_lshl_b32 s3, s{sH}, 6
            s_add_u32 s3, s3, {F_KV}
            @junk global_load_dword v66, v69, s[30:31] sc1
            @junk global_load_dword v67, v69, s[30:31] offset:{D_INIT - D_CHINIT} sc1
            @junk buffer_load_dword v68, v70, {SRD}, s3 offen sc1''')
        if early and c == 27:
            p(f'''v_lshlrev_b32 v69, 3, v{AL0}
            s_mul_i32 s3, s{sW}, {INBOX_SLOT}
            s_add_u32 s3, s3, s{sIN}
            s_cmp_eq_u32 s{sW}, 3
            s_cselect_b32 s3, {WS_MEMS}, s3
            @junk buffer_load_dword v65, v69, {SRD}, s3 offen sc1
            s_mov_b32 s3, {WS_MEMS + 8192}
            @junk buffer_load_dword v65, v69, {SRD}, s3 offen sc1
            s_getpc_b64 s[34:35]
            C_pc:
            s_add_u32 s34, s34, C_code - C_pc
            s_addc_u32 s35, s35, 0
            s_lshl_b32 s3, s{sW}, 13
            v_add_u32 v69, s3, v69
            v_min_u32 v69, L_DONE - C_code - 4, v69
            @junk global_load_dword v65, v69, s[34:35]''')
        if early and c == 30:
            p(f'''s_mov_b32 s77, 0
            v_cmp_gt_u32 vcc, 32, v66
            s_cbranch_vccnz C_late
            v_cmp_gt_u32 vcc, 1, v67
            s_cbranch_vccnz C_late
            v_cmp_gt_u32 vcc, 1, v68
            s_cbranch_vccnz C_late
            s_mov_b32 s77, 1
            s_lshl_b32 s3, s{sH}, 14
            s_lshl_b32 s34, s{sW}, 11
            s_add_u32 s35, s3, {WS_KV + 8192}
            s_add_u32 s3, s3, s34
            s_add_u32 s3, s3, {WS_KV}
            s_add_u32 m0, s34, {L_K}
            v_lshlrev_b32 v69, 3, v{AL0}
            buffer_load_dwordx4 v{AL0}, {SRD}, s3 offen sc1 lds
            buffer_load_dwordx4 v{AL0}, {SRD}, s3 offen offset:1024 sc1 lds
            @junk buffer_load_dword v65, v69, {SRD}, s35 offen sc1
            C_late:''')
        if c == 12:
            p(f'''v_mov_b32 v69, {dbg_ctr_off}
            v_mov_b32 v70, 1
            v_cmp_eq_u32 vcc, 0, v79
            s_and_saveexec_b64 s[34:35], vcc
            s_cbranch_execz L_noinc
            global_atomic_add v69, v70, s[30:31]
            L_noinc:
            s_mov_b64 exec, s[34:35]''')
        for u in range(2):
            for q, o in enumerate((0, 1024, 8192, 9216)):
                if mat < 3:
                    d = (mat-1)*128 + (u*8+t)*8 + 2*q
                    p(f'ds_read_b64_tr_b16 a[{d}:{d+1}], v{86+u} offset:{o + (t&3)*16384}')
                else:
                    d = (WV0 + 8*t if u == 0 else 96) + 2*q
                    p(f'ds_read_b64_tr_b16 v[{d}:{d+1}], v{86+u} offset:{o + (t&3)*16384}')
        p('s_waitcnt lgkmcnt(0)\ns_barrier')
        if t == 3: p('v_add_u32 v86, 0x10000, v86\nv_add_u32 v87, 0x10000, v87')
        if t == 7: p('v_subrev_u32 v86, 0x10000, v86\nv_subrev_u32 v87, 0x10000, v87')
        if mat == 3:
            if t == 0: p(f'v_add_u32 v90, s66, v{AL0}')
            if t == 4: p('v_add_u32 v90, 0x10000, v90')
            for k, r in enumerate((96, 100, 8*t, 8*t+4)):
                p(f'ds_write_b128 v90, v[{r}:{r+3}] offset:{(t&3)*16384 + k*1024}')
            p('s_waitcnt lgkmcnt(0)')
        if c + 8 < 32:
            dma(c + 8); issued += 1
        c += 1
    p(f'''
    s_mov_b32 s{sSTEP}, 0
    s_mov_b32 s{sMEM}, {WS_MEMS}
    s_mov_b32 s{sMEM2}, {WS_MEMS + 4096}
    s_add_u32 s{sPUB}, s{sPUB}, 8192
    s_mov_b32 s{sSLOT}, 0
    s_mov_b32 s{sC2}, {INBOX_SLOT}
    s_lshl_b32 s3, s{sW}, 11
    s_add_u32 s3, s3, s{sIN}
    s_mov_b32 s{sKB}, {L_K}
    s_add_u32 s{sV2}, s3, {2*INBOX_SLOT}
    s_add_u32 s{sIN2}, s{sIN}, 4096
    s_mul_i32 s3, s{sW}, {INBOX_STRIDE}
    s_lshl_b32 s34, s{sH}, 8
    s_add_u32 s3, s3, s34
    s_add_u32 s{sPART}, s3, {WS_INBOX}
    ''')
    for t in range(1, 8): p(f's_add_u32 s{sPART+t}, s{sPART}, {4*t*INBOX_STRIDE}')
    p(f'''
    s_lshl_b32 s3, s{sH}, 14
    s_add_u32 s{sK}, s3, {WS_KV}
    s_add_u32 s{sK2}, s{sK}, 4096
    s_lshl_b32 s34, s{sW}, 11
    s_add_u32 s{sV}, s{sK}, 8192
    s_add_u32 s{sPF}, s{sK}, {opt_pf*32*16384}
    s_add_u32 s{sPF+1}, s{sV}, {32*16384}
    s_cmp_eq_u32 s{sW}, 2
    s_cselect_b32 s{sPF}, s{sPF+1}, s{sPF}
    s_add_u32 s{sV}, s{sV}, s34
    s_lshl_b32 s3, s{sH}, 6
    s_add_u32 s{sFKV}, s3, {F_KV}
    s_mov_b32 s{sRETRY}, 0
    s_mov_b32 s{sRB}, 0
    ''')
    for r in range(0, 24, 2): p(f'v_mov_b64 {vr(AQK+r,2)}, 0')

def kdma(p):
    L = []
    for half, so in ((0, sK), (1, sK2)):
        L.append(f's_mov_b32 m0, {L_K + half*4096}')
        for i in range(4): L.append(f'buffer_load_dwordx4 v{AL0}, {SRD}, s{so} offen offset:{i*1024} sc1 lds')
    return L
def vdma(p):
    L = []
    for half, so in ((0, sV), (1, sV2)):
        L.append(f's_mov_b32 m0, {L_V + half*4096}')
        for i in range(4): L.append(f'buffer_load_dwordx4 v{AL0}, {SRD}, s{so} offen offset:{i*1024} sc1 lds')
    return L

def step(w, nsteps, opt, var=0):
    p = Prog(); slow = Prog()
    tag = f'{w}' if w else f'0v{var}'
    Q0, Q1, K0, K1 = AQK, AQK+4, AQK+8, AQK+12
    V0, V1 = ACCV, ACCV+4
    SX0, SX1, SM = S, S+4, S+8
    def wl(u, t): return L_W + t*16384 + w*4096 + u*2048
    def wrd(slot, u, t): return rd128(KW + 8*slot, wl(u, t)) + '\n' + rd128(KW + 8*slot + 4, wl(u, t) + 1024)
    nst = [0]; pastS7 = [False]
    def stamp():
        i = nst[0]; nst[0] += 1
        if opt.get('trace'):
            if opt.get('w0st') and i in (1, 2, 3) and not pastS7[0]: return
            if i in opt['trace']:
                p(f's_cmp_eq_u32 s{sSTEP}, {opt.get("at", 41)}\ns_cbranch_scc0 TR{tag}_{i}\ns_memrealtime s[96:97]\ns_waitcnt lgkmcnt(0)\ns_mov_b32 s{4+i}, s96\nTR{tag}_{i}:')
            return
        if i not in opt.get('stamps', ()): return
        if opt.get('w0st') and i in (1, 2, 3) and not pastS7[0]: return
        p(f's_memtime s[96:97]\ns_waitcnt lgkmcnt(0)\ns_sub_u32 s99, s96, s98\ns_mov_b32 s98, s96\ns_add_u32 s{4+i}, s{4+i}, s99')
    def backoff(cyc, why):
        if cyc <= 0: return
        if opt.get('slpmode', 0):
            if cyc >= 64: p(f's_sleep {cyc // 64}')
            cyc %= 64
        while cyc > 0:
            k = min(cyc // 4, 16); p(f's_nop {k-1}'); cyc -= 4*k
    def epi(acc): return [f'v_add_f32 v{acc}, v{acc}, v{acc+1}', f'v_add_f32 v{acc+2}, v{acc+2}, v{acc+3}', f'v_cvt_pk_bf16_f32 v{acc}, v{acc}, v{acc+2}']
    def epq(acc):
        e = epi(acc)
        return e[:2] + [f'v_mul_f32 v{acc}, s{sC}, v{acc}', f'v_mul_f32 v{acc+2}, s{sC}, v{acc+2}'] + e[2:]
    def qkw(base, u, acc): return f'ds_write_b32 v{AQKW}, v{acc} offset:{base + (32*w + 16*u)*32}'
    def trd(dst, base, ks, h): return f'ds_read_b64_tr_b16 {vr(dst + 4*ks + 2*h, 2)}, v{ATR} offset:{base + ks*1024 + h*256}'
    def mloc(t): return L_Q + t*1024 if t < 4 else L_V + (t-4)*1024
    def gld(dst, t): return f'buffer_load_dwordx4 {vr(dst,4)}, v{AL0}, {SRD}, s{sMEM if t < 4 else sMEM2} offen offset:{(t&3)*1024} sc1'
    def mwr(src, t): return f'ds_write_b128 v{AL0}, {vr(src,4)} offset:{mloc(t)}'
    def mx(first, m, k):
        if first: return f'v_max3_u32 v{T0}, v{m}, v{m+1}, v{m+2}' if k == 0 else f'v_max_u32 v{T0}, v{T0}, v{m+3}'
        return f'v_max3_u32 v{T0}, v{T0}, v{m+2*k}, v{m+2*k+1}'
    CMP = f'v_cmp_eq_u32 vcc, -1, v{T0}'
    TMO = lambda r: f's_add_u32 s{r}, s{r}, 1\ns_cmp_gt_u32 s{r}, {LIMIT}\ns_cbranch_scc1 L_ABORT'
    own = (w + 3) & 3
    fb = (own + 4,)
    LB, NEG = QT + 4, QT + 12
    D = opt.get('D', 2)
    def v1s(t): return smf(V1, MEMA + 4*t, vr(KW + 8*(t & 3), 8))
    def v0s(t): return smf(V0, MEMA + 4*t, wv0(t))
    def qs(u, t): return smf(Q0 + 4*u, MEMA + 4*t, wq(u, t))
    def ks_(u, t): return smf(K0 + 4*u, MEMA + 4*t, wk(u, t))
    full = not opt.get('proto')
    adv0 = [f's_add_u32 s{sV2}, s{sIN}, 0', f's_add_u32 s{sIN}, s{sIN}, s{sDLT}', f's_add_u32 s{sIN2}, s{sIN2}, s{sDLT}', f's_xor_b32 s{sPUB}, s{sPUB}, 8192']
    rb2 = opt.get('rb2') and w == 0 and var in opt.get('rb2v', (0, 1, 2))
    p(f'HA{tag}:')
    sp = opt.get('sp', 0)
    PS = [S, S + 4, S + 8, QT + 8, LB]
    backoff(opt.get('pdc', [32*x for x in opt.get('pd', (0, 0))])[1 if w else 0], 'the new memory rows are still on their way to L2')
    for i in range(D - 1):
        p(gld(PS[i], own))
        if i == 0: p(TMO(sRETRY))
        if rb2 and i == 0:
            p('\n'.join(adv0)); p('s_waitcnt vmcnt(2)')
            for k in range(4): p(wrd(k, 0, k))
            continue
        backoff(opt.get('spc', 32*sp) + (12 if i else 0), 'spread the polls in flight over one round trip')
    rf = lambda t: wrd(t & 3, 0, t).split('\n')
    def head(q):
        q(gld(LB, own + 4))
        if w == 0: q(f'buffer_store_dword v{NEG}, v{AP}, {SRD}, s{sPUB} offen')
        q(qs(0, own)); q(v1s(own)); q(rf(own + 4)[0]); q(qs(1, own)); q(rf(own + 4)[1]); q(ks_(0, own)); q(ks_(1, own))
    spec = opt.get('spec', 0)
    p(f'HL{tag}:')
    for i in range(D):
        m = PS[i]
        p('@nowait ' + gld(PS[(i + D - 1) % D], own))
        p(f's_waitcnt vmcnt({D-1})')
        cp = [f'v_mov_b64 {vr(MEMA + 4*own, 2)}, {vr(m, 2)}', f'v_mov_b64 {vr(MEMA + 4*own + 2, 2)}, {vr(m + 2, 2)}']
        if spec and i == D - 1:
            p(smf(Q0, m, wq(0, own))); p(mwr(m, own))
            p(smf(Q1, m, wq(1, own))); p(mx(1, m, 0))
            p(smf(K0, m, wk(0, own))); p(mx(1, m, 1)); p(CMP)
            p(smf(K1, m, wk(1, own))); p(f's_cbranch_vccnz HR{tag}')
            p(f'@vm {D-1}')
            p(gld(LB, own + 4)); p(cp[0])
            p(smf(V1, m, vr(KW + 8*own, 8)))
            if w == 0: p(f'buffer_store_dword v{NEG}, v{AP}, {SRD}, s{sPUB} offen')
            p(rf(own + 4)[0]); p(rf(own + 4)[1]); p(cp[1])
            p(f'HJ{tag}:')
        else:
            p(mwr(m, own)); p(mx(1, m, 0)); p(mx(1, m, 1)); p(CMP); p(cp[0]); p(cp[1])
            p(f's_cbranch_vccz HK{tag}' if i < D - 1 else f's_cbranch_vccnz HR{tag}')
    slow(f'HR{tag}:'); slow(TMO(sRETRY))
    if spec:
        slow('s_nop 7')
        for r in range(0, 16, 2): slow(f'v_mov_b64 {vr(AQK + r, 2)}, 0')
    slow(f's_branch HL{tag}')
    if spec:
        slow(f'HK{tag}:'); slow('s_waitcnt lgkmcnt(1)\n@wait_reset'); head(slow); slow(f's_branch HJ{tag}')
    else:
        p(f'HK{tag}:')
        p(f'@vm {D-1}')
        p('s_waitcnt lgkmcnt(1)')
        head(p)
    if opt.get('trace'):
        nst[0] = 9; stamp(); nst[0] = 0
    p('s_waitcnt lgkmcnt(2)')
    p('s_barrier')
    stamp()
    if opt.get('first'):
        p('s_memtime s[96:97]\ns_waitcnt lgkmcnt(0)\ns_sub_u32 s96, s96, s94')
        for i, st_ in enumerate((0, 1, 2, 3, 4, 5, 10, 20, 40, 62)): p(f's_cmp_eq_u32 s{sSTEP}, {st_}\ns_cselect_b32 s{4+i}, s96, s{4+i}')
    oth = [t for t in range(4) if t != own]
    for t in oth: p(rd128(MEMA + 4*t, mloc(t)))
    if opt.get('log') and w == 1:
        p(f's_{"memrealtime" if opt["log"] == 2 else "memtime"} s[96:97]\ns_waitcnt lgkmcnt(0)\ns_mov_b32 m0, s{sSTEP}\nv_writelane_b32 v{T3}, s96, m0')
    p(v0s(own))
    vm = []
    pub = f'buffer_store_dword v{QT}, v{T3}, {SRD}, s{sKVM} offen sc1' if full and w == 0 else None
    if w == 3 and full:
        vm.append((0, f'v_and_b32 v{T2}, 63, v{AP}\n@junk buffer_load_dword v{T3}, v{T2}, {SRD}, s{sFKV} offen sc1'))
    if w in (1, 2):
        p(f'v_lshlrev_b32 v{T2}, 3, v{AL0}')
        vm.append((opt.get('gg', (4, 8))[w-1], f'@junk buffer_load_dword v{T3}, v{T2}, {SRD}, s{sPF} offen sc1'))
    seq = []
    xa = opt.get('xa', 2)
    for t in oth: seq += [qs(0, t), v1s(t), qs(1, t), ks_(0, t), ks_(1, t)]
    v0l = [v0s(t) for t in oth + [4, 5, 6, 7]]
    seq += v0l[:xa]
    B0 = len(seq)
    for t in range(4, 8): seq += [qs(0, t), v1s(t), qs(1, t)]
    P2 = len(seq)
    rest = v0l[xa:]
    nmid_ = len(rest) - 4
    seq += [ks_(0, t) for t in range(4, 8)] + rest[:nmid_] + [ks_(1, t) for t in range(4, 8)] + rest[nmid_:]
    NP = len(seq) - P2
    gap = [[] for _ in seq]
    def put(g, *ins):
        for x in ins: gap[g] += x.split('\n')
    sbw, sbb = opt.get('sbw', 8), opt.get('sbb', 13)
    put(1, rf(oth[0] + 4)[0]); put(2, rf(oth[0] + 4)[1]); put(6, rf(oth[1] + 4)[0]); put(7, rf(oth[1] + 4)[1])
    put(sbw, mwr(LB, own + 4))
    for i, x in enumerate((mx(1, LB, 0), mx(1, LB, 1), CMP)): put(sbw + 1 + i, x)
    put(sbb, f's_cbranch_vccnz SB{tag}\nSBR{tag}:', 's_waitcnt lgkmcnt(0)', 's_barrier', rd128(MEMA + 16, mloc(4)))
    g = sbb + 1
    for x in [rd128(MEMA + 4*tt, mloc(tt)) for tt in range(5, 8)] + rf(oth[2] + 4):
        put(g, x); g += 1
    VX0, VX1, OA0, OA1 = (MEMA + 4*t for t in [own] + oth)
    LACC, ONES, PX, E0 = MEMA+16, MEMA+20, MEMA+24, MEMA+28
    assert xa >= 1
    gv = max(sbb + 1, 16)
    put(gv, f'buffer_load_dwordx4 {vr(VX0,4)}, v{AL0}, {SRD}, s{sV} offen sc1')
    put(gv + 1, f'buffer_load_dwordx4 {vr(VX1,4)}, v{AL0}, {SRD}, s{sV} offen offset:1024 sc1')
    kpos, rpos = opt.get('kpos', 'S7'), opt.get('rpos', 'B4')
    rst = [f'buffer_store_dwordx4 {vr(NEG,4)}, v{AL0}, {SRD}, s{sV2} offen offset:{i*1024}' for i in range(2)]
    kdm = []
    for f in {0: (), 1: (0, 1, 2), 2: (3, 4, 5), 3: (6, 7)}[w]:
        if not kdm or f == 4: kdm.append(f's_mov_b32 m0, {L_K + (f >> 2)*4096}')
        kdm.append(f'buffer_load_dwordx4 v{AL0}, {SRD}, s{sK if f < 4 else sK2} offen offset:{(f & 3)*1024} sc1 lds')
    if rpos == 'P1':
        rg = opt.get('rg', ((0, 4), (3, 5), (4, 0), (5, 3)))[w]
        for i in range(2): put(rg[i], rst[i])
    gk = gv + 2
    if kpos == 'P1': put(gk, kdm[0]); put(gk + 1, kdm[1])
    else: gk = gv
    assert kpos != 'P1'
    gs = gk + opt.get('gsl', 2)
    for i, x in vm: put(min(gs + i, P2 - 1), x)
    if pub: put(gs + opt.get('pg', (0, 1, 2, 3))[w], pub)
    kr = [rd128(KW + 4*f, L_K + f*1024) for f in range(8)]
    for i in range(4):
        g0 = max(B0 + 3*i + 1, g)
        put(g0, kr[2*i]); put(min(g0 + 1, P2 - 1) if i < 3 else P2 - 1, kr[2*i + 1])
    e0, e1 = epq(Q0), epq(Q1)
    qtr = [trd(QT, L_Q, ks, h) for ks in range(4) for h in range(2)]
    ek0, ek1, ev0, ev1 = epi(K0), epi(K1), epi(V0), epi(V1)
    G = lambda k: min(P2 + k, len(seq) - 1)
    kend = P2 + 4 + nmid_ + 3
    put(G(0), e0[0], e0[1]); put(G(1), e0[2], e0[3]); put(G(2), e0[4], e1[0]); put(G(3), qkw(L_Q, 0, Q0), e1[1])
    put(G(4), e1[2], e1[3]); put(G(5), e1[4]); put(G(6), qkw(L_Q, 1, Q1))
    put(G(7), ek0[0], ek0[1]); put(G(8), ek0[2]); put(G(9), qkw(L_KM, 0, K0))
    gb = opt.get('gb', 10)
    put(G(gb), 's_waitcnt lgkmcnt(1)', 's_barrier')
    e1g = kend + 2 - P2
    put(G(e1g), ek1[0], ek1[1])
    put(G(gb + 1), qtr[0], qtr[1])
    put(G(max(e1g + 1, gb + 1)), ek1[2], qkw(L_KM, 1, K1))
    put(G(gb + 2), qtr[2], qtr[3])
    put(len(seq) - 1, qtr[4], qtr[5])
    for i, (m_, gg) in enumerate(zip(seq, gap)):
        p(m_)
        for x in gg: p(x)
        if i == B0 - 1 or i == G(gb): stamp()
    PM = T0
    def sx(tile, ks): return mf32(S + 4*tile, KW + 16*tile + 4*ks, QT + 4*ks, '0' if ks == 0 else S + 4*tile)
    def sm(ks): return mf32(SM, AQK + 4*ks, QT + 4*ks, '0' if ks == 0 else SM)
    def ex(d, r): return f'v_exp_f32 v{d}, v{r}'
    def cv(d, a_): return f'v_cvt_pk_bf16_f32 v{d}, v{a_}, v{a_+1}'
    ktr = [trd(AQK, L_KM, ks, h) for ks in range(4) for h in range(2)]
    p(sx(0, 0)); p(qtr[6])
    p(sx(1, 0)); p(qtr[7])
    p(sx(0, 1)); p(ev1[0]); p(ev1[1])
    p(sx(1, 1))
    p('s_waitcnt lgkmcnt(6)'); p('s_barrier'); stamp()
    p(sx(0, 2)); p(ktr[0]); p(ktr[1])
    p(sx(0, 3)); p(ktr[2]); p(ktr[3])
    p(sx(1, 2)); p(ktr[4]); p(ktr[5])
    p(sx(1, 3)); p(ktr[6]); p(ktr[7])
    p(ex(E0, SX0)); p(ex(E0+1, SX0+1))
    p(sm(0)); p(rd128(ONES, L_ONE))
    p(sm(1))
    p(sm(2))
    p(sm(3)); p(ex(E0+2, SX0+2))
    p(ex(E0+3, SX0+3)); p(cv(PX, E0)); p(ex(E0, SX1)); p(cv(PX+1, E0+2)); p(ex(E0+1, SX1+1))
    p(ex(E0+2, SX1+2)); p(ex(E0+3, SX1+3)); p(cv(PX+2, E0)); p(ex(E0, SM)); p(cv(PX+3, E0+2)); p(ex(E0+1, SM+1))
    stamp()
    p(ev1[2])
    p(mf32(LACC, ONES, PX, '0')); p(cv(PM, E0)); p(ev0[0])
    p(mf32(OA0, VX0, PX, '0')); p(ev0[1]); p(f'v_mov_b32 v{V1+1}, 0')
    p(mf32(OA1, VX1, PX, '0')); p(ev0[2]); p(f'v_mov_b32 v{V0+1}, 0')
    p(mf16(LACC, ONES, PM, LACC))
    p(f'v_mov_b64 {vr(AQK+2,2)}, 0\nv_mov_b64 {vr(AQK+4,2)}, 0')
    p(mf16(OA0, V0, PM, OA0))
    p(f'v_mov_b64 {vr(AQK+6,2)}, 0\nv_mov_b64 {vr(AQK+8,2)}, 0')
    p(mf16(OA1, V1, PM, OA1))
    p(f'v_rcp_f32 v{T2}, v{LACC}')
    p(f'v_mov_b64 {vr(AQK,2)}, 0')
    p(f'v_max_f32 v{E0}, v{T2}, v{LACC}')
    p(f'v_cmp_nge_f32 vcc, s{sLIM}, v{E0}')
    for r in range(4): p(f'v_mul_f32 v{OA0+r}, v{OA0+r}, v{T2}')
    p(f's_and_b64 s[34:35], vcc, s[{sVAL}:{sVAL+1}]'); p(f's_cbranch_scc1 FB{tag}'); p(f'FBC{tag}:')
    p(cv(OA0, OA0)); p(cv(OA0+1, OA0+2))
    p(f'ds_write_b64 v{AOW}, {vr(OA0,2)}')
    for r in (0, 2): p(f'v_pk_mul_f32 {vr(OA1+r,2)}, {vr(OA1+r,2)}, {vr(T2,2)} op_sel_hi:[1,0]')
    p(cv(OA1, OA1)); p(cv(OA1+1, OA1+2))
    p(f'ds_write_b64 v{AOW}, {vr(OA1,2)} offset:256')
    slow(f'FB{tag}:')
    slow(f"""s_nop 7
    v_max3_f32 v{T2}, v{SX0}, v{SX0+1}, v{SX0+2}
    v_max3_f32 v{T2}, v{T2}, v{SX0+3}, v{SX1}
    v_max3_f32 v{T2}, v{T2}, v{SX1+1}, v{SX1+2}
    v_max3_f32 v{T2}, v{T2}, v{SX1+3}, v{SM}
    v_max_f32 v{T2}, v{T2}, v{SM+1}
    v_mov_b32 v{E0}, v{T2}
    v_permlane16_swap_b32 v{T2}, v{E0}
    v_max_f32 v{T2}, v{T2}, v{E0}
    v_mov_b32 v{E0}, v{T2}
    v_permlane32_swap_b32 v{T2}, v{E0}
    v_max_f32 v{T2}, v{T2}, v{E0}""")
    for k in range(5):
        for j in range(2): slow(f'v_sub_f32 v{E0+j}, v{S+2*k+j}, v{T2}')
        for j in range(2): slow(ex(E0+j, E0+j))
        slow(cv(PX + k if k < 4 else PM, E0))
    slow(mf32(LACC, ONES, PX, '0')); slow(mf32(OA0, VX0, PX, '0')); slow(mf32(OA1, VX1, PX, '0'))
    slow(mf16(LACC, ONES, PM, LACC)); slow(mf16(OA0, V0, PM, OA0)); slow(mf16(OA1, V1, PM, OA1))
    slow(f'v_rcp_f32 v{T2}, v{LACC}')
    for r in range(4): slow(f'v_mul_f32 v{OA0+r}, v{OA0+r}, v{T2}')
    slow(f's_nop 7\ns_branch FBC{tag}')
    stamp()
    acc = [AQK, AQK+4, AQK+8, AQK+12, MEMA+16, MEMA+20, MEMA+24, MEMA+28]
    land = [KW, KW+8, KW+16, KW+24, MEMA, QT+8, S, ACCV]
    for r in list(range(AQK+10, AQK+16, 2)) + list(range(MEMA+16, MEMA+32, 2)): p(f'v_mov_b64 {vr(r,2)}, 0')
    w1 = []
    for t in range(8): w1 += [rd128(land[t], wl(1, t)), rd128(land[t] + 4, wl(1, t) + 1024)]
    npre = opt.get('w1pre', 0)
    for x in w1[:npre]: p(x)
    p(f's_waitcnt lgkmcnt({npre})'); p('s_barrier')
    stamp()
    OP = QT
    p(rd128(OP, L_O)); p(rd128(OP+4, L_O + 1024))
    nmid = opt.get('w1mid', 6)
    for x in w1[npre:npre+nmid]: p(x)
    w1 = w1[npre+nmid:]
    def pst(t): return f'buffer_store_dword v{acc[t]}, v{AP}, {SRD}, s{sPART+t} offen'
    book = [f's_add_u32 s{sSTEP}, s{sSTEP}, 1', f's_xor_b32 s{sMEM}, s{sMEM}, 8192', f's_xor_b32 s{sMEM2}, s{sMEM2}, 8192',
            f's_add_u32 s{sSLOT}, s{sSLOT}, 1', f's_cmp_eq_u32 s{sSLOT}, 3\ns_cselect_b32 s{sDLT}, {(-2*INBOX_SLOT) & 0xffffffff}, s{sC2}\ns_cselect_b32 s{sSLOT}, 0, s{sSLOT}']
    book += [f's_add_u32 s{sV}, s{sV}, {32*16384}']
    if w in (1, 2): book += [f's_add_u32 s{sPF}, s{sPF}, {32*16384}']
    es = [epi(acc[t]) for t in range(8)]
    for t in range(8):
        p(smf(acc[t], OP, wo0(t)))
        if w1: p(w1.pop(0))
        elif book: p(book.pop(0))
        if t >= 2: p(es[t-2][2])
        p(smf(acc[t], OP+4, vr(land[t], 8)))
        if t >= 2: p(pst(t-2))
        if w1 and (t < 1 or opt.get('w1both', 1)): p(w1.pop(0))
        elif book: p(book.pop(0))
        if t >= 1: p(es[t-1][0]); p(es[t-1][1])
    p(es[6][2]); p(pst(6))
    p(es[7][0]); p(es[7][1]); p(es[7][2]); p(pst(7))
    pastS7[0] = True
    stamp()
    if kpos == 'S7': p('\n'.join(kdm))
    if rpos == 'S7': p('\n'.join(rst))
    if full:
        if w == 0: book.append(f's_lshl_b32 s3, s{sSTEP}, 13\ns_add_u32 s{sKVM}, s3, s{sFCH}')
        if w == 3:
            p(f"""s_add_u32 s{sNEED}, s{sSTEP}, 2
            s_lshr_b32 s{sNEED}, s{sNEED}, 2
            s_add_u32 s{sNEED}, s{sNEED}, 1
            s_min_u32 s{sNEED}, s{sNEED}, 16""")
            slow(f'KVW:\nv_and_b32 v{T2}, 63, v{AP}')
            common.wait_flags(slow, 'KVL', T2, f's{sFKV}', f's{sNEED}', T3)
            slow('s_branch KVR')
    if w == 0: p(rd128(S, L_SEL)); p(f'ds_read_b32 v{S+4}, v{AP} offset:{L_DUM + 1024}\nv_mov_b64 {vr(S+8,2)}, 0\nv_mov_b64 {vr(S+10,2)}, 0')
    adv = [f's_add_u32 s{sV2}, s{sIN}, {w*2048}', f's_add_u32 s{sIN}, s{sIN}, s{sDLT}'] + ([f's_add_u32 s{sIN2}, s{sIN2}, s{sDLT}'] if w == 0 else [])
    late = (kdm if kpos == 'B4' or (w == 0 and kpos in ('mid', 'end')) else []) + ([] if rpos != 'B4' else rst)
    if w: adv += [f's_add_u32 s{sK}, s{sK}, {32*16384}', f's_add_u32 s{sK2}, s{sK2}, {32*16384}']
    adv = late + adv
    hk1 = []
    for t in range(8): hk1 += [f's_add_u32 s{sPART+t}, s{sPART+t}, s{sDLT}', f'v_mov_b64 {vr(AQK+2*t,2)}, 0']
    pre = [x for i in range(4) for x in wrd(i, 0, i).split('\n')]
    z2 = [f'v_mov_b64 {vr(AQK+r,2)}, 0' for r in range(16, 24, 2)] + [f'v_mov_b64 {vr(NEG,2)}, -1', f'v_mov_b64 {vr(NEG+2,2)}, -1']
    hk2 = []
    for i, x in enumerate(pre): hk2 += [x] + ([z2[i]] if i < len(z2) else [])
    for b_ in book: p(b_)
    if w == 0:
        R0, R = S + 4, S + 8
        def ibl(base): return [f'buffer_load_dwordx4 {vr(base+4*u,4)}, v{AL0}, {SRD}, s{sIN if u < 4 else sIN2} offen offset:{(u&3)*1024} sc1' for u in range(8)]
        def red(q, base): q(f'v_smfmac_f32_16x16x64_bf16 {vr(R,4)}, {vr(S,4)}, {vr(base, 8)}, v{S+4}')
        loads = ibl(MEMA)
        if rb2:
            pre_hk = opt.get('hkfirst', 0)
            if pre_hk: p('\n'.join(hk1))
            backoff(16*opt.get('dly', (0, 0, 0))[var] - 64*pre_hk, 'the other heads' + "'" + ' partial sums are still on their way to L2')
            p('\n'.join(loads))
            p('\n'.join(z2 if pre_hk else hk1 + z2))
            backoff(16*(opt['rb2'] - 1) + 64*pre_hk, 'second read of the inbox half a round trip behind the first')
            p('\n'.join('@junk ' + l for l in ibl(KW)))
        else:
            if var >= 1: p('\n'.join(hk1))
            if var >= 2: p('\n'.join(hk2))
            backoff(16*opt.get('dly', (0, 0, 0))[var], 'partial sums still on their way to L2')
            if opt.get('w0st'): sv = nst[0]; nst[0] = 1; stamp(); nst[0] = sv
            p('\n'.join(loads))
            if var < 1: p('\n'.join(hk1))
            if var < 2: p('\n'.join(hk2))
        p(f'RBR{tag}:')
        for u in range(4):
            red(p, MEMA + 8*u)
            if opt.get('w0st') and u in (0, 3): sv = nst[0]; nst[0] = 2 if u == 0 else 3; stamp(); nst[0] = sv
        p(f'v_cmp_u_f32 vcc, v{R}, v{R}')
        p(f'v_cvt_pk_bf16_f32 v{R}, v{R}, v{R+2}')
        p(f's_cbranch_vccnz RBC{tag}\nRBD{tag}:')
        if opt.get('b4') == 2: p('s_barrier')
        p(f'buffer_store_dword v{R}, v{T3}, {SRD}, s{sPUB} offen')
        if opt.get('b4') == 1: p('s_barrier')
        if full: p(f'v_mov_b32 v{QT}, v{R}')
        if not rb2: p('\n'.join(adv0))
        if opt.get('hist'):
            p(f's_lshl_b32 s3, s{sSTEP}, 13\ns_add_u32 s3, s3, {WS_G}\ns_lshl_b32 s34, s{sH}, 8\ns_add_u32 s3, s3, s34\nbuffer_store_dword v{R}, v{T3}, {SRD}, s3 offen')
        slow(f'RBC{tag}:')
        if not rb2:
            for u in range(8): slow(mx(u == 0, MEMA + 4*u, 0)); slow(mx(u == 0, MEMA + 4*u, 1))
            slow(CMP); slow(f's_cbranch_vccz RBD{tag}')
        zr = f'v_mov_b64 {vr(R,2)}, 0\nv_mov_b64 {vr(R+2,2)}, 0'
        slow(f'RB{tag}:'); slow('\n'.join('@nowait ' + l for l in loads)); slow(TMO(sRB)); slow(zr)
        if rb2:
            for u in range(4):
                slow(f's_waitcnt vmcnt({14 - 2*u})'); red(slow, KW + 8*u)
            slow(f'v_cmp_u_f32 vcc, v{R}, v{R}\nv_cvt_pk_bf16_f32 v{R}, v{R}, v{R+2}\ns_cbranch_vccz RBD{tag}')
            for u in range(8): slow(mx(u == 0, KW + 4*u, 0)); slow(mx(u == 0, KW + 4*u, 1))
            slow(CMP); slow(f's_cbranch_vccz RBD{tag}')
            slow('\n'.join('@nowait ' + l for l in ibl(KW))); slow(zr)
        slow(f's_branch RBR{tag}')
    else:
        p('\n'.join(hk1))
        if kpos == 'mid': p('\n'.join(kdm))
        p('\n'.join(hk2))
        if kpos == 'end':
            backoff(32*opt.get('kdl', 0), 'bulk copy goes behind the inbox reads')
            p('\n'.join(kdm))
        if full and w == 3: p(f's_waitcnt vmcnt({8 + 2*(kpos in ("S7", "mid", "end")) + 2*(rpos == "S7")})\nv_cmp_gt_u32 vcc, s{sNEED}, v{T3}\ns_cbranch_vccnz KVW\nKVR:')
        if opt.get('b4'): p('s_barrier')
        p('\n'.join(adv))
        slp = opt.get('slp3', opt.get('slp')) if w == 3 else opt.get('slp')
        if slp: p(f's_sleep {slp}')
        for _ in range(opt.get('slpn', 0)): p('s_nop 7')
    stamp()
    p(f's_cmp_lt_u32 s{sSTEP}, {nsteps}\ns_cbranch_scc1 HA{tag}')
    if True:
        n = len(fb)
        sets = (LB, S)
        slow(f'SB{tag}:')
        slow('@wait_reset')
        for i, t in enumerate(fb): slow('@nowait ' + gld(sets[0] + 4*i, t))
        slow(TMO(sRB)); slow('s_nop 15')
        slow(f'SL{tag}:')
        for k in range(2):
            for i, t in enumerate(fb): slow('@nowait ' + gld(sets[1-k] + 4*i, t))
            slow(f's_waitcnt vmcnt({n})')
            for i, t in enumerate(fb): slow('@nowait ' + mwr(sets[k] + 4*i, t))
            for i, t in enumerate(fb): slow('@nowait ' + mx(i == 0, sets[k] + 4*i, 0)); slow('@nowait ' + mx(i == 0, sets[k] + 4*i, 1))
            slow(CMP); slow(f's_cbranch_vccz SK{tag}')
        slow(TMO(sRB)); slow(f's_branch SL{tag}')
        slow(f'SK{tag}:'); slow(f's_waitcnt lgkmcnt(0) vmcnt(0)\ns_branch SBR{tag}')
    slow(f'CE{tag}:')
    if w == 0: slow(f's_mov_b32 s{sFCH}, s{sKVM}\ns_mov_b32 s{sKVM}, 0x7f000000')
    slow(''); slow('\n'.join(z2 if rb2 else hk2))
    if rb2: slow(f's_mov_b32 s{sDLT}, {(-2*INBOX_SLOT) & 0xffffffff}\ns_add_u32 s{sIN}, s{sIN}, {2*INBOX_SLOT}\ns_add_u32 s{sIN2}, s{sIN2}, {2*INBOX_SLOT}\ns_xor_b32 s{sPUB}, s{sPUB}, 8192')
    slow(f's_branch HA{tag}')
    fin = Prog()
    if var == 0:
        fin(f'FIN{w}:')
        if w == 0: fin(pub)
        if opt.get('wb') and w == 0:
            fin(f's_cmp_lg_u32 s{sH}, 0\ns_cbranch_scc1 FINX\nbuffer_wbl2 sc1\nFINX:' if opt['wb'] == 1 else 'buffer_wbl2 sc1')
        if opt.get('log') and w == 1:
            fin(f's_lshl_b32 s3, s{sH}, 8\ns_add_u32 s3, s3, {WS_DBG + 0x10000}\nbuffer_store_dword v{T3}, v{AP}, {SRD}, s3 offen')
        if opt.get('stamps') or opt.get('trace') or opt.get('first'):
            fin(f's_lshl_b32 s3, s{sH}, 2\ns_add_u32 s3, s3, {w}\ns_lshl_b32 s3, s3, 6\ns_add_u32 s3, s3, {WS_DBG + 0x20000}')
            for i in range(12): fin(f'v_mov_b32 v{i}, s{4+i}')
            fin('s_mov_b64 exec, 1')
            for i in range(3): fin(f'buffer_store_dwordx4 {vr(4*i,4)}, v{AL0}, {SRD}, s3 offen offset:{16*i}')
            fin('s_mov_b64 exec, -1')
        if opt.get('dbgstart'): fin(f's_mul_i32 s{sRETRY}, s77, 63')
        if opt.get('time'): fin(f's_mov_b32 s85, s{sRETRY}\ns_mov_b32 s86, s{sRB}')
        fin('s_branch L_DONE')
    return p.lines, slow.lines, fin.lines

DEF = dict(D=3, spc=84, pdc=(0, 64), dly=(4, 0, 0), hkfirst=1, slpmode=1, vb=(32, 32), rb2=5, w1pre=2, w1mid=7, b4=1, rpos='P1', gg=(2, 7), pg=(4, 5, 6, 8), kpos='end', kdl=8, rg=((0, 4), (3, 5), (9, 11), (10, 12)))
def role(out, opt):
    from main import stamp
    o2 = dict(DEF); o2.update(opt); opt = o2
    T = opt.get('time')
    p = Prog()
    p('R_CHAIN:')
    startup(p, D_CHINIT, 2 if opt.get('kpos') == 'P1' else 1, opt.get('early', 1))
    if not opt.get('early', 1): p('s_mov_b32 s77, 0')
    if T: stamp(p, 2)
    p(f's_cmp_eq_u32 s77, 1\ns_cbranch_scc1 C_go')
    common.wait_dbg(p, 'C_init', D_CHINIT, 32)
    common.wait_dbg(p, 'C_init2', D_INIT, 1)
    p(f'v_and_b32 v{T2}, 63, v{AP}')
    common.wait_flags(p, 'C_kv', T2, f's{sFKV}', 1, T0)
    p(f'''s_lshl_b32 s3, s{sW}, 11
    s_add_u32 m0, s3, {L_K}
    s_add_u32 s3, s3, s{sK}
    buffer_load_dwordx4 v{AL0}, {SRD}, s3 offen sc1 lds
    buffer_load_dwordx4 v{AL0}, {SRD}, s3 offen offset:1024 sc1 lds
    s_waitcnt vmcnt(0)
    C_go:
    s_waitcnt vmcnt(1)
    s_barrier
    s_add_u32 s{sK}, s{sK}, {32*16384}
    s_add_u32 s{sK2}, s{sK}, 4096''')
    if T: stamp(p, 3); p('s_memtime s[94:95]\ns_waitcnt lgkmcnt(0)\ns_mov_b32 s98, s94')
    if opt.get('stamps') or opt.get('trace') or opt.get('first'):
        for i in range(12): p(f's_mov_b32 s{4+i}, 0')
    vb = opt.get('vb', (12, 20))
    p(f"""s_cmp_eq_u32 s{sW}, 1
    s_cbranch_scc1 CE1
    s_cmp_eq_u32 s{sW}, 2
    s_cbranch_scc1 CE2
    s_cmp_eq_u32 s{sW}, 3
    s_cbranch_scc1 CE3""")
    if vb[0] >= 32: p('s_branch CE0v0')
    else: p(f's_cmp_lt_u32 s{sH}, {vb[0]}\ns_cbranch_scc1 CE0v0\ns_cmp_lt_u32 s{sH}, {vb[1]}\ns_cbranch_scc1 CE0v1\ns_branch CE0v2')
    o, st = process(p.lines); out += o + ['.p2align 7', 'C_code:']
    for w, var in ((0, 0), (0, 1), (0, 2), (1, 0), (2, 0), (3, 0)):
        if var and vb[0] >= 32: continue
        body, slow, fin = step(w, 63, opt, var)
        import re
        for pat in opt.get('drop', ()): body = [l for l in body if not re.search(pat, l)]
        o, st = loop(body, State())
        o = hoist_waits(o)
        o_, st = loop(o, State())
        assert o_ == o
        if T:
            q = Prog(); stamp(q, 4); q('s_memtime s[96:97]\ns_waitcnt lgkmcnt(0)\ns_sub_u32 s82, s96, s94' if not opt.get('dbgstart') else ''); o += process(q.lines)[0]
        out += ['.p2align 6'] + o + [f's_branch FIN{w}'] + process(slow)[0]
        if fin: out += process(['s_waitcnt lgkmcnt(0)', 's_nop 7'] + fin)[0][2:]
```

```python
from common import *
def mf32(d, a, b, c): return f'v_mfma_f32_16x16x32_bf16 {vr(d,4)}, {a if isinstance(a,str) else vr(a,4)}, {vr(b,4)}, {c if isinstance(c,str) else vr(c,4)}'
def mf16(d, a, b, c): return f'v_mfma_f32_16x16x16_bf16 {vr(d,4)}, {vr(a,2)}, {vr(b,2)}, {vr(c,4)}'
def cv(d, a): return f'v_cvt_pk_bf16_f32 v{d}, v{a}, v{a+1}'

def s3(out, opt):
    from main import stamp
    T = opt.get('time')
    AL, ATR, AVM, AW, ZERO, NINF, ONE1, IDX = 1, 2, 3, 4, 5, 6, 7, 16
    T0 = 8
    K, Q, V, MA, LA = 20, 52, 68, 84, 116
    KM, VM, AC = 124, 140, 148
    SX, SM, PX, PM, O = 164, 172, 176, 180, 184
    sH, sS, sKV, sQ, sV, sO, sFO, sM = 41, 42, 43, 44, 45, 46, 48, 49
    MASK = 52
    sSC, sL2E = 50, 51
    SRDW = 's[68:71]'
    L_M, L_I = 0, 8192
    p = Prog()
    p(f"""R_S3:
    s_barrier
    s_mov_b32 s{sH}, s{sRANK}
    s_sub_u32 s{sS}, s{sXCC}, 2
    s_mov_b32 s{sSC}, 0x3db504f3
    s_mov_b32 s{sL2E}, 0x3fb8aa3b
    v_and_b32 v8, 63, v0
    v_lshlrev_b32 v{AL}, 4, v8
    v_and_b32 v9, 15, v8               ; n
    v_lshrrev_b32 v10, 4, v8           ; g
    v_lshlrev_b32 v11, 1, v10
    v_xor_b32 v11, v11, v9
    v_lshlrev_b32 v11, 4, v11
    v_lshl_add_u32 v20, v10, 13, v11
    v_xor_b32 v21, 0x80, v20
    v_lshrrev_b32 v11, 2, v9           ; r
    v_and_b32 v12, 3, v9               ; c
    v_and_b32 v13, 1, v10
    v_lshl_add_u32 v13, v13, 2, v11
    v_lshlrev_b32 v13, 5, v13
    v_lshl_add_u32 v13, v12, 3, v13
    v_lshl_add_u32 v11, v10, 3, v11
    v_lshl_add_u32 v22, v11, 8, v13
    s_lshl_b32 s3, s{sW}, 6
    v_xor_b32 v22, s3, v22
    v_xor_b32 v23, 0x20, v22
    v_add_u32 v24, 0x10000, v22
    v_add_u32 v25, 0x10000, v23
    s_lshl_b32 s74, s{sW}, 12
    s_lshl_b32 s75, s{sH}, 8
    s_lshl_b32 s3, s{sW}, 17
    s_add_u32 s75, s75, s3
    s_mov_b32 s70, 0x400000
    s_mov_b32 s71, 0x20000
    """)
    def dma(c):
        if c % 8 == 0: p(f's_mov_b32 s68, s{10 + 2*(c >> 3)}\ns_mov_b32 s69, s{11 + 2*(c >> 3)}')
        for i in range(4):
            p(f's_add_u32 m0, s74, {(c & 7)*16384 + i*1024}\ns_add_u32 s3, s75, {(c & 7)*64*8192 + i*4*8192}\nbuffer_load_dwordx4 v{20 + (i >> 1)}, {SRDW}, s3 offen lds')
    for c in range(8): dma(c)
    p(f"""
    v_and_b32 v11, 1, v9
    v_mov_b32 v12, 0x4444
    v_mov_b32 v13, 0xeeee
    v_cmp_eq_u32 vcc, 1, v11
    v_cndmask_b32 v{IDX}, v12, v13, vcc
    v_lshrrev_b32 v11, 1, v10
    v_lshlrev_b32 v11, 4, v11
    v_and_b32 v12, 1, v10
    v_lshl_add_u32 v11, v12, 2, v11
    v_lshrrev_b32 v12, 2, v9
    v_add_u32 v11, v11, v12
    v_and_b32 v12, 3, v9
    v_lshlrev_b32 v12, 3, v12
    v_lshl_add_u32 v{ATR}, v11, 5, v12
    v_lshlrev_b32 v11, 5, v9
    v_lshl_add_u32 v11, v10, 3, v11
    s_lshl_b32 s3, s{sW}, 10
    v_add_u32 v{AW}, s3, v11
    s_lshr_b32 s3, s{sW}, 1
    s_lshl_b32 s3, s3, 11
    v_add_u32 v{AVM}, s3, v11
    s_and_b32 s3, s{sW}, 1
    s_lshl_b32 s3, s3, 4
    v_add_u32 v12, s3, v9
    v_lshlrev_b32 v11, 2, v10
    """)
    for i in range(8):
        p(f'v_cmp_le_u32 s[{MASK+2*i}:{MASK+2*i+1}], v11, v12\nv_add_u32 v11, {1 if i != 3 else 13}, v11')
    p(f"""v_mov_b32 v{ZERO}, 0
    v_mov_b32 v{NINF}, 0xff800000
    v_mov_b32 v{ONE1}, 1
    v_mov_b32 v{PM+1}, 0
    v_lshlrev_b32 v14, 2, v9
    v_and_b32 v15, 7, v8
    v_lshlrev_b32 v15, 2, v15""")
    for d in range(4): p(f'v_mov_b32 v{VM+2*d+1}, 0')
    for c in range(16):
        p(f's_waitcnt vmcnt({4*min(7, 15 - c)})\ns_barrier')
        t = c & 7
        for u in range(2):
            for q, o in enumerate((0, 1024, 8192, 9216)):
                d = (c >> 3)*128 + (u*8 + t)*8 + 2*q
                p(f'ds_read_b64_tr_b16 a[{d}:{d+1}], v{22 + u + 2*(t >> 2)} offset:{o + (t & 3)*16384}')
        p('s_waitcnt lgkmcnt(0)\ns_barrier')
        if c + 8 < 16: dma(c + 8)
    p(f's_lshl_b32 s74, s{sH}, 6\ns_add_u32 s74, s74, {F_KV}\ns_lshl_b32 s75, s{sH}, 5\ns_add_u32 s75, s75, {F_Q}')
    wait_flags(p, 'S3_kv', 14, 's74', 16, 13, sleep=4)
    wait_flags(p, 'S3_q', 15, 's75', 16, 13, sleep=4)
    wait_dbg(p, 'S3_ci', D_CHINIT, 32, vt=12)
    if T: stamp(p, 5)
    o, st = process(p.lines); out += o
    b = Prog()
    b(f"""S3_L:
    s_lshl_b32 s3, s{sS}, 5
    s_add_u32 s3, s3, s{sH}
    s_lshl_b32 s{sKV}, s3, 14
    s_add_u32 s{sKV}, s{sKV}, {WS_KV}
    s_lshr_b32 s34, s{sW}, 1
    s_lshl_b32 s35, s34, 12
    s_add_u32 s{sV}, s{sKV}, s35
    s_add_u32 s{sV}, s{sV}, 8192
    s_lshl_b32 s{sQ}, s3, 13
    s_and_b32 s35, s{sW}, 1
    s_lshl_b32 s74, s35, 12
    s_add_u32 s{sQ}, s{sQ}, s74
    s_add_u32 s{sQ}, s{sQ}, {WS_Q}
    s_lshl_b32 s{sFO}, s3, 2
    s_add_u32 s{sFO}, s{sFO}, {F_O}
    s_lshl_b32 s3, s{sS}, 1
    s_add_u32 s3, s3, s35
    s_lshl_b32 s3, s3, 5
    s_add_u32 s3, s3, s{sH}
    s_lshl_b32 s{sO}, s3, 12
    s_lshl_b32 s34, s34, 11
    s_add_u32 s{sO}, s{sO}, s34
    s_add_u32 s{sO}, s{sO}, {WS_O}
    s_lshl_b32 s{sM}, s{sS}, 13
    s_lshl_b32 s3, s{sW}, 11
    s_add_u32 s{sM}, s{sM}, s3
    s_add_u32 s{sM}, s{sM}, {WS_MEMH}
    v_add_u32 v{T0+7}, s3, v{AL}""")
    def ld(dst, sb, n):
        for f in range(n):
            if f == 4: b(f's_add_u32 s{sb}, s{sb}, 4096')
            b(f'buffer_load_dwordx4 {vr(dst+4*f,4)}, v{AL}, {SRD}, s{sb} offen offset:{(f&3)*1024} sc1')
    ld(Q, sQ, 4); ld(K, sKV, 8); ld(V, sV, 4)
    for r in range(0, 16, 2): b(f'v_mov_b64 {vr(AC+r,2)}, 0')
    for kt in range(2):
        for ks in range(4): b(mf32(SX + 4*kt, K + 16*kt + 4*ks, Q + 4*ks, '0' if ks == 0 else SX + 4*kt))
    def scale(a_):
        rnd2(b, a_, a_ + 1)
        b(f'v_mul_f32 v{a_}, s{sSC}, v{a_}\nv_mul_f32 v{a_+1}, s{sSC}, v{a_+1}')
        rnd2(b, a_, a_ + 1)
    for a_ in range(SX, SX + 8, 2): scale(a_)
    for r in range(8): b(f'v_cndmask_b32 v{SX+r}, v{NINF}, v{SX+r}, s[{MASK+2*r}:{MASK+2*r+1}]')
    b(f"""v_max3_f32 v{T0}, v{SX}, v{SX+1}, v{SX+2}
    v_max3_f32 v{T0}, v{T0}, v{SX+3}, v{SX+4}
    v_max3_f32 v{T0}, v{T0}, v{SX+5}, v{SX+6}
    v_max_f32 v{T0}, v{T0}, v{SX+7}
    s_mov_b32 s3, 0
    s_branch S3_m_go
    S3_m:
    s_sleep {opt.get('s3slp', 1)}
    S3_m_go:
    buffer_load_dwordx4 {vr(LA,4)}, v{AL}, {SRD}, s{sM} offen sc1
    buffer_load_dwordx4 {vr(LA+4,4)}, v{AL}, {SRD}, s{sM} offen offset:1024 sc1
    {tmo(3)}
    v_max3_u32 v{T0+1}, v{LA}, v{LA+1}, v{LA+2}
    v_max3_u32 v{T0+1}, v{T0+1}, v{LA+3}, v{LA+4}
    v_max3_u32 v{T0+1}, v{T0+1}, v{LA+5}, v{LA+6}
    v_max_u32 v{T0+1}, v{T0+1}, v{LA+7}
    v_cmp_eq_u32 vcc, -1, v{T0+1}
    s_cbranch_vccnz S3_m""")
    if opt.get('tt'): stamp(b, 2)
    b(f"""ds_write_b128 v{T0+7}, {vr(LA,4)} offset:{L_M}
    ds_write_b128 v{T0+7}, {vr(LA+4,4)} offset:{L_M + 1024}
    s_waitcnt lgkmcnt(0)
    s_barrier""")
    for t in range(8): b(f'ds_read_b128 {vr(MA+4*t,4)}, v{AL} offset:{L_M + t*1024}')
    def smf(j, t): return f'v_smfmac_f32_16x16x64_bf16 {vr(AC+4*j,4)}, {vr(MA+4*t,4)}, {ar((j*8+t)*8, 8)}, v{IDX}'
    def epi(j):
        a_ = AC + 4*j
        return [f'v_add_f32 v{a_}, v{a_}, v{a_+1}', f'v_add_f32 v{a_+2}, v{a_+2}, v{a_+3}', f'v_cvt_pk_bf16_f32 v{a_}, v{a_}, v{a_+2}',
                f'ds_write_b32 v{AW}, v{a_} offset:{L_I + (j & 1)*512 + (j >> 1)*4}']
    pend = []
    for j in range(4):
        for t in range(8):
            b(smf(j, t))
            if t >= 1 and pend: b(pend.pop(0))
        pend = epi(j)
    for x in pend: b(x)
    b('s_waitcnt lgkmcnt(0)\ns_barrier')
    if opt.get('tt'): stamp(b, 3)
    for ks in range(4):
        for h in range(2): b(f'ds_read_b64_tr_b16 {vr(KM + 4*ks + 2*h, 2)}, v{ATR} offset:{L_I + ks*1024 + h*256}')
    for d in range(4): b(f'ds_read_b32 v{VM+2*d}, v{AVM} offset:{L_I + d*512 + 4}')
    for ks in range(4): b(mf32(SM, KM + 4*ks, Q + 4*ks, '0' if ks == 0 else SM))
    scale(SM)
    b(f'v_max3_f32 v{T0}, v{T0}, v{SM}, v{SM+1}')
    def xlane(op):
        for sw in ('16', '32'):
            b(f'v_mov_b32 v{T0+2}, v{T0}\nv_permlane{sw}_swap_b32 v{T0}, v{T0+2}\n{op} v{T0}, v{T0}, v{T0+2}')
    xlane('v_max_f32')
    regs = [SM, SM+1] + list(range(SX, SX+8))
    b(f'v_mul_f32 v{T0}, s{sL2E}, v{T0}')
    for r in regs: b(f'v_fma_f32 v{r}, v{r}, s{sL2E}, -v{T0}')
    for r in regs: b(f'v_exp_f32 v{r}, v{r}')
    b(f'v_add_f32 v{T0}, v{regs[0]}, v{regs[1]}')
    for r in regs[2:]: b(f'v_add_f32 v{T0}, v{T0}, v{r}')
    xlane('v_add_f32')
    b(f'v_rcp_f32 v{T0}, v{T0}')
    for r in regs: b(f'v_mul_f32 v{r}, v{r}, v{T0}')
    for i in range(4): b(cv(PX+i, SX+2*i))
    b(cv(PM, SM))
    for d in range(4): b(mf32(O + 4*d, V + 4*d, PX, '0'))
    for d in range(4): b(mf16(O + 4*d, VM + 2*d, PM, O + 4*d))
    for kk in range(2):
        A = O + 8*kk
        for i in range(4): b(cv(A+i, A+2*i))
        b(f'buffer_store_dwordx4 {vr(A,4)}, v{AL}, {SRD}, s{sO} offen offset:{kk*1024} sc1')
    if opt.get('tt'): stamp(b, 4)
    b(f's_waitcnt vmcnt(0)\ns_barrier\ns_cmp_lg_u32 s{sW}, 0\ns_cbranch_scc1 S3_nf')
    if opt.get('tt'): stamp(b, 5)
    set_flag(b, ONE1, f's{sFO}', ZERO)
    b(f'S3_nf:\ns_add_u32 s{sS}, s{sS}, 2\ns_cmp_lt_u32 s{sS}, 64\ns_cbranch_scc1 S3_L')
    o, st = loop(b.lines, st); out += ['.p2align 6'] + o + ['s_branch L_DONE']

def s4(out, opt):
    from main import stamp
    T = opt.get('time')
    AL, AF, AX, AG, ZERO, AR = 1, 2, 3, 4, 5, 6
    X, G, ACC, PR, B = 8, 10, 12, 24, 64
    sCS, sQT, sS, sO, sFO, sX, sGo, sFG, sLD, sPB = 41, 42, 43, 44, 45, 46, 48, 49, 66, 50
    SRDW, SRDX, SRDO = 's[68:71]', 's[52:55]', 's[56:59]'
    L_P = 131072
    p = Prog()
    p(f'''R_S4:
    s_barrier
    s_and_b32 s{sCS}, s{sRANK}, 15
    s_lshr_b32 s{sQT}, s{sRANK}, 4
    s_sub_u32 s{sS}, s{sXCC}, 4
    s_mov_b32 s68, s14
    s_mov_b32 s69, s15
    s_mov_b32 s70, 0x400000
    s_mov_b32 s71, 0x20000
    s_mov_b32 s52, s4
    s_mov_b32 s53, s5
    s_mov_b32 s54, 0x200000
    s_mov_b32 s55, 0x20000
    s_mov_b32 s56, s28
    s_mov_b32 s57, s29
    s_mov_b32 s58, 0x200000
    s_mov_b32 s59, 0x20000
    s_lshl_b32 s{sLD}, s{sW}, 15
    s_lshl_b32 s67, s{sW}, 20
    s_lshl_b32 s3, s{sCS}, 6
    s_add_u32 s67, s67, s3
    v_and_b32 v8, 63, v0
    v_lshlrev_b32 v{AL}, 4, v8
    v_lshrrev_b32 v9, 2, v8
    v_and_b32 v10, 3, v8
    v_lshlrev_b32 v10, 4, v10
    v_lshl_add_u32 v20, v9, 10, v10
    v_and_b32 v9, 15, v8                  ; n
    v_lshrrev_b32 v10, 4, v8              ; g
    v_lshrrev_b32 v11, 2, v9
    v_lshl_add_u32 v11, v10, 2, v11       ; row = 4g + r
    v_and_b32 v12, 3, v9
    v_lshlrev_b32 v12, 3, v12
    v_lshl_add_u32 v11, v11, 6, v12
    v_add_u32 v21, s{sLD}, v11
    ''')
    def dma(c):
        for i in range(16):
            p(f's_add_u32 m0, s{sLD}, {(c & 1)*16384 + i*1024}\ns_add_u32 s3, s67, {(c*256 + i*16)*1024}\nbuffer_load_dwordx4 v20, {SRDW}, s3 offen lds')
    dma(0); dma(1)
    p(f'''
    v_and_b32 v11, 7, v8
    v_lshlrev_b32 v{AF}, 2, v11
    v_mov_b32 v{ZERO}, 0
    s_and_b32 s3, s{sW}, 1
    s_lshl_b32 s34, s{sCS}, 1
    s_add_u32 s34, s34, s3
    s_lshl_b32 s35, s{sQT}, 4
    v_add_u32 v11, s35, v9
    v_lshlrev_b32 v12, 10, v11
    v_lshl_add_u32 v12, v10, 3, v12
    s_lshl_b32 s60, s34, 5
    v_add_u32 v{AX}, s60, v12
    v_and_b32 v12, 1, v10
    v_lshl_add_u32 v12, v12, 5, v11
    v_lshlrev_b32 v12, 4, v12
    v_lshrrev_b32 v13, 1, v10
    v_lshl_add_u32 v12, v13, 3, v12
    s_lshl_b32 s60, s34, 10
    v_add_u32 v{AG}, s60, v12
    s_lshl_b32 s3, s3, 10
    s_add_u32 s3, s3, {L_P}
    v_add_u32 v{AR}, s3, v{AL}
    s_lshl_b32 s3, s{sW}, 11
    s_add_u32 s3, s3, {L_P}
    v_add_u32 v7, s3, v{AL}
    ''')
    for c in range(4):
        p(f's_waitcnt vmcnt({16 if c < 3 else 0})')
        for ct in range(2):
            for jj in range(8):
                for h in range(2):
                    d = (ct*32 + 8*c + jj)*4 + 2*h
                    p(f'ds_read_b64_tr_b16 a[{d}:{d+1}], v21 offset:{(c & 1)*16384 + (32*jj + 16*h)*64 + ct*32}')
                if jj & 3 == 3: p('s_waitcnt lgkmcnt(0)')
        if c + 2 < 4: dma(c + 2)
    if T: stamp(p, 5)
    o, st = process(p.lines); out += o
    b = Prog()
    b(f'''S4_L:
    s_lshl_b32 s3, s{sS}, 1
    s_add_u32 s3, s3, s{sQT}
    s_lshl_b32 s3, s3, 2
    s_add_u32 s3, s3, s{sW}
    s_lshl_b32 s{sO}, s3, 15
    s_add_u32 s{sO}, s{sO}, {WS_O}
    s_lshl_b32 s{sFO}, s{sS}, 7
    s_lshl_b32 s3, s{sW}, 5
    s_add_u32 s{sFO}, s{sFO}, s3
    s_add_u32 s{sFO}, s{sFO}, {F_O}
    s_lshl_b32 s{sX}, s{sS}, 15
    s_add_u32 s{sGo}, s{sX}, {WS_G}
    s_cmp_ge_u32 s{sW}, 2
    s_cbranch_scc1 S4_nog
    s_lshr_b32 s{sFG}, s{sS}, 1
    s_lshl_b32 s{sFG}, s{sFG}, 2
    s_add_u32 s{sFG}, s{sFG}, {F_G}''')
    wait_flags(b, 'S4_g', ZERO, f's{sFG}', 1, 14, sleep=8)
    b(f'''buffer_load_dwordx2 {vr(X,2)}, v{AX}, {SRDX}, s{sX} offen
    buffer_load_dwordx2 {vr(G,2)}, v{AG}, {SRD}, s{sGo} offen sc1
    S4_nog:''')
    wait_flags(b, 'S4_o', AF, f's{sFO}', 1, 14, sleep=opt.get('s4slp', 2))
    if opt.get('tt'): stamp(b, 2)
    for j in range(32):
        b(f'buffer_load_dwordx4 {vr(B+4*j,4)}, v{AL}, {SRD}, s{sO} offen offset:{(j&3)*1024} sc1')
        if j & 3 == 3: b(f's_add_u32 s{sO}, s{sO}, 4096')
    for j in range(32):
        for ct in range(2): b(mf32(ACC + 4*ct, ar((ct*32 + j)*4, 4), B + 4*j, '0' if j == 0 else ACC + 4*ct))
    if opt.get('tt'): stamp(b, 3)
    b(f'''ds_write_b128 v7, {vr(ACC,4)}
    ds_write_b128 v7, {vr(ACC+4,4)} offset:1024
    s_waitcnt lgkmcnt(0)
    s_barrier
    s_cmp_ge_u32 s{sW}, 2
    s_cbranch_scc1 S4_next''')
    for w_ in range(4): b(f'ds_read_b128 {vr(PR+4*w_,4)}, v{AR} offset:{w_*2048}')
    for r in range(4):
        b(f'v_add_f32 v{PR+r}, v{PR+r}, v{PR+4+r}\nv_add_f32 v{PR+8+r}, v{PR+8+r}, v{PR+12+r}\nv_add_f32 v{PR+r}, v{PR+r}, v{PR+8+r}')
    for i in range(2):
        b(f'''v_cvt_pk_bf16_f32 v{PR+4}, v{PR+2*i}, v{PR+2*i+1}
        v_lshlrev_b32 v{PR+5}, 16, v{PR+4}
        v_and_b32 v{PR+6}, 0xffff0000, v{PR+4}
        v_lshlrev_b32 v{PR+7}, 16, v{G+i}
        v_and_b32 v{PR+8}, 0xffff0000, v{G+i}
        v_mul_f32 v{PR+5}, v{PR+5}, v{PR+7}
        v_mul_f32 v{PR+6}, v{PR+6}, v{PR+8}
        v_cvt_pk_bf16_f32 v{PR+4}, v{PR+5}, v{PR+6}
        v_lshlrev_b32 v{PR+5}, 16, v{PR+4}
        v_and_b32 v{PR+6}, 0xffff0000, v{PR+4}
        v_lshlrev_b32 v{PR+7}, 16, v{X+i}
        v_and_b32 v{PR+8}, 0xffff0000, v{X+i}
        v_add_f32 v{PR+5}, v{PR+5}, v{PR+7}
        v_add_f32 v{PR+6}, v{PR+6}, v{PR+8}
        v_cvt_pk_bf16_f32 v{PR+12+i}, v{PR+5}, v{PR+6}''')
    b(f'''buffer_store_dwordx2 {vr(PR+12,2)}, v{AX}, {SRDO}, s{sX} offen {opt.get('omod', 'nt')}
    S4_next:
    v_xor_b32 v7, 0x2000, v7
    v_xor_b32 v{AR}, 0x2000, v{AR}
    s_add_u32 s{sS}, s{sS}, 4
    s_cmp_lt_u32 s{sS}, 64
    s_cbranch_scc1 S4_L''')
    o, st = loop(b.lines, st); out += ['.p2align 6'] + o + ['s_branch L_DONE']
```

```python
from asmlib import *
from layout import *
import common

MEMA, KW, QT, AQK, ACCV, S = 0, 32, 64, 80, 96, 104
IDX, AL0, AL1, AL2, ATR, AQKW, AOW, AP = 116, 117, 118, 119, 120, 121, 122, 123
T0, T1, T2, T3 = 124, 125, 126, 127
WV0, WO0 = 128, 192
SRD = 's[36:39]'
sH, sSTEP, sMEM, sMEM2, sPUB, sIN, sIN2, sW = 40, 41, 42, 43, 44, 45, 46, 47
sPART = 48
sK, sK2, sV, sV2, sPF = 56, 57, 58, 59, 74
sODD = 62
sVAL = 86
sLIM = 88
sC = 64
sRETRY = 65
sRB = 61
sKVM, sFCH, sFKV, sNEED = 60, 89, 90, 91
sSLOT, sDLT, sC2, sKB = 92, 93, 73, 76
SRDW = 's[68:71]'

def vr(a, n): return f'v[{a}:{a+n-1}]' if n > 1 else f'v{a}'
def ar(a, n): return f'a[{a}:{a+n-1}]'
def wq(u, t): return ar((u*8+t)*8, 8)
def wk(u, t): return ar(128 + (u*8+t)*8, 8)
def wv0(t): return vr(WV0 + 8*t, 8)
def wo0(t): return vr(WO0 + 8*t, 8)
def smf(acc, a, b): return f'v_smfmac_f32_16x16x64_bf16 {vr(acc,4)}, {vr(a,4)}, {b}, v{IDX}'
def mf32(d, a, b, c): return f'v_mfma_f32_16x16x32_bf16 {vr(d,4)}, {vr(a,4)}, {vr(b,4)}, {c if isinstance(c,str) else vr(c,4)}'
def mf16(d, a, b, c): return f'v_mfma_f32_16x16x16_bf16 {vr(d,4)}, {vr(a,2)}, {vr(b,2)}, {c if isinstance(c,str) else vr(c,4)}'
def lin(off):
    r = (AL0, AL1, AL2)[off >> 16]
    return r, off & 0xffff
def rd128(dst, off):
    r, o = lin(off); return f'ds_read_b128 {vr(dst,4)}, v{r} offset:{o}'

def startup(p, dbg_ctr_off=64, opt_pf=1, early=True, presc=True, swapa=True):
    p(f'''
    v_and_b32 v65, 63, v0
    v_lshrrev_b32 v66, 6, v0
    v_readfirstlane_b32 s{sW}, v66
    v_and_b32 v67, 15, v65            ; n
    v_lshrrev_b32 v68, 4, v65         ; g
    v_lshlrev_b32 v{AL0}, 4, v65
    v_add_u32 v{AL1}, 0x10000, v{AL0}
    v_add_u32 v{AL2}, 0x20000, v{AL0}
    v_lshlrev_b32 v{AP}, 2, v65       ; lane*4
    v_lshlrev_b32 v69, 4, v67
    v_lshl_add_u32 v78, v68, 2, v69
    v_lshrrev_b32 v69, 2, v67
    v_lshlrev_b32 v69, 6, v69
    v_and_b32 v70, 3, v67
    v_lshl_add_u32 v69, v70, 2, v69
    v_lshl_add_u32 v{T3}, v68, 4, v69
    s_mov_b32 s36, s32
    s_mov_b32 s37, s33
    s_mov_b32 s38, {WS_SIZE}
    s_mov_b32 s39, 0x20000
    v_lshrrev_b32 v69, 1, v67
    v_lshlrev_b32 v69, 10, v69
    v_and_b32 v70, 1, v67
    v_lshlrev_b32 v70, 2, v70
    v_lshl_add_u32 v70, v68, 3, v70
    v_add_u32 v69, v69, v70
    s_lshl_b32 s3, s{sH}, 5
    v_add_u32 v69, s3, v69
    global_load_dword v76, v69, s[6:7]
    v_mov_b32 v72, -1
    v_mov_b32 v73, -1
    v_mov_b32 v74, -1
    v_mov_b32 v75, -1
    s_mul_i32 s3, s{sH}, {INBOX_STRIDE}
    s_add_u32 s{sIN}, s3, {WS_INBOX}
    s_lshl_b32 s3, s{sW}, 11
    s_add_u32 s3, s3, s{sIN}
    s_add_u32 s34, s3, {INBOX_SLOT}
    buffer_store_dwordx4 v[72:75], v{AL0}, {SRD}, s3 offen
    buffer_store_dwordx4 v[72:75], v{AL0}, {SRD}, s3 offen offset:1024
    buffer_store_dwordx4 v[72:75], v{AL0}, {SRD}, s34 offen
    buffer_store_dwordx4 v[72:75], v{AL0}, {SRD}, s34 offen offset:1024
    s_add_u32 s34, s34, {INBOX_SLOT}
    buffer_store_dwordx4 v[72:75], v{AL0}, {SRD}, s34 offen
    buffer_store_dwordx4 v[72:75], v{AL0}, {SRD}, s34 offen offset:1024
    s_lshl_b32 s3, s{sH}, 8
    s_add_u32 s{sPUB}, s3, {WS_MEMS}
    s_add_u32 s3, s{sPUB}, 8192
    buffer_store_dword v72, v{AP}, {SRD}, s3 offen
    v_lshlrev_b32 v69, 13, v68
    v_lshl_add_u32 v69, v67, 4, v69          ; g*8192 + n*16
    s_lshl_b32 s3, s{sW}, 17
    v_add_u32 v69, s3, v69
    v_mov_b32 v71, 0x7fffffff
    v_cmp_gt_u32 vcc, 0x2000, v69
    v_cndmask_b32 v70, v69, v71, vcc
    s_lshl_b32 s3, s{sH}, 8
    s_add_u32 s{sKVM}, s3, {WS_MEMH}
    buffer_store_dwordx4 v[72:75], v70, {SRD}, s{sKVM} offen sc1
    v_add_u32 v69, 0x8000, v69
    buffer_store_dwordx4 v[72:75], v69, {SRD}, s{sKVM} offen sc1
    v_add_u32 v69, 0x8000, v69
    buffer_store_dwordx4 v[72:75], v69, {SRD}, s{sKVM} offen sc1
    v_add_u32 v69, 0x8000, v69
    buffer_store_dwordx4 v[72:75], v69, {SRD}, s{sKVM} offen sc1
    v_lshlrev_b32 v69, 1, v68
    v_xor_b32 v69, v69, v67                  ; n ^ (g<<1)
    v_lshlrev_b32 v69, 4, v69
    v_lshl_add_u32 v80, v68, 13, v69
    v_xor_b32 v81, 0x80, v80              ; off1
    s_lshr_b32 s3, s{sW}, 1
    s_lshl_b32 s3, s3, 7
    v_xor_b32 v82, s3, v{AL0}
    v_xor_b32 v83, 0x20, v82
    v_xor_b32 v84, 0x40, v82
    v_xor_b32 v85, 0x60, v82
    v_lshrrev_b32 v69, 2, v67               ; r
    v_and_b32 v70, 3, v67                   ; c
    v_and_b32 v71, 1, v68
    v_lshl_add_u32 v71, v71, 2, v69          ; f = r | (g&1)<<2
    v_lshlrev_b32 v71, 5, v71
    v_lshl_add_u32 v71, v70, 3, v71          ; f*32 + 8c
    v_lshl_add_u32 v69, v68, 3, v69          ; row = 8g + r
    v_lshl_add_u32 v86, v69, 8, v71
    s_lshl_b32 s3, s{sW}, 6
    v_xor_b32 v86, s3, v86                ; pair 2w
    v_xor_b32 v87, 0x20, v86              ; pair 2w+1
    v_add_u32 v86, {L_W}, v86
    v_add_u32 v87, {L_W}, v87
    v_lshrrev_b32 v69, 2, v67
    v_and_b32 v71, 1, v69                   ; r&1
    v_lshrrev_b32 v69, 1, v69
    v_lshl_add_u32 v69, v69, 2, v71
    v_lshl_add_u32 v69, v68, 3, v69         ; row
    v_and_b32 v90, 1, v68
    v_lshl_add_u32 v71, v90, 2, v71         ; f = (r&1) | (g&1)<<2
    v_lshlrev_b32 v71, 5, v71
    v_lshl_add_u32 v71, v70, 3, v71
    v_lshl_add_u32 v88, v69, 10, v71
    s_lshl_b32 s3, s{sW}, 5
    v_xor_b32 v88, s3, v88
    v_xor_b32 v89, 0x80, v88
    v_xor_b32 v90, 0x40, v88
    v_xor_b32 v91, 0xc0, v88
    v_add_u32 v88, {L_W}, v88
    v_add_u32 v89, {L_W}, v89
    v_add_u32 v90, {L_W}, v90
    v_add_u32 v91, {L_W}, v91
    s_lshl_b32 s66, s{sW}, 12
    s_add_u32 s66, s66, {L_W}
    s_mov_b32 s70, 0x400000
    s_mov_b32 s71, 0x20000
    ''')
    def dma(c):
        mat = c >> 3; t = c & 7
        if t == 0:
            src = (14, 8, 10, 12)[mat]
            p(f's_mov_b32 s68, s{src}\ns_mov_b32 s69, s{src+1}')
            if mat == 0:
                p(f's_lshl_b32 s67, s{sH}, 17\ns_lshl_b32 s3, s{sW}, 12\ns_add_u32 s67, s67, s3')
            else:
                p(f's_lshl_b32 s67, s{sH}, 8\ns_lshl_b32 s3, s{sW}, 17\ns_add_u32 s67, s67, s3')
        for i in range(4):
            p(f's_add_u32 m0, s66, {t*16384 + i*1024}')
            if mat == 0:
                p(f's_add_u32 s3, s67, {(t^4)*16384 + i*1024}')
                p(f'buffer_load_dwordx4 v{82+i}, {SRDW}, s3 offen lds')
            else:
                p(f's_add_u32 s3, s67, {t*64*8192 + i*4*8192}')
                p(f'buffer_load_dwordx4 v{80+(i>>1)}, {SRDW}, s3 offen lds')
    for c in range(8): dma(c)
    p(f'''
    v_and_b32 v69, 1, v67
    v_mov_b32 v70, 0x4444
    v_mov_b32 v71, 0xeeee
    v_cmp_eq_u32 s[{sODD}:{sODD+1}], 1, v69
    v_cndmask_b32 v{IDX}, v70, v71, s[{sODD}:{sODD+1}]
    ; aTR: (d0 + r)*32 + 8c, d0 = 16*(g>>1) + 4*(g&1)
    v_lshrrev_b32 v69, 1, v68
    v_lshlrev_b32 v69, 4, v69
    v_and_b32 v70, 1, v68
    v_lshl_add_u32 v69, v70, 2, v69
    v_lshrrev_b32 v70, 2, v67
    v_add_u32 v69, v69, v70
    v_and_b32 v70, 3, v67
    v_lshlrev_b32 v70, 3, v70
    v_lshl_add_u32 v{ATR}, v69, 5, v70
    ; aQKW: n*32 + 8g
    v_lshlrev_b32 v69, 5, v67
    v_lshl_add_u32 v{AQKW}, v68, 3, v69
    v_lshrrev_b32 v69, 2, v67
    v_and_b32 v70, 1, v67
    v_lshl_add_u32 v69, v69, 1, v70
    v_lshlrev_b32 v69, 5, v69
    v_and_b32 v70, 1, v68
    v_lshl_add_u32 v69, v70, 4, v69
    v_lshrrev_b32 v70, 1, v68
    v_lshl_add_u32 v69, v70, 3, v69         ; m*32 + (g&1)*16 + (g>>1)*8
    v_add_u32 v70, {L_O}, v69
    v_add_u32 v71, {L_DUM}, v69
    v_and_b32 v69, 2, v67
    v_cmp_eq_u32 vcc, 0, v69
    s_lshl_b32 s3, s{sW}, 9               ; (w>>1)*1024 + (w&1)*512
    v_add_u32 v70, s3, v70
    v_cndmask_b32 v{AOW}, v71, v70, vcc
    v_lshrrev_b32 v69, 3, v67
    v_xor_b32 v69, v69, v67
    v_and_b32 v69, 7, v69                   ; e
    v_and_b32 v70, 3, v69
    v_cmp_eq_u32 vcc, 3, v70
    v_mov_b32 v71, 0x3f80
    v_mov_b32 v77, 0x3f800000
    v_cndmask_b32 v71, v71, v77, vcc
    v_cndmask_b32 v70, v70, 0, vcc
    v_or_b32 v70, 12, v70
    v_mul_u32_u24 v70, 0x1111, v70
    ds_write_b32 v{AP}, v70 offset:{L_DUM + 1024}
    v_cmp_gt_u32 vcc, 4, v69
    v_cndmask_b32 v92, 0, v71, vcc
    v_cndmask_b32 v93, v71, 0, vcc
    v_mov_b32 v94, v92
    v_mov_b32 v95, v93
    ds_write_b128 v{AL0}, v[92:95] offset:{L_SEL}
    s_waitcnt lgkmcnt(0)
    v_mov_b32 v92, 0x3f803f80
    v_mov_b32 v93, 0x3f803f80
    v_mov_b32 v94, 0x3f803f80
    v_mov_b32 v95, 0x3f803f80
    ds_write_b128 v{AL0}, v[92:95] offset:{L_ONE}
    s_mov_b32 s{sLIM}, 0x53800000          ; 2^40
    v_mov_b32 v{T1}, 0
    s_mov_b32 s{sVAL}, 0x33333333
    s_mov_b32 s{sVAL+1}, 0x33333333
    s_mov_b32 s{sODD}, 0
    s_mov_b32 s{sODD+1}, -1
    s_mov_b32 s{sC}, 0x3e0293ee           ; log2(e)/sqrt(128)
    ''')
    issued = 7
    def allowed(c): return 4 * (issued - c)
    c = 0
    while c < 32:
        mat = c >> 3; t = c & 7
        if mat == 0:
            first = t == 0
            p(f's_waitcnt vmcnt({allowed(c+3)})')
            if first:
                p(f'''@wait_reset
                v_min_u32 v76, -2, v76
                buffer_store_dword v76, v78, {SRD}, s{sPUB} offen
                buffer_store_dword v76, v78, {SRD}, s{sKVM} offen sc1
                v_mov_b32 v79, v0''')
            p('s_barrier')
            for tt in range(8):
                for q, o in enumerate((0, 2048, 32768, 34816)):
                    d = (0 if first else WO0) + tt*8 + 2*q
                    p(f'ds_read_b64_tr_b16 v[{d}:{d+1}], v{88 + (tt&1) + 2*(q&1)} offset:{o + (tt>>1)*256}')
                if tt & 1: p('s_waitcnt lgkmcnt(0)')
            p('s_barrier')
            if first: p('v_add_u32 v88, 0x10000, v88\nv_add_u32 v89, 0x10000, v89\nv_add_u32 v90, 0x10000, v90\nv_add_u32 v91, 0x10000, v91')
            for k in range(4): dma(c + 8 + k)
            issued += 4; c += 4
            continue
        p(f's_waitcnt vmcnt({allowed(c) + (3 if early and c >= 28 else 0)})')
        p('s_barrier')
        if early and c == 23:
            p(f'''v_mov_b32 v69, {D_CHINIT}
            v_and_b32 v70, 63, v{AP}
            s_lshl_b32 s3, s{sH}, 6
            s_add_u32 s3, s3, {F_KV}
            @junk global_load_dword v66, v69, s[30:31] sc1
            @junk global_load_dword v67, v69, s[30:31] offset:{D_INIT - D_CHINIT} sc1
            @junk buffer_load_dword v68, v70, {SRD}, s3 offen sc1''')
        if early and c == 27:
            p(f'''v_lshlrev_b32 v69, 3, v{AL0}
            s_mul_i32 s3, s{sW}, {INBOX_SLOT}
            s_add_u32 s3, s3, s{sIN}
            s_cmp_eq_u32 s{sW}, 3
            s_cselect_b32 s3, {WS_MEMS}, s3
            @junk buffer_load_dword v65, v69, {SRD}, s3 offen sc1
            s_mov_b32 s3, {WS_MEMS + 8192}
            @junk buffer_load_dword v65, v69, {SRD}, s3 offen sc1
            s_getpc_b64 s[34:35]
            C_pc:
            s_add_u32 s34, s34, C_code - C_pc
            s_addc_u32 s35, s35, 0
            s_lshl_b32 s3, s{sW}, 13
            v_add_u32 v69, s3, v69
            v_min_u32 v69, L_DONE - C_code - 4, v69
            @junk global_load_dword v65, v69, s[34:35]''')
        if early and c == 30:
            p(f'''s_mov_b32 s77, 0
            v_cmp_gt_u32 vcc, 32, v66
            s_cbranch_vccnz C_late
            v_cmp_gt_u32 vcc, 1, v67
            s_cbranch_vccnz C_late
            v_cmp_gt_u32 vcc, 1, v68
            s_cbranch_vccnz C_late
            s_mov_b32 s77, 1
            s_lshl_b32 s3, s{sH}, 14
            s_lshl_b32 s34, s{sW}, 11
            s_add_u32 s35, s3, {WS_KV + 8192}
            s_add_u32 s3, s3, s34
            s_add_u32 s3, s3, {WS_KV}
            s_add_u32 m0, s34, {L_K}
            v_lshlrev_b32 v69, 3, v{AL0}
            buffer_load_dwordx4 v{AL0}, {SRD}, s3 offen sc1 lds
            buffer_load_dwordx4 v{AL0}, {SRD}, s3 offen offset:1024 sc1 lds
            @junk buffer_load_dword v65, v69, {SRD}, s35 offen sc1
            C_late:''')
        if c == 12:
            p(f'''v_mov_b32 v69, {dbg_ctr_off}
            v_mov_b32 v70, 1
            v_cmp_eq_u32 vcc, 0, v79
            s_and_saveexec_b64 s[34:35], vcc
            s_cbranch_execz L_noinc
            global_atomic_add v69, v70, s[30:31]
            L_noinc:
            s_mov_b64 exec, s[34:35]''')
        for u in range(2):
            for q, o in enumerate((0, 1024, 8192, 9216)):
                if mat == 1 and presc:
                    p(f'ds_read_b64_tr_b16 v[{96 + 8*u + 2*q}:{97 + 8*u + 2*q}], v{86+u} offset:{o + (t&3)*16384}')
                elif mat < 3:
                    d = (mat-1)*128 + (u*8+t)*8 + 2*q
                    p(f'ds_read_b64_tr_b16 a[{d}:{d+1}], v{86+u} offset:{o + (t&3)*16384}')
                else:
                    d = (WV0 + 8*t if u == 0 else 96) + 2*q
                    p(f'ds_read_b64_tr_b16 v[{d}:{d+1}], v{86+u} offset:{o + (t&3)*16384}')
        p('s_waitcnt lgkmcnt(0)\ns_barrier')
        if t == 3: p('v_add_u32 v86, 0x10000, v86\nv_add_u32 v87, 0x10000, v87')
        if t == 7: p('v_subrev_u32 v86, 0x10000, v86\nv_subrev_u32 v87, 0x10000, v87')
        if mat == 3:
            if t == 0: p(f'v_add_u32 v90, s66, v{AL0}')
            if t == 4: p('v_add_u32 v90, 0x10000, v90')
            sw = swapa and t >= 6
            o1 = WV0 + 8*(t - 6) if sw else 8*t
            for k, r in enumerate((96, 100, o1, o1+4)):
                p(f'ds_write_b128 v90, v[{r}:{r+3}] offset:{(t&3)*16384 + k*1024}')
            p('s_waitcnt lgkmcnt(0)')
            if sw:
                for k in range(0, 8, 2): p(f'v_mov_b64 {vr(o1 + k, 2)}, {vr(8*t + k, 2)}')
        if c + 8 < 32:
            dma(c + 8); issued += 1
        if mat == 1 and presc:
            for i in range(16):
                p(f'v_lshlrev_b32 v112, 16, v{96+i}\nv_and_b32 v113, 0xffff0000, v{96+i}\nv_mul_f32 v112, s{sC}, v112\nv_mul_f32 v113, s{sC}, v113\nv_cvt_pk_bf16_f32 v112, v112, v113\nv_accvgpr_write_b32 a{((i >> 3)*8 + t)*8 + (i & 7)}, v112')
        c += 1
    p(f'''
    s_mov_b32 s{sSTEP}, 0
    s_mov_b32 s{sMEM}, {WS_MEMS}
    s_mov_b32 s{sMEM2}, {WS_MEMS + 4096}
    s_add_u32 s{sPUB}, s{sPUB}, 8192
    s_mov_b32 s{sSLOT}, 0
    s_mov_b32 s{sC2}, {INBOX_SLOT}
    s_lshl_b32 s3, s{sW}, 11
    s_add_u32 s3, s3, s{sIN}
    s_mov_b32 s{sKB}, {L_K}
    s_add_u32 s{sV2}, s3, {2*INBOX_SLOT}
    s_add_u32 s{sIN2}, s{sIN}, 4096
    s_mul_i32 s3, s{sW}, {INBOX_STRIDE}
    s_lshl_b32 s34, s{sH}, 8
    s_add_u32 s3, s3, s34
    s_add_u32 s{sPART}, s3, {WS_INBOX}
    ''')
    for t in range(1, 8): p(f's_add_u32 s{sPART+t}, s{sPART}, {4*t*INBOX_STRIDE}')
    p(f'''
    s_lshl_b32 s3, s{sH}, 14
    s_add_u32 s{sK}, s3, {WS_KV}
    s_add_u32 s{sK2}, s{sK}, 4096
    s_lshl_b32 s34, s{sW}, 11
    s_add_u32 s{sV}, s{sK}, 8192
    s_add_u32 s{sPF}, s{sK}, {opt_pf*32*16384}
    s_add_u32 s{sPF+1}, s{sV}, {32*16384}
    s_cmp_eq_u32 s{sW}, 2
    s_cselect_b32 s{sPF}, s{sPF+1}, s{sPF}
    s_add_u32 s{sV}, s{sV}, s34
    s_lshl_b32 s3, s{sH}, 6
    s_add_u32 s{sFKV}, s3, {F_KV}
    s_mov_b32 s{sRETRY}, 0
    s_mov_b32 s{sRB}, 0
    ''')
    for r in range(0, 24, 2): p(f'v_mov_b64 {vr(AQK+r,2)}, 0')

def kdma(p):
    L = []
    for half, so in ((0, sK), (1, sK2)):
        L.append(f's_mov_b32 m0, {L_K + half*4096}')
        for i in range(4): L.append(f'buffer_load_dwordx4 v{AL0}, {SRD}, s{so} offen offset:{i*1024} sc1 lds')
    return L
def vdma(p):
    L = []
    for half, so in ((0, sV), (1, sV2)):
        L.append(f's_mov_b32 m0, {L_V + half*4096}')
        for i in range(4): L.append(f'buffer_load_dwordx4 v{AL0}, {SRD}, s{so} offen offset:{i*1024} sc1 lds')
    return L

def step(w, nsteps, opt, var=0):
    p = Prog(); slow = Prog()
    tag = f'{w}' if w else f'0v{var}'
    Q0, Q1, K0, K1 = AQK, AQK+4, AQK+8, AQK+12
    V0, V1 = ACCV, ACCV+4
    SX0, SX1, SM = S, S+4, S+8
    def wl(u, t): return L_W + t*16384 + w*4096 + u*2048
    def wrd(slot, u, t): return rd128(KW + 8*slot, wl(u, t)) + '\n' + rd128(KW + 8*slot + 4, wl(u, t) + 1024)
    nst = [0]; pastS7 = [False]
    def stamp():
        i = nst[0]; nst[0] += 1
        if opt.get('trace'):
            if opt.get('w0st') and i in (1, 2, 3) and not pastS7[0]: return
            if i in opt['trace']:
                p(f's_cmp_eq_u32 s{sSTEP}, {opt.get("at", 41)}\ns_cbranch_scc0 TR{tag}_{i}\ns_memrealtime s[96:97]\ns_waitcnt lgkmcnt(0)\ns_mov_b32 s{4+i}, s96\nTR{tag}_{i}:')
            return
        if i not in opt.get('stamps', ()): return
        if opt.get('w0st') and i in (1, 2, 3) and not pastS7[0]: return
        p(f's_memtime s[96:97]\ns_waitcnt lgkmcnt(0)\ns_sub_u32 s99, s96, s98\ns_mov_b32 s98, s96\ns_add_u32 s{4+i}, s{4+i}, s99')
    def backoff(cyc, why):
        if cyc <= 0: return
        if opt.get('slpmode', 0):
            if cyc >= 64: p(f's_sleep {cyc // 64}')
            cyc %= 64
        while cyc > 0:
            k = min(cyc // 4, 16); p(f's_nop {k-1}'); cyc -= 4*k
    def epi(acc): return [f'v_add_f32 v{acc}, v{acc}, v{acc+1}', f'v_add_f32 v{acc+2}, v{acc+2}, v{acc+3}', f'v_cvt_pk_bf16_f32 v{acc}, v{acc}, v{acc+2}']
    def epq(acc):
        e = epi(acc)
        return e[:2] + [f'v_mul_f32 v{acc}, s{sC}, v{acc}', f'v_mul_f32 v{acc+2}, s{sC}, v{acc+2}'] + e[2:]
    def qkw(base, u, acc): return f'ds_write_b32 v{AQKW}, v{acc} offset:{base + (32*w + 16*u)*32}'
    def trd(dst, base, ks, h): return f'ds_read_b64_tr_b16 {vr(dst + 4*ks + 2*h, 2)}, v{ATR} offset:{base + ks*1024 + h*256}'
    def mloc(t): return L_Q + t*1024 if t < 4 else L_V + (t-4)*1024
    def gld(dst, t): return f'buffer_load_dwordx4 {vr(dst,4)}, v{AL0}, {SRD}, s{sMEM if t < 4 else sMEM2} offen offset:{(t&3)*1024} sc1'
    def mwr(src, t): return f'ds_write_b128 v{AL0}, {vr(src,4)} offset:{mloc(t)}'
    def mx(first, m, k):
        if first: return f'v_max3_u32 v{T0}, v{m}, v{m+1}, v{m+2}' if k == 0 else f'v_max_u32 v{T0}, v{T0}, v{m+3}'
        return f'v_max3_u32 v{T0}, v{T0}, v{m+2*k}, v{m+2*k+1}'
    CMP = f'v_cmp_eq_u32 vcc, -1, v{T0}'
    TMO = lambda r: f's_add_u32 s{r}, s{r}, 1\ns_cmp_gt_u32 s{r}, {LIMIT}\ns_cbranch_scc1 L_ABORT'
    own = (w + 3) & 3
    fb = (own + 4,)
    LB, NEG = QT + 4, QT + 12
    D = opt.get('D', 2)
    def v1s(t): return smf(V1, MEMA + 4*t, vr(KW + 8*(t & 3), 8))
    swapa = opt.get('swapa', 0)
    def v0s(t): return smf(V0, MEMA + 4*t, vr(MEMA + 16 + 8*t, 8) if swapa and t < 2 else wv0(t))
    xpre = [rd128(MEMA + 16 + 8*i + 4*j, wl(1, 6 + i) + 1024*j) for i in range(2) for j in range(2)] if swapa else []
    def qs(u, t): return smf(Q0 + 4*u, MEMA + 4*t, wq(u, t))
    def ks_(u, t): return smf(K0 + 4*u, MEMA + 4*t, wk(u, t))
    full = not opt.get('proto')
    adv0 = [f's_add_u32 s{sV2}, s{sIN}, 0', f's_add_u32 s{sIN}, s{sIN}, s{sDLT}', f's_add_u32 s{sIN2}, s{sIN2}, s{sDLT}', f's_xor_b32 s{sPUB}, s{sPUB}, 8192']
    rb2 = opt.get('rb2') and w == 0 and var in opt.get('rb2v', (0, 1, 2))
    p(f'HA{tag}:')
    sp = opt.get('sp', 0)
    PS = [S, S + 4, S + 8, QT + 8, LB]
    backoff(opt.get('pdc', [32*x for x in opt.get('pd', (0, 0))])[1 if w else 0], 'the new memory rows are still on their way to L2')
    for i in range(D - 1):
        p(gld(PS[i], own))
        if i == 0 and not opt.get('lean', 0): p(TMO(sRETRY))
        if rb2 and i == 0:
            p('\n'.join(adv0)); p('s_waitcnt vmcnt(2)')
            for k in range(4): p(wrd(k, 0, k))
            for x in xpre: p(x)
            continue
        backoff(opt['spl'][i] if 'spl' in opt else opt.get('spc', 32*sp) + (12 if i else 0), 'spread the polls in flight over one round trip')
    rf = lambda t: wrd(t & 3, 0, t).split('\n')
    def head(q):
        q(gld(LB, own + 4))
        if w == 0: q(f'buffer_store_dword v{NEG}, v{AP}, {SRD}, s{sPUB} offen')
        q(qs(0, own)); q(v1s(own)); q(rf(own + 4)[0]); q(qs(1, own)); q(rf(own + 4)[1])
        for x in ownl[:nb4]: q(x)
    spec = opt.get('spec', 0)
    ownl = [ks_(0, own), ks_(1, own), v0s(own)]
    nb4 = opt.get('nb4', 1)
    def chk1(q, m):
        q(mwr(m, own)); q(mx(1, m, 0)); q(mx(1, m, 1)); q(CMP)
        q(f'v_mov_b64 {vr(MEMA + 4*own, 2)}, {vr(m, 2)}'); q(f'v_mov_b64 {vr(MEMA + 4*own + 2, 2)}, {vr(m + 2, 2)}')
    if opt.get('lean', 0):
        p('@nowait ' + gld(PS[D - 1], own))
        for i in range(D):
            p(f's_waitcnt vmcnt({D-1-i})'); chk1(p, PS[i])
            p(f's_cbranch_vccz HK{tag}' if i < D - 1 else f's_cbranch_vccnz HR{tag}')
        slow(f'HR{tag}:')
        for i in range(D - 1): slow('@nowait ' + gld(PS[i], own)); slow('s_sleep 1')
        slow(f'HL{tag}:')
        for i in range(D):
            slow('@nowait ' + gld(PS[(i + D - 1) % D], own)); slow(f's_waitcnt vmcnt({D-1})'); chk1(slow, PS[i]); slow(f's_cbranch_vccz HK{tag}')
        slow(TMO(sRETRY)); slow(f's_branch HL{tag}')
    else:
        p(f'HL{tag}:')
        for i in range(D):
            p('@nowait ' + gld(PS[(i + D - 1) % D], own))
            p(f's_waitcnt vmcnt({D-1})'); chk1(p, PS[i])
            p(f's_cbranch_vccz HK{tag}' if i < D - 1 else f's_cbranch_vccnz HR{tag}')
        slow(f'HR{tag}:'); slow(TMO(sRETRY)); slow(f's_branch HL{tag}')
    if spec:
        slow(f'HK{tag}:'); slow('s_waitcnt lgkmcnt(1)\n@wait_reset'); head(slow); slow(f's_branch HJ{tag}')
    else:
        p(f'HK{tag}:')
        p(f'@vm {D-1}')
        p('s_waitcnt lgkmcnt(1)')
        head(p)
    if opt.get('trace'):
        nst[0] = 9; stamp(); nst[0] = 0
    p('s_waitcnt lgkmcnt(2)')
    p('s_barrier')
    stamp()
    if opt.get('first'):
        p('s_memtime s[96:97]\ns_waitcnt lgkmcnt(0)\ns_sub_u32 s96, s96, s94')
        for i, st_ in enumerate((0, 1, 2, 3, 4, 5, 10, 20, 40, 62)): p(f's_cmp_eq_u32 s{sSTEP}, {st_}\ns_cselect_b32 s{4+i}, s96, s{4+i}')
    oth = [t for t in range(4) if t != own]
    for t in oth: p(rd128(MEMA + 4*t, mloc(t)))
    if opt.get('log') and w == 1:
        p(f's_{"memrealtime" if opt["log"] == 2 else "memtime"} s[96:97]\ns_waitcnt lgkmcnt(0)\ns_mov_b32 m0, s{sSTEP}\nv_writelane_b32 v{T3}, s96, m0')
    for x in ownl[nb4:]: p(x)
    vm = []
    pub = f'buffer_store_dword v{QT}, v{T3}, {SRD}, s{sKVM} offen sc1' if full and w == 0 else None
    if w == 3 and full:
        vm.append((0, f'v_and_b32 v{T2}, 63, v{AP}\n@junk buffer_load_dword v{T3}, v{T2}, {SRD}, s{sFKV} offen sc1'))
    if w in (1, 2):
        p(f'v_lshlrev_b32 v{T2}, 3, v{AL0}')
        vm.append((opt.get('gg', (4, 8))[w-1], f'@junk buffer_load_dword v{T3}, v{T2}, {SRD}, s{sPF} offen sc1'))
    seq = []
    xa = opt.get('xa', 2)
    v0l = [v0s(t) for t in oth + [4, 5, 6, 7]]
    if swapa:
        defer = []
        for i, t in enumerate(oth):
            seq += [qs(0, t), v1s(t), qs(1, t), ks_(0, t)]
            if i < xa and t < 2: seq.append(v0l[i]); defer.append(ks_(1, t))
            else:
                seq.append(ks_(1, t))
                if i < xa: defer.append(v0l[i])
        seq += defer
    else:
        for t in oth: seq += [qs(0, t), v1s(t), qs(1, t), ks_(0, t), ks_(1, t)]
        seq += v0l[:xa]
    B0 = len(seq)
    for t in range(4, 8): seq += [qs(0, t), v1s(t), qs(1, t)]
    P2 = len(seq)
    rest = v0l[xa:]
    nmid_ = len(rest) - 4
    seq += [ks_(0, t) for t in range(4, 8)] + rest[:nmid_] + [ks_(1, t) for t in range(4, 8)] + rest[nmid_:]
    NP = len(seq) - P2
    gap = [[] for _ in seq]
    def put(g, *ins):
        for x in ins: gap[g] += x.split('\n')
    sbw, sbb = opt.get('sbw', 8), opt.get('sbb', 13)
    put(1, rf(oth[0] + 4)[0]); put(2, rf(oth[0] + 4)[1]); put(6, rf(oth[1] + 4)[0]); put(7, rf(oth[1] + 4)[1])
    put(sbw, mwr(LB, own + 4))
    for i, x in enumerate((mx(1, LB, 0), mx(1, LB, 1), CMP)): put(sbw + 1 + i, x)
    put(sbb, f's_cbranch_vccnz SB{tag}\nSBR{tag}:', 's_waitcnt lgkmcnt(0)', 's_barrier', rd128(MEMA + 16, mloc(4)))
    g = sbb + 1
    for x in [rd128(MEMA + 4*tt, mloc(tt)) for tt in range(5, 8)] + rf(oth[2] + 4):
        put(g, x); g += 1
    VX0, VX1, OA0, OA1 = (MEMA + 4*t for t in [own] + oth)
    LACC, ONES, PX, E0 = MEMA+16, MEMA+20, MEMA+24, MEMA+28
    assert xa >= 1
    gv = max(sbb + 1, B0 - 1)
    put(gv, f'buffer_load_dwordx4 {vr(VX0,4)}, v{AL0}, {SRD}, s{sV} offen sc1')
    put(gv + 1, f'buffer_load_dwordx4 {vr(VX1,4)}, v{AL0}, {SRD}, s{sV} offen offset:1024 sc1')
    kpos, rpos = opt.get('kpos', 'S7'), opt.get('rpos', 'B4')
    rst = [f'buffer_store_dwordx4 {vr(NEG,4)}, v{AL0}, {SRD}, s{sV2} offen offset:{i*1024}' for i in range(2)]
    kdm = []
    for f in {0: (), 1: (0, 1, 2), 2: (3, 4, 5), 3: (6, 7)}[w]:
        if not kdm or f == 4: kdm.append(f's_mov_b32 m0, {L_K + (f >> 2)*4096}')
        kdm.append(f'buffer_load_dwordx4 v{AL0}, {SRD}, s{sK if f < 4 else sK2} offen offset:{(f & 3)*1024} sc1 lds')
    if rpos == 'P1':
        rg = opt.get('rg', ((0, 4), (3, 5), (4, 0), (5, 3)))[w]
        for i in range(2): put(rg[i], rst[i])
    gk = gv + 2
    if kpos == 'P1': put(gk, kdm[0]); put(gk + 1, kdm[1])
    else: gk = gv
    assert kpos != 'P1'
    gs = gk + opt.get('gsl', 2)
    for i, x in vm: put(min(gs + i, P2 - 1), x)
    if pub: put(gs + opt.get('pg', (0, 1, 2, 3))[w], pub)
    kr = [rd128(KW + 4*f, L_K + f*1024) for f in range(8)]
    for i in range(4):
        g0 = max(B0 + 3*i + 1, g)
        put(g0, kr[2*i]); put(min(g0 + 1, P2 - 1) if i < 3 else P2 - 1, kr[2*i + 1])
    e0, e1 = epq(Q0), epq(Q1)
    qtr = [trd(QT, L_Q, ks, h) for ks in range(4) for h in range(2)]
    ek0, ek1, ev0, ev1 = epi(K0), epi(K1), epi(V0), epi(V1)
    G = lambda k: min(P2 + k, len(seq) - 1)
    kend = P2 + 4 + nmid_ + 3
    if opt.get('presc', 0):
        e0, e1 = epi(Q0), epi(Q1)
        put(G(0), e0[0], e0[1]); put(G(1), e0[2], e1[0]); put(G(2), qkw(L_Q, 0, Q0)); put(G(3), e1[1], e1[2]); put(G(4), qkw(L_Q, 1, Q1))
        put(G(5), ek0[0]); put(G(6), ek0[1]); put(G(7), ek0[2])
        gb = opt.get('gb', 8)
        put(G(gb), 's_waitcnt lgkmcnt(0)', 's_barrier')
        put(G(gb + 1), qtr[0], qtr[1])
        put(G(10), ek1[0], ek1[1]); put(G(11), ek1[2], qkw(L_KM, 1, K1))
        put(G(gb), qkw(L_KM, 0, K0)); put(G(10), qtr[2]); put(G(12), qtr[3], qtr[4])
        late_q = qtr[5:]
        assert kend + 2 - P2 == 10
    else:
        put(G(0), e0[0], e0[1]); put(G(1), e0[2], e0[3]); put(G(2), e0[4], e1[0]); put(G(3), qkw(L_Q, 0, Q0), e1[1])
        put(G(4), e1[2], e1[3]); put(G(5), e1[4]); put(G(6), qkw(L_Q, 1, Q1))
        put(G(7), ek0[0], ek0[1]); put(G(8), ek0[2]); put(G(9), qkw(L_KM, 0, K0))
        gb = opt.get('gb', 10)
        put(G(gb), 's_waitcnt lgkmcnt(1)', 's_barrier')
        e1g = kend + 2 - P2
        put(G(e1g), ek1[0], ek1[1])
        put(G(gb + 1), qtr[0], qtr[1])
        put(G(max(e1g + 1, gb + 1)), ek1[2], qkw(L_KM, 1, K1))
        put(G(gb + 2), qtr[2], qtr[3])
        put(len(seq) - 1, qtr[4], qtr[5])
        late_q = qtr[6:]
    for i, (m_, gg) in enumerate(zip(seq, gap)):
        p(m_)
        for x in gg: p(x)
        if i == B0 - 1 or i == G(gb): stamp()
    PM = T0
    def sx(tile, ks): return mf32(S + 4*tile, KW + 16*tile + 4*ks, QT + 4*ks, '0' if ks == 0 else S + 4*tile)
    def sm(ks): return mf32(SM, AQK + 4*ks, QT + 4*ks, '0' if ks == 0 else SM)
    def ex(d, r): return f'v_exp_f32 v{d}, v{r}'
    def cv(d, a_): return f'v_cvt_pk_bf16_f32 v{d}, v{a_}, v{a_+1}'
    ktr = [trd(AQK, L_KM, ks, h) for ks in range(4) for h in range(2)]
    lq = list(late_q)
    p(sx(0, 0)); p(lq.pop(0))
    p(sx(1, 0)); p(lq.pop(0))
    p(sx(0, 1))
    if lq: p(lq.pop(0))
    else: p(ev1[0]); p(ev1[1])
    p(sx(1, 1))
    p(f's_waitcnt lgkmcnt({5 if len(late_q) == 3 else 6})'); p('s_barrier'); stamp()
    p(sx(0, 2)); p(ktr[0]); p(ktr[1])
    p(sx(0, 3)); p(ktr[2]); p(ktr[3])
    p(sx(1, 2)); p(ktr[4]); p(ktr[5])
    p(sx(1, 3)); p(ktr[6]); p(ktr[7])
    p(rd128(ONES, L_ONE))
    p(sm(0)); p(ex(E0, SX0))
    p(sm(1)); p(ex(E0+1, SX0+1))
    p(sm(2)); p(ex(E0+2, SX0+2))
    p(sm(3)); p(ex(E0+3, SX0+3))
    p(cv(PX, E0)); p(ex(E0, SX1)); p(cv(PX+1, E0+2)); p(ex(E0+1, SX1+1))
    p(ex(E0+2, SX1+2)); p(ex(E0+3, SX1+3)); p(cv(PX+2, E0)); p(ex(E0, SM)); p(cv(PX+3, E0+2)); p(ex(E0+1, SM+1))
    if len(late_q) == 3: p(ev1[0]); p(ev1[1])
    stamp()
    p(ev1[2])
    p(mf32(LACC, ONES, PX, '0')); p(cv(PM, E0)); p(ev0[0])
    p(mf32(OA0, VX0, PX, '0')); p(ev0[1]); p(f'v_mov_b32 v{V1+1}, 0')
    p(mf32(OA1, VX1, PX, '0')); p(ev0[2]); p(f'v_mov_b32 v{V0+1}, 0')
    p(mf16(LACC, ONES, PM, LACC))
    p(f'v_mov_b64 {vr(AQK+2,2)}, 0\nv_mov_b64 {vr(AQK+4,2)}, 0')
    p(mf16(OA0, V0, PM, OA0))
    p(f'v_mov_b64 {vr(AQK+6,2)}, 0\nv_mov_b64 {vr(AQK+8,2)}, 0')
    p(mf16(OA1, V1, PM, OA1))
    p(f'v_rcp_f32 v{T2}, v{LACC}')
    p(f'v_mov_b64 {vr(AQK,2)}, 0')
    p(f'v_max_f32 v{E0}, v{T2}, v{LACC}')
    p(f'v_cmp_nge_f32 vcc, s{sLIM}, v{E0}')
    for r in range(4): p(f'v_mul_f32 v{OA0+r}, v{OA0+r}, v{T2}')
    p(f's_and_b64 s[34:35], vcc, s[{sVAL}:{sVAL+1}]'); p(f's_cbranch_scc1 FB{tag}'); p(f'FBC{tag}:')
    p(cv(OA0, OA0)); p(cv(OA0+1, OA0+2))
    p(f'ds_write_b64 v{AOW}, {vr(OA0,2)}')
    for r in (0, 2): p(f'v_pk_mul_f32 {vr(OA1+r,2)}, {vr(OA1+r,2)}, {vr(T2,2)} op_sel_hi:[1,0]')
    p(cv(OA1, OA1)); p(cv(OA1+1, OA1+2))
    p(f'ds_write_b64 v{AOW}, {vr(OA1,2)} offset:256')
    slow(f'FB{tag}:')
    slow(f"""s_nop 7
    v_max3_f32 v{T2}, v{SX0}, v{SX0+1}, v{SX0+2}
    v_max3_f32 v{T2}, v{T2}, v{SX0+3}, v{SX1}
    v_max3_f32 v{T2}, v{T2}, v{SX1+1}, v{SX1+2}
    v_max3_f32 v{T2}, v{T2}, v{SX1+3}, v{SM}
    v_max_f32 v{T2}, v{T2}, v{SM+1}
    v_mov_b32 v{E0}, v{T2}
    v_permlane16_swap_b32 v{T2}, v{E0}
    v_max_f32 v{T2}, v{T2}, v{E0}
    v_mov_b32 v{E0}, v{T2}
    v_permlane32_swap_b32 v{T2}, v{E0}
    v_max_f32 v{T2}, v{T2}, v{E0}""")
    for k in range(5):
        for j in range(2): slow(f'v_sub_f32 v{E0+j}, v{S+2*k+j}, v{T2}')
        for j in range(2): slow(ex(E0+j, E0+j))
        slow(cv(PX + k if k < 4 else PM, E0))
    slow(mf32(LACC, ONES, PX, '0')); slow(mf32(OA0, VX0, PX, '0')); slow(mf32(OA1, VX1, PX, '0'))
    slow(mf16(LACC, ONES, PM, LACC)); slow(mf16(OA0, V0, PM, OA0)); slow(mf16(OA1, V1, PM, OA1))
    slow(f'v_rcp_f32 v{T2}, v{LACC}')
    for r in range(4): slow(f'v_mul_f32 v{OA0+r}, v{OA0+r}, v{T2}')
    slow(f's_nop 7\ns_branch FBC{tag}')
    stamp()
    acc = [AQK, AQK+4, AQK+8, AQK+12, MEMA+16, MEMA+20, MEMA+24, MEMA+28]
    land = [KW, KW+8, KW+16, KW+24, MEMA, QT+8, S, ACCV]
    for r in list(range(AQK+10, AQK+16, 2)) + list(range(MEMA+16, MEMA+32, 2)): p(f'v_mov_b64 {vr(r,2)}, 0')
    w1 = []
    if swapa: land[6], land[7] = WV0, WV0 + 8
    for t in range(6 if swapa else 8): w1 += [rd128(land[t], wl(1, t)), rd128(land[t] + 4, wl(1, t) + 1024)]
    npre = opt.get('w1pre', 0)
    for x in w1[:npre]: p(x)
    p(f's_waitcnt lgkmcnt({npre})'); p('s_barrier')
    stamp()
    OP = QT
    p(rd128(OP, L_O)); p(rd128(OP+4, L_O + 1024))
    nmid = opt.get('w1mid', 6)
    for x in w1[npre:npre+nmid]: p(x)
    w1 = w1[npre+nmid:]
    assert npre + nmid >= 7 or (swapa and npre + nmid >= 3)
    def pst(t): return f'buffer_store_dword v{acc[t]}, v{AP}, {SRD}, s{sPART+t} offen'
    book = [f's_add_u32 s{sSTEP}, s{sSTEP}, 1', f's_xor_b32 s{sMEM}, s{sMEM}, 8192', f's_xor_b32 s{sMEM2}, s{sMEM2}, 8192',
            f's_add_u32 s{sSLOT}, s{sSLOT}, 1', f's_cmp_eq_u32 s{sSLOT}, 3', f's_cselect_b32 s{sDLT}, {(-2*INBOX_SLOT) & 0xffffffff}, s{sC2}', f's_cselect_b32 s{sSLOT}, 0, s{sSLOT}']
    book += [f's_add_u32 s{sV}, s{sV}, {32*16384}']
    if w in (1, 2): book += [f's_add_u32 s{sPF}, s{sPF}, {32*16384}']
    es = [epi(acc[t]) for t in range(8)]
    for t in range(8):
        p(smf(acc[t], OP, wo0(t)))
        if w1: p(w1.pop(0))
        elif book: p(book.pop(0))
        if t >= 2: p(es[t-2][2])
        p(smf(acc[t], OP+4, vr(land[t], 8)))
        if t >= 2: p(pst(t-2))
        if w1 and (t < 1 or opt.get('w1both', 1)): p(w1.pop(0))
        elif book: p(book.pop(0))
        if t >= 1: p(es[t-1][0]); p(es[t-1][1])
    p(es[6][2]); p(pst(6))
    p(es[7][0]); p(es[7][1]); p(es[7][2]); p(pst(7))
    pastS7[0] = True
    stamp()
    if kpos == 'S7': p('\n'.join(kdm))
    if rpos == 'S7': p('\n'.join(rst))
    if full:
        if w == 0: book.append(f's_lshl_b32 s3, s{sSTEP}, 13\ns_add_u32 s{sKVM}, s3, s{sFCH}')
        if w == 3:
            p(f"""s_add_u32 s{sNEED}, s{sSTEP}, 2
            s_lshr_b32 s{sNEED}, s{sNEED}, 2
            s_add_u32 s{sNEED}, s{sNEED}, 1
            s_min_u32 s{sNEED}, s{sNEED}, 16""")
            slow(f'KVW:\nv_and_b32 v{T2}, 63, v{AP}')
            common.wait_flags(slow, 'KVL', T2, f's{sFKV}', f's{sNEED}', T3)
            slow('s_branch KVR')
    if w == 0: p(rd128(S, L_SEL)); p(f'ds_read_b32 v{S+4}, v{AP} offset:{L_DUM + 1024}\nv_mov_b64 {vr(S+8,2)}, 0\nv_mov_b64 {vr(S+10,2)}, 0')
    adv = [f's_add_u32 s{sV2}, s{sIN}, {w*2048}', f's_add_u32 s{sIN}, s{sIN}, s{sDLT}'] + ([f's_add_u32 s{sIN2}, s{sIN2}, s{sDLT}'] if w == 0 else [])
    late = (kdm if kpos == 'B4' or (w == 0 and kpos in ('mid', 'end')) else []) + ([] if rpos != 'B4' else rst)
    if w: adv += [f's_add_u32 s{sK}, s{sK}, {32*16384}', f's_add_u32 s{sK2}, s{sK2}, {32*16384}']
    adv = late + adv
    hk1 = []
    for t in range(8): hk1 += [f's_add_u32 s{sPART+t}, s{sPART+t}, s{sDLT}', f'v_mov_b64 {vr(AQK+2*t,2)}, 0']
    pre = [x for i in range(4) for x in wrd(i, 0, i).split('\n')] + xpre
    z2 = [f'v_mov_b64 {vr(AQK+r,2)}, 0' for r in range(16, 24, 2)] + [f'v_mov_b64 {vr(NEG,2)}, -1', f'v_mov_b64 {vr(NEG+2,2)}, -1']
    hk2 = []
    for i, x in enumerate(pre): hk2 += [x] + ([z2[i]] if i < len(z2) else [])
    for b_ in book: p(b_)
    if w == 0:
        R0, R = S + 4, S + 8
        def ibl(base): return [f'buffer_load_dwordx4 {vr(base+4*u,4)}, v{AL0}, {SRD}, s{sIN if u < 4 else sIN2} offen offset:{(u&3)*1024} sc1' for u in range(8)]
        def red(q, base): q(f'v_smfmac_f32_16x16x64_bf16 {vr(R,4)}, {vr(S,4)}, {vr(base, 8)}, v{S+4}')
        loads = ibl(MEMA)
        if rb2:
            pre_hk = opt.get('hkfirst', 0)
            if pre_hk: p('\n'.join(hk1))
            backoff(16*opt.get('dly', (0, 0, 0))[var] - 64*pre_hk, 'the other heads' + "'" + ' partial sums are still on their way to L2')
            p('\n'.join(loads))
            p('\n'.join(z2 if pre_hk else hk1 + z2))
            backoff(16*(opt['rb2'] - 1) + 64*pre_hk, 'second read of the inbox half a round trip behind the first')
            p('\n'.join('@junk ' + l for l in ibl(KW)))
        else:
            if var >= 1: p('\n'.join(hk1))
            if var >= 2: p('\n'.join(hk2))
            backoff(16*opt.get('dly', (0, 0, 0))[var], 'partial sums still on their way to L2')
            if opt.get('w0st'): sv = nst[0]; nst[0] = 1; stamp(); nst[0] = sv
            p('\n'.join(loads))
            if var < 1: p('\n'.join(hk1))
            if var < 2: p('\n'.join(hk2))
        p(f'RBR{tag}:')
        for u in range(4):
            red(p, MEMA + 8*u)
            if opt.get('w0st') and u in (0, 3): sv = nst[0]; nst[0] = 2 if u == 0 else 3; stamp(); nst[0] = sv
        p(f'v_cmp_u_f32 vcc, v{R}, v{R}')
        p(f'v_cvt_pk_bf16_f32 v{R}, v{R}, v{R+2}')
        p(f's_cbranch_vccnz RBC{tag}\nRBD{tag}:')
        if opt.get('b4') == 2: p('s_barrier')
        p(f'buffer_store_dword v{R}, v{T3}, {SRD}, s{sPUB} offen')
        if opt.get('b4') == 1: p('s_barrier')
        if full: p(f'v_mov_b32 v{QT}, v{R}')
        if not rb2: p('\n'.join(adv0))
        if opt.get('hist'):
            p(f's_lshl_b32 s3, s{sSTEP}, 13\ns_add_u32 s3, s3, {WS_G}\ns_lshl_b32 s34, s{sH}, 8\ns_add_u32 s3, s3, s34\nbuffer_store_dword v{R}, v{T3}, {SRD}, s3 offen')
        slow(f'RBC{tag}:')
        if not rb2:
            for u in range(8): slow(mx(u == 0, MEMA + 4*u, 0)); slow(mx(u == 0, MEMA + 4*u, 1))
            slow(CMP); slow(f's_cbranch_vccz RBD{tag}')
        zr = f'v_mov_b64 {vr(R,2)}, 0\nv_mov_b64 {vr(R+2,2)}, 0'
        slow(f'RB{tag}:'); slow('\n'.join('@nowait ' + l for l in loads)); slow(TMO(sRB)); slow(zr)
        if rb2:
            for u in range(4):
                slow(f's_waitcnt vmcnt({14 - 2*u})'); red(slow, KW + 8*u)
            slow(f'v_cmp_u_f32 vcc, v{R}, v{R}\nv_cvt_pk_bf16_f32 v{R}, v{R}, v{R+2}\ns_cbranch_vccz RBD{tag}')
            for u in range(8): slow(mx(u == 0, KW + 4*u, 0)); slow(mx(u == 0, KW + 4*u, 1))
            slow(CMP); slow(f's_cbranch_vccz RBD{tag}')
            slow('\n'.join('@nowait ' + l for l in ibl(KW))); slow(zr)
        slow(f's_branch RBR{tag}')
    else:
        p('\n'.join(hk1))
        if kpos == 'mid': p('\n'.join(kdm))
        p('\n'.join(hk2))
        if kpos == 'end':
            backoff(32*opt.get('kdl', 0), 'bulk copy goes behind the inbox reads')
            p('\n'.join(kdm))
        if full and w == 3: p(f's_waitcnt vmcnt({8 + 2*(kpos in ("S7", "mid", "end")) + 2*(rpos == "S7")})\nv_cmp_gt_u32 vcc, s{sNEED}, v{T3}\ns_cbranch_vccnz KVW\nKVR:')
        if opt.get('b4'): p('s_barrier')
        p('\n'.join(adv))
        slp = opt.get('slp3', opt.get('slp')) if w == 3 else opt.get('slp')
        if slp: p(f's_sleep {slp}')
        for _ in range(opt.get('slpn', 0)): p('s_nop 7')
    stamp()
    p(f's_cmp_lt_u32 s{sSTEP}, {nsteps}\ns_cbranch_scc1 HA{tag}')
    if True:
        n = len(fb)
        sets = (LB, S)
        slow(f'SB{tag}:')
        slow('@wait_reset')
        for i, t in enumerate(fb): slow('@nowait ' + gld(sets[0] + 4*i, t))
        slow(TMO(sRB)); slow('s_nop 15')
        slow(f'SL{tag}:')
        for k in range(2):
            for i, t in enumerate(fb): slow('@nowait ' + gld(sets[1-k] + 4*i, t))
            slow(f's_waitcnt vmcnt({n})')
            for i, t in enumerate(fb): slow('@nowait ' + mwr(sets[k] + 4*i, t))
            for i, t in enumerate(fb): slow('@nowait ' + mx(i == 0, sets[k] + 4*i, 0)); slow('@nowait ' + mx(i == 0, sets[k] + 4*i, 1))
            slow(CMP); slow(f's_cbranch_vccz SK{tag}')
        slow(TMO(sRB)); slow(f's_branch SL{tag}')
        slow(f'SK{tag}:'); slow(f's_waitcnt lgkmcnt(0) vmcnt(0)\ns_branch SBR{tag}')
    slow(f'CE{tag}:')
    if w == 0: slow(f's_mov_b32 s{sFCH}, s{sKVM}\ns_mov_b32 s{sKVM}, 0x7f000000')
    slow(''); slow('\n'.join(z2 if rb2 else hk2))
    if rb2: slow(f's_mov_b32 s{sDLT}, {(-2*INBOX_SLOT) & 0xffffffff}\ns_add_u32 s{sIN}, s{sIN}, {2*INBOX_SLOT}\ns_add_u32 s{sIN2}, s{sIN2}, {2*INBOX_SLOT}\ns_xor_b32 s{sPUB}, s{sPUB}, 8192')
    slow(f's_branch HA{tag}')
    fin = Prog()
    if var == 0:
        fin(f'FIN{w}:')
        if w == 0: fin(pub)
        if opt.get('wb') and w == 0:
            fin(f's_cmp_lg_u32 s{sH}, 0\ns_cbranch_scc1 FINX\nbuffer_wbl2 sc1\nFINX:' if opt['wb'] == 1 else 'buffer_wbl2 sc1')
        if opt.get('log') and w == 1:
            fin(f's_lshl_b32 s3, s{sH}, 8\ns_add_u32 s3, s3, {WS_DBG + 0x10000}\nbuffer_store_dword v{T3}, v{AP}, {SRD}, s3 offen')
        if opt.get('stamps') or opt.get('trace') or opt.get('first'):
            fin(f's_lshl_b32 s3, s{sH}, 2\ns_add_u32 s3, s3, {w}\ns_lshl_b32 s3, s3, 6\ns_add_u32 s3, s3, {WS_DBG + 0x20000}')
            for i in range(12): fin(f'v_mov_b32 v{i}, s{4+i}')
            fin('s_mov_b64 exec, 1')
            for i in range(3): fin(f'buffer_store_dwordx4 {vr(4*i,4)}, v{AL0}, {SRD}, s3 offen offset:{16*i}')
            fin('s_mov_b64 exec, -1')
        if opt.get('dbgstart'): fin(f's_mul_i32 s{sRETRY}, s77, 63')
        if opt.get('time'): fin(f's_mov_b32 s85, s{sRETRY}\ns_mov_b32 s86, s{sRB}')
        fin('s_branch L_DONE')
    return p.lines, slow.lines, fin.lines

DEF = dict(D=3, spc=96, pdc=(0, 76), dly=(4, 0, 0), hkfirst=1, slpmode=1, vb=(32, 32), rb2=5, w1pre=3, w1mid=4, b4=1, rpos='P1', gg=(2, 7), pg=(4, 5, 6, 8), kpos='end', kdl=7, rg=((0, 4), (3, 5), (9, 11), (10, 12)))
def role(out, opt):
    from main import stamp
    o2 = dict(DEF); o2.update(opt); opt = o2
    T = opt.get('time')
    p = Prog()
    p('R_CHAIN:')
    startup(p, D_CHINIT, 2 if opt.get('kpos') == 'P1' else 1, opt.get('early', 1), opt.get('presc', 0), opt.get('swapa', 0))
    if not opt.get('early', 1): p('s_mov_b32 s77, 0')
    if T: stamp(p, 2)
    p(f's_cmp_eq_u32 s77, 1\ns_cbranch_scc1 C_go')
    common.wait_dbg(p, 'C_init', D_CHINIT, 32)
    common.wait_dbg(p, 'C_init2', D_INIT, 1)
    p(f'v_and_b32 v{T2}, 63, v{AP}')
    common.wait_flags(p, 'C_kv', T2, f's{sFKV}', 1, T0)
    p(f'''s_lshl_b32 s3, s{sW}, 11
    s_add_u32 m0, s3, {L_K}
    s_add_u32 s3, s3, s{sK}
    buffer_load_dwordx4 v{AL0}, {SRD}, s3 offen sc1 lds
    buffer_load_dwordx4 v{AL0}, {SRD}, s3 offen offset:1024 sc1 lds
    s_waitcnt vmcnt(0)
    C_go:
    s_waitcnt vmcnt(1)
    s_barrier
    s_add_u32 s{sK}, s{sK}, {32*16384}
    s_add_u32 s{sK2}, s{sK}, 4096''')
    if T: stamp(p, 3); p('s_memtime s[94:95]\ns_waitcnt lgkmcnt(0)\ns_mov_b32 s98, s94')
    if opt.get('stamps') or opt.get('trace') or opt.get('first'):
        for i in range(12): p(f's_mov_b32 s{4+i}, 0')
    vb = opt.get('vb', (12, 20))
    p(f"""s_cmp_eq_u32 s{sW}, 1
    s_cbranch_scc1 CE1
    s_cmp_eq_u32 s{sW}, 2
    s_cbranch_scc1 CE2
    s_cmp_eq_u32 s{sW}, 3
    s_cbranch_scc1 CE3""")
    if vb[0] >= 32: p('s_branch CE0v0')
    else: p(f's_cmp_lt_u32 s{sH}, {vb[0]}\ns_cbranch_scc1 CE0v0\ns_cmp_lt_u32 s{sH}, {vb[1]}\ns_cbranch_scc1 CE0v1\ns_branch CE0v2')
    o, st = process(p.lines); out += o + ['.p2align 7', 'C_code:']
    for w, var in ((0, 0), (0, 1), (0, 2), (1, 0), (2, 0), (3, 0)):
        if var and vb[0] >= 32: continue
        body, slow, fin = step(w, 63, opt, var)
        import re
        for pat in opt.get('drop', ()): body = [l for l in body if not re.search(pat, l)]
        o, st = loop(body, State())
        o = hoist_waits(o)
        o_, st = loop(o, State())
        assert o_ == o
        if T:
            q = Prog(); stamp(q, 4); q('s_memtime s[96:97]\ns_waitcnt lgkmcnt(0)\ns_sub_u32 s82, s96, s94' if not opt.get('dbgstart') else ''); o += process(q.lines)[0]
        out += ['.p2align 6'] + o + [f's_branch FIN{w}'] + process(slow)[0]
        if fin: out += process(['s_waitcnt lgkmcnt(0)', 's_nop 7'] + fin)[0][2:]
```

```python
from asmlib import *
from layout import *
import common

MEMA, KW, QT, AQK, ACCV, S = 0, 32, 64, 80, 96, 104
IDX, AL0, AL1, AL2, ATR, AQKW, AOW, AP = 116, 117, 118, 119, 120, 121, 122, 123
T0, T1, T2, T3 = 124, 125, 126, 127
WV0, WO0 = 128, 192
SRD = 's[36:39]'
sH, sSTEP, sMEM, sMEM2, sPUB, sIN, sIN2, sW = 40, 41, 42, 43, 44, 45, 46, 47
sPART = 48
sK, sK2, sV, sV2, sPF = 56, 57, 58, 59, 74
sODD = 62
sVAL = 86
sLIM = 88
sC = 64
sRETRY = 65
sRB = 61
sKVM, sFCH, sFKV, sNEED = 60, 89, 90, 91
sSLOT, sDLT, sC2, sKB = 92, 93, 73, 76
sJIT, sDM, sC8 = 78, 79, 66
SRDW = 's[68:71]'

def vr(a, n): return f'v[{a}:{a+n-1}]' if n > 1 else f'v{a}'
def ar(a, n): return f'a[{a}:{a+n-1}]'
def wq(u, t): return ar((u*8+t)*8, 8)
def wk(u, t): return ar(128 + (u*8+t)*8, 8)
def wv0(t): return vr(WV0 + 8*t, 8)
def wo0(t): return vr(WO0 + 8*t, 8)
def smf(acc, a, b): return f'v_smfmac_f32_16x16x64_bf16 {vr(acc,4)}, {vr(a,4)}, {b}, v{IDX}'
def mf32(d, a, b, c): return f'v_mfma_f32_16x16x32_bf16 {vr(d,4)}, {vr(a,4)}, {vr(b,4)}, {c if isinstance(c,str) else vr(c,4)}'
def mf16(d, a, b, c): return f'v_mfma_f32_16x16x16_bf16 {vr(d,4)}, {vr(a,2)}, {vr(b,2)}, {c if isinstance(c,str) else vr(c,4)}'
def lin(off):
    r = (AL0, AL1, AL2)[off >> 16]
    return r, off & 0xffff
def rd128(dst, off):
    r, o = lin(off); return f'ds_read_b128 {vr(dst,4)}, v{r} offset:{o}'

def startup(p, dbg_ctr_off=64, opt_pf=1, early=True, presc=True, swapa=True, qs=32, qsw=1):
    p(f'''
    v_and_b32 v65, 63, v0
    v_lshrrev_b32 v66, 6, v0
    v_readfirstlane_b32 s{sW}, v66
    v_and_b32 v67, 15, v65            ; n
    v_lshrrev_b32 v68, 4, v65         ; g
    v_lshlrev_b32 v{AL0}, 4, v65
    v_add_u32 v{AL1}, 0x10000, v{AL0}
    v_add_u32 v{AL2}, 0x20000, v{AL0}
    v_lshlrev_b32 v{AP}, 2, v65       ; lane*4
    v_lshlrev_b32 v69, 4, v67
    v_lshl_add_u32 v78, v68, 2, v69
    v_lshrrev_b32 v69, 2, v67
    v_lshlrev_b32 v69, 6, v69
    v_and_b32 v70, 3, v67
    v_lshl_add_u32 v69, v70, 2, v69
    v_lshl_add_u32 v{T3}, v68, 4, v69
    s_mov_b32 s36, s32
    s_mov_b32 s37, s33
    s_mov_b32 s38, {WS_SIZE}
    s_mov_b32 s39, 0x20000
    v_lshrrev_b32 v69, 1, v67
    v_lshlrev_b32 v69, 10, v69
    v_and_b32 v70, 1, v67
    v_lshlrev_b32 v70, 2, v70
    v_lshl_add_u32 v70, v68, 3, v70
    v_add_u32 v69, v69, v70
    s_lshl_b32 s3, s{sH}, 5
    v_add_u32 v69, s3, v69
    global_load_dword v76, v69, s[6:7]
    v_mov_b32 v72, -1
    v_mov_b32 v73, -1
    v_mov_b32 v74, -1
    v_mov_b32 v75, -1
    s_mul_i32 s3, s{sH}, {INBOX_STRIDE}
    s_add_u32 s{sIN}, s3, {WS_INBOX}
    s_lshl_b32 s3, s{sW}, 11
    s_add_u32 s3, s3, s{sIN}
    s_add_u32 s34, s3, {INBOX_SLOT}
    buffer_store_dwordx4 v[72:75], v{AL0}, {SRD}, s3 offen
    buffer_store_dwordx4 v[72:75], v{AL0}, {SRD}, s3 offen offset:1024
    buffer_store_dwordx4 v[72:75], v{AL0}, {SRD}, s34 offen
    buffer_store_dwordx4 v[72:75], v{AL0}, {SRD}, s34 offen offset:1024
    s_add_u32 s34, s34, {INBOX_SLOT}
    buffer_store_dwordx4 v[72:75], v{AL0}, {SRD}, s34 offen
    buffer_store_dwordx4 v[72:75], v{AL0}, {SRD}, s34 offen offset:1024
    s_lshl_b32 s3, s{sH}, 8
    s_add_u32 s{sPUB}, s3, {WS_MEMS}
    s_add_u32 s3, s{sPUB}, 8192
    buffer_store_dword v72, v{AP}, {SRD}, s3 offen
    s_add_u32 s{sJIT}, s{sPUB}, 16384
    buffer_store_dword v72, v{AP}, {SRD}, s{sJIT} offen
    v_lshlrev_b32 v69, 13, v68
    v_lshl_add_u32 v69, v67, 4, v69          ; g*8192 + n*16
    s_lshl_b32 s3, s{sW}, 17
    v_add_u32 v69, s3, v69
    v_mov_b32 v71, 0x7fffffff
    v_cmp_gt_u32 vcc, 0x2000, v69
    v_cndmask_b32 v70, v69, v71, vcc
    s_lshl_b32 s3, s{sH}, 8
    s_add_u32 s{sKVM}, s3, {WS_MEMH}
    buffer_store_dwordx4 v[72:75], v70, {SRD}, s{sKVM} offen sc1
    v_add_u32 v69, 0x8000, v69
    buffer_store_dwordx4 v[72:75], v69, {SRD}, s{sKVM} offen sc1
    v_add_u32 v69, 0x8000, v69
    buffer_store_dwordx4 v[72:75], v69, {SRD}, s{sKVM} offen sc1
    v_add_u32 v69, 0x8000, v69
    buffer_store_dwordx4 v[72:75], v69, {SRD}, s{sKVM} offen sc1
    v_lshlrev_b32 v69, 1, v68
    v_xor_b32 v69, v69, v67                  ; n ^ (g<<1)
    v_lshlrev_b32 v69, 4, v69
    v_lshl_add_u32 v80, v68, 13, v69
    v_xor_b32 v81, 0x80, v80              ; off1
    s_lshr_b32 s3, s{sW}, 1
    s_lshl_b32 s3, s3, 7
    v_xor_b32 v82, s3, v{AL0}
    v_xor_b32 v83, 0x20, v82
    v_xor_b32 v84, 0x40, v82
    v_xor_b32 v85, 0x60, v82
    v_lshrrev_b32 v69, 2, v67               ; r
    v_and_b32 v70, 3, v67                   ; c
    v_and_b32 v71, 1, v68
    v_lshl_add_u32 v71, v71, 2, v69          ; f = r | (g&1)<<2
    v_lshlrev_b32 v71, 5, v71
    v_lshl_add_u32 v71, v70, 3, v71          ; f*32 + 8c
    v_lshl_add_u32 v69, v68, 3, v69          ; row = 8g + r
    v_lshl_add_u32 v86, v69, 8, v71
    s_lshl_b32 s3, s{sW}, 6
    v_xor_b32 v86, s3, v86                ; pair 2w
    v_xor_b32 v87, 0x20, v86              ; pair 2w+1
    v_add_u32 v86, {L_W}, v86
    v_add_u32 v87, {L_W}, v87
    v_lshrrev_b32 v69, 2, v67
    v_and_b32 v71, 1, v69                   ; r&1
    v_lshrrev_b32 v69, 1, v69
    v_lshl_add_u32 v69, v69, 2, v71
    v_lshl_add_u32 v69, v68, 3, v69         ; row
    v_and_b32 v90, 1, v68
    v_lshl_add_u32 v71, v90, 2, v71         ; f = (r&1) | (g&1)<<2
    v_lshlrev_b32 v71, 5, v71
    v_lshl_add_u32 v71, v70, 3, v71
    v_lshl_add_u32 v88, v69, 10, v71
    s_lshl_b32 s3, s{sW}, 5
    v_xor_b32 v88, s3, v88
    v_xor_b32 v89, 0x80, v88
    v_xor_b32 v90, 0x40, v88
    v_xor_b32 v91, 0xc0, v88
    v_add_u32 v88, {L_W}, v88
    v_add_u32 v89, {L_W}, v89
    v_add_u32 v90, {L_W}, v90
    v_add_u32 v91, {L_W}, v91
    s_lshl_b32 s66, s{sW}, 12
    s_add_u32 s66, s66, {L_W}
    s_mov_b32 s70, 0x400000
    s_mov_b32 s71, 0x20000
    ''')
    def dma(c):
        mat = c >> 3; t = c & 7
        if t == 0:
            src = (14, 8, 10, 12)[mat]
            p(f's_mov_b32 s68, s{src}\ns_mov_b32 s69, s{src+1}')
            if mat == 0:
                p(f's_lshl_b32 s67, s{sH}, 17\ns_lshl_b32 s3, s{sW}, 12\ns_add_u32 s67, s67, s3')
            else:
                p(f's_lshl_b32 s67, s{sH}, 8\ns_lshl_b32 s3, s{sW}, 17\ns_add_u32 s67, s67, s3')
        for i in range(4):
            p(f's_add_u32 m0, s66, {t*16384 + i*1024}')
            if mat == 0:
                p(f's_add_u32 s3, s67, {(t^4)*16384 + i*1024}')
                p(f'buffer_load_dwordx4 v{82+i}, {SRDW}, s3 offen lds')
            else:
                p(f's_add_u32 s3, s67, {t*64*8192 + i*4*8192}')
                p(f'buffer_load_dwordx4 v{80+(i>>1)}, {SRDW}, s3 offen lds')
    for c in range(8): dma(c)
    p(f'''
    v_and_b32 v69, 1, v67
    v_mov_b32 v70, 0x4444
    v_mov_b32 v71, 0xeeee
    v_cmp_eq_u32 s[{sODD}:{sODD+1}], 1, v69
    v_cndmask_b32 v{IDX}, v70, v71, s[{sODD}:{sODD+1}]
    ; aTR: (d0 + r)*32 + 8c, d0 = 16*(g>>1) + 4*(g&1)
    v_lshrrev_b32 v69, 1, v68
    v_lshlrev_b32 v69, 4, v69
    v_and_b32 v70, 1, v68
    v_lshl_add_u32 v69, v70, 2, v69
    v_lshrrev_b32 v70, 2, v67
    v_add_u32 v69, v69, v70
    v_and_b32 v70, 3, v67
    v_and_b32 v71, {1 if qsw else 0}, v68
    v_lshlrev_b32 v71, 1, v71
    v_xor_b32 v70, v70, v71
    v_lshlrev_b32 v70, 3, v70
    v_mul_u32_u24 v69, {qs}, v69
    v_add_u32 v{ATR}, v69, v70
    ; aQKW: n*32 + 8g
    v_mul_u32_u24 v69, {qs}, v67
    v_lshrrev_b32 v70, 1, v67
    v_and_b32 v70, {2 if qsw else 0}, v70
    v_xor_b32 v70, v70, v68
    v_lshl_add_u32 v{AQKW}, v70, 3, v69
    v_lshrrev_b32 v69, 2, v67
    v_and_b32 v70, 1, v67
    v_lshl_add_u32 v69, v69, 1, v70
    v_lshrrev_b32 v70, 2, v69
    v_xor_b32 v70, v70, v68
    v_and_b32 v70, 1, v70
    v_lshlrev_b32 v69, 5, v69
    v_lshl_add_u32 v69, v70, 4, v69
    v_lshrrev_b32 v70, 1, v68
    v_lshl_add_u32 v69, v70, 3, v69
    v_add_u32 v70, {L_O}, v69
    v_xor_b32 v71, 8, v69
    v_add_u32 v71, {L_DUM}, v71
    v_and_b32 v69, 2, v67
    v_cmp_eq_u32 vcc, 0, v69
    s_lshl_b32 s3, s{sW}, 9               ; (w>>1)*1024 + (w&1)*512
    v_add_u32 v70, s3, v70
    v_cndmask_b32 v{AOW}, v71, v70, vcc
    v_lshrrev_b32 v69, 3, v67
    v_xor_b32 v69, v69, v67
    v_and_b32 v69, 7, v69                   ; e
    v_and_b32 v70, 3, v69
    v_cmp_eq_u32 vcc, 3, v70
    v_mov_b32 v71, 0x3f80
    v_mov_b32 v77, 0x3f800000
    v_cndmask_b32 v71, v71, v77, vcc
    v_cndmask_b32 v70, v70, 0, vcc
    v_or_b32 v70, 12, v70
    v_mul_u32_u24 v70, 0x1111, v70
    ds_write_b32 v{AP}, v70 offset:{L_DUM + 1024}
    v_cmp_gt_u32 vcc, 4, v69
    v_cndmask_b32 v92, 0, v71, vcc
    v_cndmask_b32 v93, v71, 0, vcc
    v_mov_b32 v94, v92
    v_mov_b32 v95, v93
    ds_write_b128 v{AL0}, v[92:95] offset:{L_SEL}
    s_waitcnt lgkmcnt(0)
    v_mov_b32 v92, 0x3f803f80
    v_mov_b32 v93, 0x3f803f80
    v_mov_b32 v94, 0x3f803f80
    v_mov_b32 v95, 0x3f803f80
    ds_write_b128 v{AL0}, v[92:95] offset:{L_ONE}
    s_mov_b32 s{sLIM}, 0x53800000          ; 2^40
    v_mov_b32 v{T1}, 0
    s_mov_b32 s{sVAL}, 0x33333333
    s_mov_b32 s{sVAL+1}, 0x33333333
    s_mov_b32 s{sODD}, 0
    s_mov_b32 s{sODD+1}, -1
    s_mov_b32 s{sC}, 0x3e0293ee           ; log2(e)/sqrt(128)
    ''')
    issued = 7
    def allowed(c): return 4 * (issued - c)
    c = 0
    while c < 32:
        mat = c >> 3; t = c & 7
        if mat == 0:
            first = t == 0
            p(f's_waitcnt vmcnt({allowed(c+3)})')
            if first:
                p(f'''@wait_reset
                v_min_u32 v76, -2, v76
                buffer_store_dword v76, v78, {SRD}, s{sPUB} offen
                buffer_store_dword v76, v78, {SRD}, s{sKVM} offen sc1
                v_mov_b32 v79, v0''')
            p('s_barrier')
            for tt in range(8):
                for q, o in enumerate((0, 2048, 32768, 34816)):
                    d = (0 if first else WO0) + tt*8 + 2*q
                    p(f'ds_read_b64_tr_b16 v[{d}:{d+1}], v{88 + (tt&1) + 2*(q&1)} offset:{o + (tt>>1)*256}')
                if tt & 1: p('s_waitcnt lgkmcnt(0)')
            p('s_barrier')
            if first: p('v_add_u32 v88, 0x10000, v88\nv_add_u32 v89, 0x10000, v89\nv_add_u32 v90, 0x10000, v90\nv_add_u32 v91, 0x10000, v91')
            for k in range(4): dma(c + 8 + k)
            issued += 4; c += 4
            continue
        p(f's_waitcnt vmcnt({allowed(c) + (3 if early and c >= 28 else 0)})')
        p('s_barrier')
        if early and c == 16: p(f'v_mov_b32 v69, {D_INIT}\n@junk global_load_dword v67, v69, s[30:31] sc1')
        if early and c == 23:
            p(f'''v_mov_b32 v69, {D_CHINIT}
            v_and_b32 v70, 63, v{AP}
            s_lshl_b32 s3, s{sH}, 6
            s_add_u32 s3, s3, {F_KV}
            @junk global_load_dword v66, v69, s[30:31] sc1
            @junk buffer_load_dword v68, v70, {SRD}, s3 offen sc1''')
        if early and c == 27:
            p(f'''v_lshlrev_b32 v69, 3, v{AL0}
            s_mul_i32 s3, s{sW}, {INBOX_SLOT}
            s_add_u32 s3, s3, s{sIN}
            s_cmp_eq_u32 s{sW}, 3
            s_cselect_b32 s3, {WS_MEMS}, s3
            @junk buffer_load_dword v65, v69, {SRD}, s3 offen sc1
            s_and_b32 s3, s{sW}, 1
            s_lshl_b32 s3, s3, 13
            s_add_u32 s3, s3, {WS_MEMS + 8192}
            @junk buffer_load_dword v65, v69, {SRD}, s3 offen sc1
            s_getpc_b64 s[34:35]
            C_pc:
            s_add_u32 s34, s34, C_code - C_pc
            s_addc_u32 s35, s35, 0
            s_lshl_b32 s3, s{sW}, 13
            v_add_u32 v69, s3, v69
            v_min_u32 v69, L_DONE - C_code - 4, v69
            @junk global_load_dword v65, v69, s[34:35]''')
        if early and c == 30:
            p(f'''s_mov_b32 s77, 0
            v_cmp_gt_u32 vcc, 32, v66
            s_cbranch_vccnz C_late
            v_cmp_gt_u32 vcc, 1, v67
            s_cbranch_vccnz C_late
            v_cmp_gt_u32 vcc, 1, v68
            s_cbranch_vccnz C_late
            s_mov_b32 s77, 1
            s_lshl_b32 s3, s{sH}, 14
            s_lshl_b32 s34, s{sW}, 11
            s_add_u32 s35, s3, {WS_KV + 8192}
            s_add_u32 s3, s3, s34
            s_add_u32 s3, s3, {WS_KV}
            s_add_u32 m0, s34, {L_K}
            v_lshlrev_b32 v69, 3, v{AL0}
            buffer_load_dwordx4 v{AL0}, {SRD}, s3 offen sc1 lds
            buffer_load_dwordx4 v{AL0}, {SRD}, s3 offen offset:1024 sc1 lds
            @junk buffer_load_dword v65, v69, {SRD}, s35 offen sc1
            C_late:''')
        if c == 9:
            p(f'''v_mov_b32 v69, {dbg_ctr_off}
            v_mov_b32 v70, 1
            v_cmp_eq_u32 vcc, 0, v79
            s_and_saveexec_b64 s[34:35], vcc
            s_cbranch_execz L_noinc
            global_atomic_add v69, v70, s[30:31]
            L_noinc:
            s_mov_b64 exec, s[34:35]''')
        for u in range(2):
            for q, o in enumerate((0, 1024, 8192, 9216)):
                if mat == 1 and presc:
                    p(f'ds_read_b64_tr_b16 v[{96 + 8*u + 2*q}:{97 + 8*u + 2*q}], v{86+u} offset:{o + (t&3)*16384}')
                elif mat < 3:
                    d = (mat-1)*128 + (u*8+t)*8 + 2*q
                    p(f'ds_read_b64_tr_b16 a[{d}:{d+1}], v{86+u} offset:{o + (t&3)*16384}')
                else:
                    d = (WV0 + 8*t if u == 0 else 96) + 2*q
                    p(f'ds_read_b64_tr_b16 v[{d}:{d+1}], v{86+u} offset:{o + (t&3)*16384}')
        p('s_waitcnt lgkmcnt(0)\ns_barrier')
        if t == 3: p('v_add_u32 v86, 0x10000, v86\nv_add_u32 v87, 0x10000, v87')
        if t == 7: p('v_subrev_u32 v86, 0x10000, v86\nv_subrev_u32 v87, 0x10000, v87')
        if mat == 3:
            if t == 0: p(f'v_add_u32 v90, s66, v{AL0}')
            if t == 4: p('v_add_u32 v90, 0x10000, v90')
            sw = swapa and t >= 6
            o1 = WV0 + 8*(t - 6) if sw else 8*t
            for k, r in enumerate((96, 100, o1, o1+4)):
                p(f'ds_write_b128 v90, v[{r}:{r+3}] offset:{(t&3)*16384 + k*1024}')
            p('s_waitcnt lgkmcnt(0)')
            if sw:
                for k in range(0, 8, 2): p(f'v_mov_b64 {vr(o1 + k, 2)}, {vr(8*t + k, 2)}')
        if c + 8 < 32:
            dma(c + 8); issued += 1
        if mat == 1 and presc:
            for i in range(16):
                p(f'v_lshlrev_b32 v112, 16, v{96+i}\nv_and_b32 v113, 0xffff0000, v{96+i}\nv_mul_f32 v112, s{sC}, v112\nv_mul_f32 v113, s{sC}, v113\nv_cvt_pk_bf16_f32 v112, v112, v113\nv_accvgpr_write_b32 a{((i >> 3)*8 + t)*8 + (i & 7)}, v112')
        c += 1
    p(f'''
    s_mov_b32 s{sSTEP}, 0
    s_mov_b32 s{sMEM}, {WS_MEMS}
    s_mov_b32 s{sMEM2}, {WS_MEMS + 4096}
    s_add_u32 s{sPUB}, s{sPUB}, 8192
    s_mov_b32 s{sSLOT}, 0
    s_mov_b32 s{sC2}, {INBOX_SLOT}
    s_lshl_b32 s3, s{sW}, 11
    s_add_u32 s3, s3, s{sIN}
    s_mov_b32 s{sC8}, 8192
    s_add_u32 s{sV2}, s3, {2*INBOX_SLOT}
    s_add_u32 s{sIN2}, s{sIN}, 4096
    s_mul_i32 s3, s{sW}, {INBOX_STRIDE}
    s_lshl_b32 s34, s{sH}, 8
    s_add_u32 s3, s3, s34
    s_add_u32 s{sPART}, s3, {WS_INBOX}
    ''')
    for t in range(1, 8): p(f's_add_u32 s{sPART+t}, s{sPART}, {4*t*INBOX_STRIDE}')
    p(f'''
    s_lshl_b32 s3, s{sH}, 14
    s_add_u32 s{sK}, s3, {WS_KV}
    s_add_u32 s{sK2}, s{sK}, 4096
    s_lshl_b32 s34, s{sW}, 11
    s_add_u32 s{sV}, s{sK}, 8192
    s_add_u32 s{sPF}, s{sK}, {opt_pf*32*16384}
    s_add_u32 s{sPF+1}, s{sV}, {32*16384}
    s_cmp_eq_u32 s{sW}, 2
    s_cselect_b32 s{sPF}, s{sPF+1}, s{sPF}
    s_add_u32 s{sV}, s{sV}, s34
    s_lshl_b32 s3, s{sH}, 6
    s_add_u32 s{sFKV}, s3, {F_KV}
    s_mov_b32 s{sRETRY}, 0
    s_mov_b32 s{sRB}, 0
    ''')
    for r in range(0, 24, 2): p(f'v_mov_b64 {vr(AQK+r,2)}, 0')

def kdma(p):
    L = []
    for half, so in ((0, sK), (1, sK2)):
        L.append(f's_mov_b32 m0, {L_K + half*4096}')
        for i in range(4): L.append(f'buffer_load_dwordx4 v{AL0}, {SRD}, s{so} offen offset:{i*1024} sc1 lds')
    return L
def vdma(p):
    L = []
    for half, so in ((0, sV), (1, sV2)):
        L.append(f's_mov_b32 m0, {L_V + half*4096}')
        for i in range(4): L.append(f'buffer_load_dwordx4 v{AL0}, {SRD}, s{so} offen offset:{i*1024} sc1 lds')
    return L

def step(w, nsteps, opt, var=0):
    p = Prog(); slow = Prog()
    QS = opt.get('qs', 32)
    L_KM, L_SB = L_Q + 6144, L_Q + 12288
    tag = f'{w}' if w else f'0v{var}'
    Q0, Q1, K0, K1 = AQK, AQK+4, AQK+8, AQK+12
    V0, V1 = ACCV, ACCV+4
    SX0, SX1, SM = S, S+4, S+8
    def wl(u, t): return L_W + t*16384 + w*4096 + u*2048
    def wrd(slot, u, t): return rd128(KW + 8*slot, wl(u, t)) + '\n' + rd128(KW + 8*slot + 4, wl(u, t) + 1024)
    nst = [0]; pastS7 = [False]
    def stamp():
        i = nst[0]; nst[0] += 1
        if opt.get('trace'):
            if opt.get('w0st') and i in (1, 2, 3) and not pastS7[0]: return
            if i in opt['trace']:
                p(f's_cmp_eq_u32 s{sSTEP}, {opt.get("at", 41)}\ns_cbranch_scc0 TR{tag}_{i}\ns_memrealtime s[96:97]\ns_waitcnt lgkmcnt(0)\ns_mov_b32 s{4+i}, s96\nTR{tag}_{i}:')
            return
        if i not in opt.get('stamps', ()): return
        if opt.get('w0st') and i in (1, 2, 3) and not pastS7[0]: return
        p(f's_memtime s[96:97]\ns_waitcnt lgkmcnt(0)\ns_sub_u32 s99, s96, s98\ns_mov_b32 s98, s96\ns_add_u32 s{4+i}, s{4+i}, s99')
    def backoff(cyc, why):
        if cyc <= 0: return
        if opt.get('slpmode', 0):
            if cyc >= 64: p(f's_sleep {cyc // 64}')
            cyc %= 64
        while cyc > 0:
            k = min(cyc // 4, 16); p(f's_nop {k-1}'); cyc -= 4*k
    def epi(acc): return [f'v_add_f32 v{acc}, v{acc}, v{acc+1}', f'v_add_f32 v{acc+2}, v{acc+2}, v{acc+3}', f'v_cvt_pk_bf16_f32 v{acc}, v{acc}, v{acc+2}']
    def epq(acc):
        e = epi(acc)
        return e[:2] + [f'v_mul_f32 v{acc}, s{sC}, v{acc}', f'v_mul_f32 v{acc+2}, s{sC}, v{acc+2}'] + e[2:]
    def qkw(base, u, acc): return f'ds_write_b32 v{AQKW}, v{acc} offset:{base + (32*w + 16*u)*QS}'
    def trd(dst, base, ks, h): return f'ds_read_b64_tr_b16 {vr(dst + 4*ks + 2*h, 2)}, v{ATR} offset:{base + ks*32*QS + h*8*QS}'
    def mloc(t): return L_Q + t*1024 if t < 4 else L_SB + (t-4)*1024
    def gld(dst, t): return f'buffer_load_dwordx4 {vr(dst,4)}, v{AL0}, {SRD}, s{sMEM if t < 4 else sMEM2} offen offset:{(t&3)*1024} sc1'
    def mwr(src, t): return f'ds_write_b128 v{AL0}, {vr(src,4)} offset:{mloc(t)}'
    def mx(first, m, k):
        if first: return f'v_max3_u32 v{T0}, v{m}, v{m+1}, v{m+2}' if k == 0 else f'v_max_u32 v{T0}, v{T0}, v{m+3}'
        return f'v_max3_u32 v{T0}, v{T0}, v{m+2*k}, v{m+2*k+1}'
    CMP = f'v_cmp_eq_u32 vcc, -1, v{T0}'
    TMO = lambda r: f's_add_u32 s{r}, s{r}, 1\ns_cmp_gt_u32 s{r}, {LIMIT}\ns_cbranch_scc1 L_ABORT'
    own = (w + 3) & 3
    fb = (own + 4,)
    LB, NEG = QT + 4, QT + 12
    D = opt.get('D', 2)
    def v1s(t): return smf(V1, MEMA + 4*t, vr(KW + 8*(t & 3), 8))
    swapa = opt.get('swapa', 0)
    def v0s(t): return smf(V0, MEMA + 4*t, vr(MEMA + 16 + 8*t, 8) if swapa and t < 2 else wv0(t))
    xpre = [rd128(MEMA + 16 + 8*i + 4*j, wl(1, 6 + i) + 1024*j) for i in range(2) for j in range(2)] if swapa else []
    def qs(u, t): return smf(Q0 + 4*u, MEMA + 4*t, wq(u, t))
    def ks_(u, t): return smf(K0 + 4*u, MEMA + 4*t, wk(u, t))
    full = not opt.get('proto')
    adv0 = [f's_add_u32 s{sV2}, s{sIN}, 0', f's_add_u32 s{sIN}, s{sIN}, s{sDLT}', f's_add_u32 s{sIN2}, s{sIN2}, s{sDLT}', f's_mov_b32 s{sPUB}, s{sJIT}', f's_mov_b32 s{sJIT}, s{sKB}']
    rb2 = opt.get('rb2') and w == 0 and var in opt.get('rb2v', (0, 1, 2))
    p(f'HA{tag}:')
    sp = opt.get('sp', 0)
    PS = [S, S + 4, S + 8, QT + 8, LB]
    backoff(opt.get('pdc', [32*x for x in opt.get('pd', (0, 0))])[1 if w else 0], 'the new memory rows are still on their way to L2')
    for i in range(D - 1):
        p(gld(PS[i], own))
        if i == 0 and not opt.get('lean', 0): p(TMO(sRETRY))
        if rb2 and i == 0:
            p('\n'.join(adv0)); p('s_waitcnt vmcnt(2)')
            for k in range(4): p(wrd(k, 0, k))
            for x in xpre: p(x)
            continue
        backoff(opt['spl'][i] if 'spl' in opt else opt.get('spc', 32*sp) + (12 if i else 0), 'spread the polls in flight over one round trip')
    rf = lambda t: wrd(t & 3, 0, t).split('\n')
    def head(q):
        jit = f'buffer_store_dword v{NEG}, v{AP}, {SRD}, s{sJIT} offen'
        lbp = opt.get('lbp', 1)
        if not lbp:
            q(gld(LB, own + 4))
            if w == 0: q(jit)
        q(qs(0, own))
        if lbp: q(gld(LB, own + 4))
        q(v1s(own)); q(rf(own + 4)[0]); q(qs(1, own)); q(rf(own + 4)[1])
        for x in ownl[:nb4]: q(x)
    spec = opt.get('spec', 0)
    ownl = [ks_(0, own), ks_(1, own), v0s(own)]
    nb4 = opt.get('nb4', 1)
    def chk1(q, m):
        q(mwr(m, own)); q(mx(1, m, 0)); q(mx(1, m, 1)); q(CMP)
        q(f'v_mov_b64 {vr(MEMA + 4*own, 2)}, {vr(m, 2)}'); q(f'v_mov_b64 {vr(MEMA + 4*own + 2, 2)}, {vr(m + 2, 2)}')
    if opt.get('lean', 0):
        p('@nowait ' + gld(PS[D - 1], own))
        for i in range(D):
            p(f's_waitcnt vmcnt({D-1-i})'); chk1(p, PS[i])
            p(f's_cbranch_vccz HK{tag}' if i < D - 1 else f's_cbranch_vccnz HR{tag}')
        slow(f'HR{tag}:')
        for i in range(D - 1): slow('@nowait ' + gld(PS[i], own)); slow('s_sleep 1')
        slow(f'HL{tag}:')
        for i in range(D):
            slow('@nowait ' + gld(PS[(i + D - 1) % D], own)); slow(f's_waitcnt vmcnt({D-1})'); chk1(slow, PS[i]); slow(f's_cbranch_vccz HK{tag}')
        slow(TMO(sRETRY)); slow(f's_branch HL{tag}')
    else:
        p(f'HL{tag}:')
        for i in range(D):
            p('@nowait ' + gld(PS[(i + D - 1) % D], own))
            p(f's_waitcnt vmcnt({D-1})'); chk1(p, PS[i])
            p(f's_cbranch_vccz HK{tag}' if i < D - 1 else f's_cbranch_vccnz HR{tag}')
        slow(f'HR{tag}:'); slow(TMO(sRETRY)); slow(f's_branch HL{tag}')
    if spec:
        slow(f'HK{tag}:'); slow('s_waitcnt lgkmcnt(1)\n@wait_reset'); head(slow); slow(f's_branch HJ{tag}')
    else:
        p(f'HK{tag}:')
        p(f'@vm {D-1}')
        p('s_waitcnt lgkmcnt(1)')
        head(p)
    if opt.get('trace'):
        nst[0] = 9; stamp(); nst[0] = 0
    p('s_waitcnt lgkmcnt(2)')
    p('s_barrier')
    stamp()
    if opt.get('first'):
        p('s_memtime s[96:97]\ns_waitcnt lgkmcnt(0)\ns_sub_u32 s96, s96, s94')
        for i, st_ in enumerate((0, 1, 2, 3, 4, 5, 10, 20, 40, 62)): p(f's_cmp_eq_u32 s{sSTEP}, {st_}\ns_cselect_b32 s{4+i}, s96, s{4+i}')
    oth = [t for t in range(4) if t != own]
    for t in oth: p(rd128(MEMA + 4*t, mloc(t)))
    if opt.get('log') and w == 1:
        p(f's_{"memrealtime" if opt["log"] == 2 else "memtime"} s[96:97]\ns_waitcnt lgkmcnt(0)\ns_mov_b32 m0, s{sSTEP}\nv_writelane_b32 v{T3}, s96, m0')
    for x in ownl[nb4:]: p(x)
    if w == 0 and opt.get('lbp', 1): p(f'buffer_store_dword v{NEG}, v{AP}, {SRD}, s{sJIT} offen')
    vm = []
    pub = f'buffer_store_dword v{QT}, v{T3}, {SRD}, s{sKVM} offen sc1' if full and w == 0 else None
    if w == 3 and full:
        vm.append((0, f'v_and_b32 v{T2}, 63, v{AP}\n@junk buffer_load_dword v{T3}, v{T2}, {SRD}, s{sFKV} offen sc1'))
    if w in (1, 2):
        p(f'v_lshlrev_b32 v{T2}, 3, v{AL0}')
        vm.append((opt.get('gg', (4, 8))[w-1], f'@junk buffer_load_dword v{T3}, v{T2}, {SRD}, s{sPF} offen sc1'))
    seq = []
    xa = opt.get('xa', 2)
    v0l = [v0s(t) for t in oth + [4, 5, 6, 7]]
    if swapa:
        defer = []
        for i, t in enumerate(oth):
            seq += [qs(0, t), v1s(t), qs(1, t), ks_(0, t)]
            if i < xa and t < 2: seq.append(v0l[i]); defer.append(ks_(1, t))
            else:
                seq.append(ks_(1, t))
                if i < xa: defer.append(v0l[i])
        seq += defer
    else:
        for t in oth: seq += [qs(0, t), v1s(t), qs(1, t), ks_(0, t), ks_(1, t)]
        seq += v0l[:xa]
    B0 = len(seq)
    for t in range(4, 8): seq += [qs(0, t), v1s(t), qs(1, t)]
    P2 = len(seq)
    rest = v0l[xa:]
    nmid_ = len(rest) - 4
    seq += [ks_(0, t) for t in range(4, 8)] + rest[:nmid_] + [ks_(1, t) for t in range(4, 8)] + rest[nmid_:]
    NP = len(seq) - P2
    gap = [[] for _ in seq]
    def put(g, *ins):
        for x in ins: gap[g] += x.split('\n')
    sbw, sbb = opt.get('sbw', 8), opt.get('sbb', 13)
    put(1, rf(oth[0] + 4)[0]); put(2, rf(oth[0] + 4)[1]); put(6, rf(oth[1] + 4)[0]); put(7, rf(oth[1] + 4)[1])
    put(sbw, mwr(LB, own + 4))
    for i, x in enumerate((mx(1, LB, 0), mx(1, LB, 1), CMP)): put(sbw + 1 + i, x)
    put(sbb, f's_cbranch_vccnz SB{tag}\nSBR{tag}:', 's_waitcnt lgkmcnt(0)', 's_barrier', rd128(MEMA + 16, mloc(4)))
    g = sbb + 1
    for x in [rd128(MEMA + 4*tt, mloc(tt)) for tt in range(5, 8)] + rf(oth[2] + 4):
        put(g, x); g += 1
    VX0, VX1, OA0, OA1 = (MEMA + 4*t for t in [own] + oth)
    LACC, ONES, PX, E0 = MEMA+16, MEMA+20, MEMA+24, MEMA+28
    assert xa >= 1
    gv = max(sbb + 1, B0 - 1)
    put(gv, f'buffer_load_dwordx4 {vr(VX0,4)}, v{AL0}, {SRD}, s{sV} offen sc1')
    put(gv + 1, f'buffer_load_dwordx4 {vr(VX1,4)}, v{AL0}, {SRD}, s{sV} offen offset:1024 sc1')
    kpos, rpos = opt.get('kpos', 'S7'), opt.get('rpos', 'B4')
    rst = [f'buffer_store_dwordx4 {vr(NEG,4)}, v{AL0}, {SRD}, s{sV2} offen offset:{i*1024}' for i in range(2)]
    kdm = []
    for f in {0: (), 1: (0, 1, 2), 2: (3, 4, 5), 3: (6, 7)}[w]:
        if not kdm or f == 4: kdm.append(f's_mov_b32 m0, {L_K + (f >> 2)*4096}')
        kdm.append(f'buffer_load_dwordx4 v{AL0}, {SRD}, s{sK if f < 4 else sK2} offen offset:{(f & 3)*1024} sc1 lds')
    if rpos == 'P1':
        rg = opt.get('rg', ((0, 4), (3, 5), (4, 0), (5, 3)))[w]
        for i in range(2): put(rg[i], rst[i])
    gk = gv + 2
    if kpos == 'P1': put(gk, kdm[0]); put(gk + 1, kdm[1])
    else: gk = gv
    assert kpos != 'P1'
    gs = gk + opt.get('gsl', 2)
    for i, x in vm: put(min(gs + i, P2 - 1), x)
    if pub: put(gs + opt.get('pg', (0, 1, 2, 3))[w], pub)
    kr = [rd128(KW + 4*f, L_K + f*1024) for f in range(8)]
    for i in range(4):
        g0 = max(B0 + 3*i + 1, g)
        put(g0, kr[2*i]); put(min(g0 + 1, P2 - 1) if i < 3 else P2 - 1, kr[2*i + 1])
    e0, e1 = epq(Q0), epq(Q1)
    qtr = [trd(QT, L_Q, ks, h) for ks in range(4) for h in range(2)]
    ek0, ek1, ev0, ev1 = epi(K0), epi(K1), epi(V0), epi(V1)
    G = lambda k: min(P2 + k, len(seq) - 1)
    kend = P2 + 4 + nmid_ + 3
    if opt.get('presc', 0):
        e0, e1 = epi(Q0), epi(Q1)
        put(G(0), e0[0], e0[1]); put(G(1), e0[2], e1[0]); put(G(2), qkw(L_Q, 0, Q0)); put(G(3), e1[1], e1[2]); put(G(4), qkw(L_Q, 1, Q1))
        put(G(5), ek0[0]); put(G(6), ek0[1]); put(G(7), ek0[2])
        gb = opt.get('gb', 8)
        put(G(gb), 's_waitcnt lgkmcnt(0)', 's_barrier')
        put(G(gb + 1), qtr[0], qtr[1])
        put(G(10), ek1[0], ek1[1]); put(G(11), ek1[2], qkw(L_KM, 1, K1))
        put(G(gb), qkw(L_KM, 0, K0)); put(G(10), qtr[2]); put(G(12), qtr[3], qtr[4])
        late_q = qtr[5:]
        assert kend + 2 - P2 == 10
    else:
        put(G(0), e0[0], e0[1]); put(G(1), e0[2], e0[3]); put(G(2), e0[4], e1[0]); put(G(3), qkw(L_Q, 0, Q0), e1[1])
        put(G(4), e1[2], e1[3]); put(G(5), e1[4]); put(G(6), qkw(L_Q, 1, Q1))
        put(G(7), ek0[0], ek0[1]); put(G(8), ek0[2]); put(G(9), qkw(L_KM, 0, K0))
        gb = opt.get('gb', 10)
        put(G(gb), 's_waitcnt lgkmcnt(1)', 's_barrier')
        e1g = kend + 2 - P2
        put(G(e1g), ek1[0], ek1[1])
        put(G(gb + 1), qtr[0], qtr[1])
        put(G(max(e1g + 1, gb + 1)), ek1[2], qkw(L_KM, 1, K1))
        put(G(gb + 2), qtr[2], qtr[3])
        put(len(seq) - 1, qtr[4], qtr[5])
        late_q = qtr[6:]
    for i, (m_, gg) in enumerate(zip(seq, gap)):
        p(m_)
        for x in gg: p(x)
        if i == B0 - 1 or i == G(gb): stamp()
    PM = T0
    def sx(tile, ks): return mf32(S + 4*tile, KW + 16*tile + 4*ks, QT + 4*ks, '0' if ks == 0 else S + 4*tile)
    def sm(ks): return mf32(SM, AQK + 4*ks, QT + 4*ks, '0' if ks == 0 else SM)
    def ex(d, r): return f'v_exp_f32 v{d}, v{r}'
    def cv(d, a_): return f'v_cvt_pk_bf16_f32 v{d}, v{a_}, v{a_+1}'
    ktr = [trd(AQK, L_KM, ks, h) for ks in range(4) for h in range(2)]
    lq = list(late_q)
    p(sx(0, 0)); p(lq.pop(0))
    p(sx(1, 0)); p(lq.pop(0))
    p(sx(0, 1))
    if lq: p(lq.pop(0))
    else: p(ev1[0]); p(ev1[1])
    p(sx(1, 1))
    p(f's_waitcnt lgkmcnt({5 if len(late_q) == 3 else 6})'); p('s_barrier'); stamp()
    p(sx(0, 2)); p(ktr[0]); p(ktr[1])
    p(sx(0, 3)); p(ktr[2]); p(ktr[3])
    p(sx(1, 2)); p(ktr[4]); p(ktr[5])
    p(sx(1, 3)); p(ktr[6]); p(ktr[7])
    p(rd128(ONES, L_ONE))
    p(sm(0)); p(ex(E0, SX0))
    p(sm(1)); p(ex(E0+1, SX0+1))
    p(sm(2)); p(ex(E0+2, SX0+2))
    p(sm(3)); p(ex(E0+3, SX0+3))
    p(cv(PX, E0)); p(ex(E0, SX1)); p(cv(PX+1, E0+2)); p(ex(E0+1, SX1+1))
    p(ex(E0+2, SX1+2)); p(ex(E0+3, SX1+3)); p(cv(PX+2, E0)); p(ex(E0, SM)); p(cv(PX+3, E0+2)); p(ex(E0+1, SM+1))
    if len(late_q) == 3: p(ev1[0]); p(ev1[1])
    stamp()
    p(ev1[2])
    p(mf32(LACC, ONES, PX, '0')); p(cv(PM, E0)); p(ev0[0])
    p(mf32(OA0, VX0, PX, '0')); p(ev0[1]); p(f'v_mov_b32 v{V1+1}, 0')
    p(mf32(OA1, VX1, PX, '0')); p(ev0[2]); p(f'v_mov_b32 v{V0+1}, 0')
    p(mf16(LACC, ONES, PM, LACC))
    p(f'v_mov_b64 {vr(AQK+2,2)}, 0\nv_mov_b64 {vr(AQK+4,2)}, 0')
    p(mf16(OA0, V0, PM, OA0))
    p(f'v_mov_b64 {vr(AQK+6,2)}, 0\nv_mov_b64 {vr(AQK+8,2)}, 0')
    p(mf16(OA1, V1, PM, OA1))
    p(f'v_rcp_f32 v{T2}, v{LACC}')
    p(f'v_mov_b64 {vr(AQK,2)}, 0')
    p(f'v_max_f32 v{E0}, v{T2}, v{LACC}')
    p(f'v_cmp_nge_f32 vcc, s{sLIM}, v{E0}')
    for r in range(4): p(f'v_mul_f32 v{OA0+r}, v{OA0+r}, v{T2}')
    fbr = f's_and_b64 s[34:35], vcc, s[{sVAL}:{sVAL+1}]\ns_cbranch_scc1 FB{tag}'
    p(f'FBC{tag}:')
    if not opt.get('fbl', 0): p(fbr)
    p(cv(OA0, OA0)); p(cv(OA0+1, OA0+2))
    p(f'ds_write_b64 v{AOW}, {vr(OA0,2)}')
    if opt.get('fbl', 0): p(fbr)
    for r in (0, 2): p(f'v_pk_mul_f32 {vr(OA1+r,2)}, {vr(OA1+r,2)}, {vr(T2,2)} op_sel_hi:[1,0]')
    p(cv(OA1, OA1)); p(cv(OA1+1, OA1+2))
    p(f'ds_write_b64 v{AOW}, {vr(OA1,2)} offset:256')
    slow(f'FB{tag}:')
    slow(f"""s_nop 7
    v_max3_f32 v{T2}, v{SX0}, v{SX0+1}, v{SX0+2}
    v_max3_f32 v{T2}, v{T2}, v{SX0+3}, v{SX1}
    v_max3_f32 v{T2}, v{T2}, v{SX1+1}, v{SX1+2}
    v_max3_f32 v{T2}, v{T2}, v{SX1+3}, v{SM}
    v_max_f32 v{T2}, v{T2}, v{SM+1}
    v_mov_b32 v{E0}, v{T2}
    v_permlane16_swap_b32 v{T2}, v{E0}
    v_max_f32 v{T2}, v{T2}, v{E0}
    v_mov_b32 v{E0}, v{T2}
    v_permlane32_swap_b32 v{T2}, v{E0}
    v_max_f32 v{T2}, v{T2}, v{E0}""")
    for k in range(5):
        for j in range(2): slow(f'v_sub_f32 v{E0+j}, v{S+2*k+j}, v{T2}')
        for j in range(2): slow(ex(E0+j, E0+j))
        slow(cv(PX + k if k < 4 else PM, E0))
    slow(mf32(LACC, ONES, PX, '0')); slow(mf32(OA0, VX0, PX, '0')); slow(mf32(OA1, VX1, PX, '0'))
    slow(mf16(LACC, ONES, PM, LACC)); slow(mf16(OA0, V0, PM, OA0)); slow(mf16(OA1, V1, PM, OA1))
    slow(f'v_rcp_f32 v{T2}, v{LACC}')
    for r in range(4): slow(f'v_mul_f32 v{OA0+r}, v{OA0+r}, v{T2}')
    slow(f's_mov_b64 vcc, 0\ns_nop 7\ns_branch FBC{tag}')
    stamp()
    acc = [AQK, AQK+4, AQK+8, AQK+12, MEMA+16, MEMA+20, MEMA+24, MEMA+28]
    land = [KW, KW+8, KW+16, KW+24, MEMA, QT+8, S, ACCV]
    for r in list(range(AQK+10, AQK+16, 2)) + list(range(MEMA+16, MEMA+32, 2)): p(f'v_mov_b64 {vr(r,2)}, 0')
    p(f'v_lshrrev_b32 v{T0}, 3, v{AL0}\nv_bitop3_b32 v{T0}, v{AL0}, v{T0}, 16 bitop3:0x78')
    w1 = []
    if swapa: land[6], land[7] = WV0, WV0 + 8
    for t in range(6 if swapa else 8): w1 += [rd128(land[t], wl(1, t)), rd128(land[t] + 4, wl(1, t) + 1024)]
    npre = opt.get('w1pre', 0)
    for x in w1[:npre]: p(x)
    p(f's_waitcnt lgkmcnt({npre})'); p('s_barrier')
    stamp()
    OP = QT
    p(f'ds_read_b128 {vr(OP,4)}, v{T0} offset:{L_O}\nds_read_b128 {vr(OP+4,4)}, v{T0} offset:{L_O + 1024}')
    nmid = opt.get('w1mid', 6)
    for x in w1[npre:npre+nmid]: p(x)
    w1 = w1[npre+nmid:]
    assert npre + nmid >= 7 or (swapa and npre + nmid >= 3)
    def pst(t): return f'buffer_store_dword v{acc[t]}, v{AP}, {SRD}, s{sPART+t} offen'
    book = [f's_add_u32 s{sSTEP}, s{sSTEP}, 1', f's_add_u32 s{sSLOT}, s{sSLOT}, 1', f's_cmp_eq_u32 s{sSLOT}, 3', f's_cselect_b32 s{sDLT}, {(-2*INBOX_SLOT) & 0xffffffff}, s{sC2}',
            f's_cselect_b32 s{sDM}, {(-16384) & 0xffffffff}, s{sC8}', f's_cselect_b32 s{sSLOT}, 0, s{sSLOT}']
    if w == 0: book += [f's_lshl_b32 s3, s{sH}, 8\ns_add_u32 s{sKB}, s3, s{sMEM}']
    book += [f's_add_u32 s{sMEM}, s{sMEM}, s{sDM}', f's_add_u32 s{sMEM2}, s{sMEM2}, s{sDM}']
    book += [f's_add_u32 s{sV}, s{sV}, {32*16384}']
    if w in (1, 2): book += [f's_add_u32 s{sPF}, s{sPF}, {32*16384}']
    es = [epi(acc[t]) for t in range(8)]
    for t in range(8):
        p(smf(acc[t], OP, wo0(t)))
        if w1: p(w1.pop(0))
        elif book: p(book.pop(0))
        if t >= 2: p(es[t-2][2])
        p(smf(acc[t], OP+4, vr(land[t], 8)))
        if t >= 2: p(pst(t-2))
        if w1 and (t < 1 or opt.get('w1both', 1)): p(w1.pop(0))
        elif book: p(book.pop(0))
        if t >= 1: p(es[t-1][0]); p(es[t-1][1])
    p(es[6][2]); p(pst(6))
    p(es[7][0]); p(es[7][1]); p(es[7][2]); p(pst(7))
    pastS7[0] = True
    stamp()
    if kpos == 'S7': p('\n'.join(kdm))
    if rpos == 'S7': p('\n'.join(rst))
    if full:
        if w == 0: book.append(f's_lshl_b32 s3, s{sSTEP}, 13\ns_add_u32 s{sKVM}, s3, s{sFCH}')
        if w == 3:
            p(f"""s_add_u32 s{sNEED}, s{sSTEP}, 2
            s_lshr_b32 s{sNEED}, s{sNEED}, 2
            s_add_u32 s{sNEED}, s{sNEED}, 1
            s_min_u32 s{sNEED}, s{sNEED}, 16""")
            slow(f'KVW:\nv_and_b32 v{T2}, 63, v{AP}')
            common.wait_flags(slow, 'KVL', T2, f's{sFKV}', f's{sNEED}', T3)
            slow('s_branch KVR')
    if w == 0: p(rd128(S, L_SEL)); p(f'ds_read_b32 v{S+4}, v{AP} offset:{L_DUM + 1024}\nv_mov_b64 {vr(S+8,2)}, 0\nv_mov_b64 {vr(S+10,2)}, 0')
    adv = [f's_add_u32 s{sV2}, s{sIN}, {w*2048}', f's_add_u32 s{sIN}, s{sIN}, s{sDLT}'] + ([f's_add_u32 s{sIN2}, s{sIN2}, s{sDLT}'] if w == 0 else [])
    late = (kdm if kpos == 'B4' or (w == 0 and kpos in ('mid', 'end')) else []) + ([] if rpos != 'B4' else rst)
    if w: adv += [f's_add_u32 s{sK}, s{sK}, {32*16384}', f's_add_u32 s{sK2}, s{sK2}, {32*16384}']
    adv = late + adv
    hk1 = []
    for t in range(8): hk1 += [f's_add_u32 s{sPART+t}, s{sPART+t}, s{sDLT}', f'v_mov_b64 {vr(AQK+2*t,2)}, 0']
    pre = [x for i in range(4) for x in wrd(i, 0, i).split('\n')] + xpre
    z2 = [f'v_mov_b64 {vr(AQK+r,2)}, 0' for r in range(16, 24, 2)] + [f'v_mov_b64 {vr(NEG,2)}, -1', f'v_mov_b64 {vr(NEG+2,2)}, -1']
    hk2 = []
    for i, x in enumerate(pre): hk2 += [x] + ([z2[i]] if i < len(z2) else [])
    for b_ in book: p(b_)
    if w == 0:
        R0, R = S + 4, S + 8
        def ibl(base): return [f'buffer_load_dwordx4 {vr(base+4*u,4)}, v{AL0}, {SRD}, s{sIN if u < 4 else sIN2} offen offset:{(u&3)*1024} sc1' for u in range(8)]
        def red(q, base): q(f'v_smfmac_f32_16x16x64_bf16 {vr(R,4)}, {vr(S,4)}, {vr(base, 8)}, v{S+4}')
        loads = ibl(MEMA)
        if rb2:
            pre_hk = opt.get('hkfirst', 0)
            if pre_hk: p('\n'.join(hk1))
            backoff(16*opt.get('dly', (0, 0, 0))[var] - 64*pre_hk, 'the other heads' + "'" + ' partial sums are still on their way to L2')
            p('\n'.join(loads))
            p('\n'.join(z2 if pre_hk else hk1 + z2))
            backoff(16*(opt['rb2'] - 1) + 64*pre_hk, 'second read of the inbox half a round trip behind the first')
            p('\n'.join('@junk ' + l for l in ibl(KW)))
        else:
            if var >= 1: p('\n'.join(hk1))
            if var >= 2: p('\n'.join(hk2))
            backoff(16*opt.get('dly', (0, 0, 0))[var], 'partial sums still on their way to L2')
            if opt.get('w0st'): sv = nst[0]; nst[0] = 1; stamp(); nst[0] = sv
            p('\n'.join(loads))
            if var < 1: p('\n'.join(hk1))
            if var < 2: p('\n'.join(hk2))
        p(f'RBR{tag}:')
        for u in range(4):
            red(p, MEMA + 8*u)
            if opt.get('w0st') and u in (0, 3): sv = nst[0]; nst[0] = 2 if u == 0 else 3; stamp(); nst[0] = sv
        p(f'v_cmp_u_f32 vcc, v{R}, v{R}')
        p(f'v_cvt_pk_bf16_f32 v{R}, v{R}, v{R+2}')
        p(f's_cbranch_vccnz RBC{tag}\nRBD{tag}:')
        if opt.get('b4') == 2: p('s_barrier')
        p(f'buffer_store_dword v{R}, v{T3}, {SRD}, s{sPUB} offen')
        if opt.get('b4') == 1: p(f's_barrier\nRBX{tag}:')
        if full: p(f'v_mov_b32 v{QT}, v{R}')
        if not rb2: p('\n'.join(adv0))
        if opt.get('hist'):
            p(f's_lshl_b32 s3, s{sSTEP}, 13\ns_add_u32 s3, s3, {WS_G}\ns_lshl_b32 s34, s{sH}, 8\ns_add_u32 s3, s3, s34\nbuffer_store_dword v{R}, v{T3}, {SRD}, s3 offen')
        zr = f'v_mov_b64 {vr(R,2)}, 0\nv_mov_b64 {vr(R+2,2)}, 0'
        if rb2 and opt.get('eb4', 1):
            slow(f'RBC{tag}:\ns_barrier')
            if not opt.get('rei', 0):
                slow(zr)
                for u in range(4):
                    slow(f's_waitcnt vmcnt({6 - 2*u})'); red(slow, KW + 8*u)
                slow(f'v_cmp_u_f32 vcc, v{R}, v{R}\nv_cvt_pk_bf16_f32 v{R}, v{R}, v{R+2}\ns_cbranch_vccz RBP{tag}')
                slow('\n'.join('@nowait ' + l for l in ibl(KW))); slow('s_sleep 1')
            slow(f'RB{tag}:')
            for cur, oth_ in ((KW, MEMA), (MEMA, KW)):
                slow('\n'.join('@nowait ' + l for l in ibl(oth_))); slow(zr)
                for u in range(4):
                    slow(f's_waitcnt vmcnt({14 - 2*u})'); red(slow, cur + 8*u)
                slow(f'v_cmp_u_f32 vcc, v{R}, v{R}\nv_cvt_pk_bf16_f32 v{R}, v{R}, v{R+2}\ns_cbranch_vccz RBP{tag}')
                for u in range(8): slow(mx(u == 0, cur + 4*u, 0)); slow(mx(u == 0, cur + 4*u, 1))
                slow(CMP); slow(f's_cbranch_vccz RBP{tag}')
                slow(TMO(sRB))
            slow(f's_branch RB{tag}\nRBP{tag}:\nbuffer_store_dword v{R}, v{T3}, {SRD}, s{sPUB} offen\ns_add_u32 s{sRB}, s{sRB}, 1\ns_branch RBX{tag}')
        else:
            slow(f'RBC{tag}:')
            if not rb2:
                for u in range(8): slow(mx(u == 0, MEMA + 4*u, 0)); slow(mx(u == 0, MEMA + 4*u, 1))
                slow(CMP); slow(f's_cbranch_vccz RBD{tag}')
            zr = f'v_mov_b64 {vr(R,2)}, 0\nv_mov_b64 {vr(R+2,2)}, 0'
            slow(f'RB{tag}:'); slow('\n'.join('@nowait ' + l for l in loads)); slow(TMO(sRB)); slow(zr)
            if rb2:
                for u in range(4):
                    slow(f's_waitcnt vmcnt({14 - 2*u})'); red(slow, KW + 8*u)
                slow(f'v_cmp_u_f32 vcc, v{R}, v{R}\nv_cvt_pk_bf16_f32 v{R}, v{R}, v{R+2}\ns_cbranch_vccz RBD{tag}')
                for u in range(8): slow(mx(u == 0, KW + 4*u, 0)); slow(mx(u == 0, KW + 4*u, 1))
                slow(CMP); slow(f's_cbranch_vccz RBD{tag}')
                slow('\n'.join('@nowait ' + l for l in ibl(KW))); slow(zr)
            slow(f's_branch RBR{tag}')
    else:
        p('\n'.join(hk1))
        if kpos == 'mid': p('\n'.join(kdm))
        p('\n'.join(hk2))
        if kpos == 'end':
            backoff(32*opt.get('kdl', 0), 'bulk copy goes behind the inbox reads')
            p('\n'.join(kdm))
        if full and w == 3: p(f's_waitcnt vmcnt({8 + 2*(kpos in ("S7", "mid", "end")) + 2*(rpos == "S7")})\nv_cmp_gt_u32 vcc, s{sNEED}, v{T3}\ns_cbranch_vccnz KVW\nKVR:')
        if opt.get('b4'): p('s_barrier')
        p('\n'.join(adv))
        slp = opt.get('slp3', opt.get('slp')) if w == 3 else opt.get('slp')
        if slp: p(f's_sleep {slp}')
        for _ in range(opt.get('slpn', 0)): p('s_nop 7')
    stamp()
    p(f's_cmp_lt_u32 s{sSTEP}, {nsteps}\ns_cbranch_scc1 HA{tag}')
    if True:
        n = len(fb)
        sets = (LB, S)
        slow(f'SB{tag}:')
        slow('@wait_reset')
        for i, t in enumerate(fb): slow('@nowait ' + gld(sets[0] + 4*i, t))
        slow(TMO(sRB)); slow('s_nop 15')
        slow(f'SL{tag}:')
        for k in range(2):
            for i, t in enumerate(fb): slow('@nowait ' + gld(sets[1-k] + 4*i, t))
            slow(f's_waitcnt vmcnt({n})')
            for i, t in enumerate(fb): slow('@nowait ' + mwr(sets[k] + 4*i, t))
            for i, t in enumerate(fb): slow('@nowait ' + mx(i == 0, sets[k] + 4*i, 0)); slow('@nowait ' + mx(i == 0, sets[k] + 4*i, 1))
            slow(CMP); slow(f's_cbranch_vccz SK{tag}')
        slow(TMO(sRB)); slow(f's_branch SL{tag}')
        slow(f'SK{tag}:'); slow(f's_waitcnt lgkmcnt(0) vmcnt(0)\ns_branch SBR{tag}')
    slow(f'CE{tag}:')
    if w == 0: slow(f's_mov_b32 s{sFCH}, s{sKVM}\ns_mov_b32 s{sKVM}, 0x7f000000')
    slow(''); slow('\n'.join(z2 if rb2 else hk2))
    if rb2: slow(f's_mov_b32 s{sDLT}, {(-2*INBOX_SLOT) & 0xffffffff}\ns_add_u32 s{sIN}, s{sIN}, {2*INBOX_SLOT}\ns_add_u32 s{sIN2}, s{sIN2}, {2*INBOX_SLOT}\ns_mov_b32 s{sKB}, s{sJIT}\ns_mov_b32 s{sJIT}, s{sPUB}')
    slow(f's_branch HA{tag}')
    fin = Prog()
    if var == 0:
        fin(f'FIN{w}:')
        if w == 0: fin(pub)
        if opt.get('wb') and w == 0:
            fin(f's_cmp_lg_u32 s{sH}, 0\ns_cbranch_scc1 FINX\nbuffer_wbl2 sc1\nFINX:' if opt['wb'] == 1 else 'buffer_wbl2 sc1')
        if opt.get('log') and w == 1:
            fin(f's_lshl_b32 s3, s{sH}, 8\ns_add_u32 s3, s3, {WS_DBG + 0x10000}\nbuffer_store_dword v{T3}, v{AP}, {SRD}, s3 offen')
        if opt.get('stamps') or opt.get('trace') or opt.get('first'):
            fin(f's_lshl_b32 s3, s{sH}, 2\ns_add_u32 s3, s3, {w}\ns_lshl_b32 s3, s3, 6\ns_add_u32 s3, s3, {WS_DBG + 0x20000}')
            for i in range(12): fin(f'v_mov_b32 v{i}, s{4+i}')
            fin('s_mov_b64 exec, 1')
            for i in range(3): fin(f'buffer_store_dwordx4 {vr(4*i,4)}, v{AL0}, {SRD}, s3 offen offset:{16*i}')
            fin('s_mov_b64 exec, -1')
        if opt.get('dbgstart'): fin(f's_mul_i32 s{sRETRY}, s77, 63')
        if opt.get('time'): fin(f's_mov_b32 s85, s{sRETRY}\ns_mov_b32 s86, s{sRB}')
        fin('s_branch L_DONE')
    return p.lines, slow.lines, fin.lines

DEF = dict(D=3, spl=(84, 96), pdc=(0, 96), dly=(4, 0, 0), hkfirst=1, slpmode=1, vb=(32, 32), rb2=4, w1pre=2, w1mid=4, swapa=1, sbw=9, sbb=14, b4=1, rpos='P1', gg=(1, 5), pg=(4, 5, 6, 8), kpos='end', kdl=7, rg=((3, 5), (0, 4), (10, 12), (9, 11)))
def role(out, opt):
    from main import stamp
    o2 = dict(DEF); o2.update(opt); opt = o2
    T = opt.get('time')
    p = Prog()
    p('R_CHAIN:')
    startup(p, D_CHINIT, 2 if opt.get('kpos') == 'P1' else 1, opt.get('early', 1), opt.get('presc', 0), opt.get('swapa', 0), opt.get('qs', 32), opt.get('qsw', 1))
    if not opt.get('early', 1): p('s_mov_b32 s77, 0')
    if T: stamp(p, 2)
    p(f's_cmp_eq_u32 s77, 1\ns_cbranch_scc1 C_go')
    common.wait_dbg(p, 'C_init', D_CHINIT, 32)
    common.wait_dbg(p, 'C_init2', D_INIT, 1)
    p(f'v_and_b32 v{T2}, 63, v{AP}')
    common.wait_flags(p, 'C_kv', T2, f's{sFKV}', 1, T0)
    p(f'''s_lshl_b32 s3, s{sW}, 11
    s_add_u32 m0, s3, {L_K}
    s_add_u32 s3, s3, s{sK}
    buffer_load_dwordx4 v{AL0}, {SRD}, s3 offen sc1 lds
    buffer_load_dwordx4 v{AL0}, {SRD}, s3 offen offset:1024 sc1 lds
    s_waitcnt vmcnt(0)
    C_go:
    s_waitcnt vmcnt(1)
    s_barrier
    s_add_u32 s{sK}, s{sK}, {32*16384}
    s_add_u32 s{sK2}, s{sK}, 4096''')
    if T: stamp(p, 3); p('s_memtime s[94:95]\ns_waitcnt lgkmcnt(0)\ns_mov_b32 s98, s94')
    if opt.get('stamps') or opt.get('trace') or opt.get('first'):
        for i in range(12): p(f's_mov_b32 s{4+i}, 0')
    vb = opt.get('vb', (12, 20))
    p(f"""s_cmp_eq_u32 s{sW}, 1
    s_cbranch_scc1 CE1
    s_cmp_eq_u32 s{sW}, 2
    s_cbranch_scc1 CE2
    s_cmp_eq_u32 s{sW}, 3
    s_cbranch_scc1 CE3""")
    if vb[0] >= 32: p('s_branch CE0v0')
    else: p(f's_cmp_lt_u32 s{sH}, {vb[0]}\ns_cbranch_scc1 CE0v0\ns_cmp_lt_u32 s{sH}, {vb[1]}\ns_cbranch_scc1 CE0v1\ns_branch CE0v2')
    o, st = process(p.lines); out += o + ['.p2align 7', 'C_code:']
    for w, var in ((0, 0), (0, 1), (0, 2), (1, 0), (2, 0), (3, 0)):
        if var and vb[0] >= 32: continue
        body, slow, fin = step(w, 63, opt, var)
        import re
        for pat in opt.get('drop', ()): body = [l for l in body if not re.search(pat, l)]
        o, st = loop(body, State())
        o = hoist_waits(o)
        o_, st = loop(o, State())
        assert o_ == o
        if T:
            q = Prog(); stamp(q, 4); q('s_memtime s[96:97]\ns_waitcnt lgkmcnt(0)\ns_sub_u32 s82, s96, s94' if not opt.get('dbgstart') else ''); o += process(q.lines)[0]
        out += ['.p2align 6'] + o + [f's_branch FIN{w}'] + process(slow)[0]
        if fin: out += process(['s_waitcnt lgkmcnt(0)', 's_nop 7'] + fin)[0][2:]
```

```python
from asmlib import *
from layout import *
import common

MEMA, KW, QT, AQK, ACCV, S = 0, 32, 64, 80, 96, 104
IDX, AL0, AL1, AL2, ATR, AQKW, AOW, AP = 116, 117, 118, 119, 120, 121, 122, 123
T0, T1, T2, T3 = 124, 125, 126, 127
WV0, WO0 = 128, 192
SRD = 's[36:39]'
sH, sSTEP, sMEM, sMEM2, sPUB, sIN, sIN2, sW = 40, 41, 42, 43, 44, 45, 46, 47
sPART = 48
sK, sK2, sV, sV2, sPF = 56, 57, 58, 59, 74
sODD = 62
sVAL = 86
sLIM = 88
sC = 64
sRETRY = 65
sRB = 61
sKVM, sFCH, sFKV, sNEED = 60, 89, 90, 91
sSLOT, sDLT, sC2, sKB = 92, 93, 73, 76
sJIT, sDM, sC8 = 78, 79, 66
SRDW = 's[68:71]'

def vr(a, n): return f'v[{a}:{a+n-1}]' if n > 1 else f'v{a}'
def ar(a, n): return f'a[{a}:{a+n-1}]'
def wq(u, t): return ar((u*8+t)*8, 8)
def wk(u, t): return ar(128 + (u*8+t)*8, 8)
def wv0(t): return vr(WV0 + 8*t, 8)
def wo0(t): return vr(WO0 + 8*t, 8)
def smf(acc, a, b): return f'v_smfmac_f32_16x16x64_bf16 {vr(acc,4)}, {vr(a,4)}, {b}, v{IDX}'
def mf32(d, a, b, c): return f'v_mfma_f32_16x16x32_bf16 {vr(d,4)}, {vr(a,4)}, {vr(b,4)}, {c if isinstance(c,str) else vr(c,4)}'
def mf16(d, a, b, c): return f'v_mfma_f32_16x16x16_bf16 {vr(d,4)}, {vr(a,2)}, {vr(b,2)}, {c if isinstance(c,str) else vr(c,4)}'
def lin(off):
    r = (AL0, AL1, AL2)[off >> 16]
    return r, off & 0xffff
def rd128(dst, off):
    r, o = lin(off); return f'ds_read_b128 {vr(dst,4)}, v{r} offset:{o}'

def startup(p, dbg_ctr_off=64, opt_pf=1, early=True, presc=True, swapa=True, qs=32, qsw=1):
    p(f'''
    v_and_b32 v65, 63, v0
    v_lshrrev_b32 v66, 6, v0
    v_readfirstlane_b32 s{sW}, v66
    v_and_b32 v67, 15, v65            ; n
    v_lshrrev_b32 v68, 4, v65         ; g
    v_lshlrev_b32 v{AL0}, 4, v65
    v_add_u32 v{AL1}, 0x10000, v{AL0}
    v_add_u32 v{AL2}, 0x20000, v{AL0}
    v_lshlrev_b32 v{AP}, 2, v65       ; lane*4
    v_lshlrev_b32 v69, 4, v67
    v_lshl_add_u32 v78, v68, 2, v69
    v_lshrrev_b32 v69, 2, v67
    v_lshlrev_b32 v69, 6, v69
    v_and_b32 v70, 3, v67
    v_lshl_add_u32 v69, v70, 2, v69
    v_lshl_add_u32 v{T3}, v68, 4, v69
    s_mov_b32 s36, s32
    s_mov_b32 s37, s33
    s_mov_b32 s38, {WS_SIZE}
    s_mov_b32 s39, 0x20000
    v_lshrrev_b32 v69, 1, v67
    v_lshlrev_b32 v69, 10, v69
    v_and_b32 v70, 1, v67
    v_lshlrev_b32 v70, 2, v70
    v_lshl_add_u32 v70, v68, 3, v70
    v_add_u32 v69, v69, v70
    s_lshl_b32 s3, s{sH}, 5
    v_add_u32 v69, s3, v69
    global_load_dword v76, v69, s[6:7]
    v_mov_b32 v72, -1
    v_mov_b32 v73, -1
    v_mov_b32 v74, -1
    v_mov_b32 v75, -1
    s_mul_i32 s3, s{sH}, {INBOX_STRIDE}
    s_add_u32 s{sIN}, s3, {WS_INBOX}
    s_lshl_b32 s3, s{sW}, 11
    s_add_u32 s3, s3, s{sIN}
    s_add_u32 s34, s3, {INBOX_SLOT}
    buffer_store_dwordx4 v[72:75], v{AL0}, {SRD}, s3 offen
    buffer_store_dwordx4 v[72:75], v{AL0}, {SRD}, s3 offen offset:1024
    buffer_store_dwordx4 v[72:75], v{AL0}, {SRD}, s34 offen
    buffer_store_dwordx4 v[72:75], v{AL0}, {SRD}, s34 offen offset:1024
    s_add_u32 s34, s34, {INBOX_SLOT}
    buffer_store_dwordx4 v[72:75], v{AL0}, {SRD}, s34 offen
    buffer_store_dwordx4 v[72:75], v{AL0}, {SRD}, s34 offen offset:1024
    s_lshl_b32 s3, s{sH}, 8
    s_add_u32 s{sPUB}, s3, {WS_MEMS}
    s_add_u32 s3, s{sPUB}, 8192
    buffer_store_dword v72, v{AP}, {SRD}, s3 offen
    s_add_u32 s{sJIT}, s{sPUB}, 16384
    buffer_store_dword v72, v{AP}, {SRD}, s{sJIT} offen
    v_lshlrev_b32 v69, 13, v68
    v_lshl_add_u32 v69, v67, 4, v69          ; g*8192 + n*16
    s_lshl_b32 s3, s{sW}, 17
    v_add_u32 v69, s3, v69
    v_mov_b32 v71, 0x7fffffff
    v_cmp_gt_u32 vcc, 0x2000, v69
    v_cndmask_b32 v70, v69, v71, vcc
    s_lshl_b32 s3, s{sH}, 8
    s_add_u32 s{sKVM}, s3, {WS_MEMH}
    buffer_store_dwordx4 v[72:75], v70, {SRD}, s{sKVM} offen sc1
    v_add_u32 v69, 0x8000, v69
    buffer_store_dwordx4 v[72:75], v69, {SRD}, s{sKVM} offen sc1
    v_add_u32 v69, 0x8000, v69
    buffer_store_dwordx4 v[72:75], v69, {SRD}, s{sKVM} offen sc1
    v_add_u32 v69, 0x8000, v69
    buffer_store_dwordx4 v[72:75], v69, {SRD}, s{sKVM} offen sc1
    v_lshlrev_b32 v69, 1, v68
    v_xor_b32 v69, v69, v67                  ; n ^ (g<<1)
    v_lshlrev_b32 v69, 4, v69
    v_lshl_add_u32 v80, v68, 13, v69
    v_xor_b32 v81, 0x80, v80              ; off1
    s_lshr_b32 s3, s{sW}, 1
    s_lshl_b32 s3, s3, 7
    v_xor_b32 v82, s3, v{AL0}
    v_xor_b32 v83, 0x20, v82
    v_xor_b32 v84, 0x40, v82
    v_xor_b32 v85, 0x60, v82
    v_lshrrev_b32 v69, 2, v67               ; r
    v_and_b32 v70, 3, v67                   ; c
    v_and_b32 v71, 1, v68
    v_lshl_add_u32 v71, v71, 2, v69          ; f = r | (g&1)<<2
    v_lshlrev_b32 v71, 5, v71
    v_lshl_add_u32 v71, v70, 3, v71          ; f*32 + 8c
    v_lshl_add_u32 v69, v68, 3, v69          ; row = 8g + r
    v_lshl_add_u32 v86, v69, 8, v71
    s_lshl_b32 s3, s{sW}, 6
    v_xor_b32 v86, s3, v86                ; pair 2w
    v_xor_b32 v87, 0x20, v86              ; pair 2w+1
    v_add_u32 v86, {L_W}, v86
    v_add_u32 v87, {L_W}, v87
    v_lshrrev_b32 v69, 2, v67
    v_and_b32 v71, 1, v69                   ; r&1
    v_lshrrev_b32 v69, 1, v69
    v_lshl_add_u32 v69, v69, 2, v71
    v_lshl_add_u32 v69, v68, 3, v69         ; row
    v_and_b32 v90, 1, v68
    v_lshl_add_u32 v71, v90, 2, v71         ; f = (r&1) | (g&1)<<2
    v_lshlrev_b32 v71, 5, v71
    v_lshl_add_u32 v71, v70, 3, v71
    v_lshl_add_u32 v88, v69, 10, v71
    s_lshl_b32 s3, s{sW}, 5
    v_xor_b32 v88, s3, v88
    v_xor_b32 v89, 0x80, v88
    v_xor_b32 v90, 0x40, v88
    v_xor_b32 v91, 0xc0, v88
    v_add_u32 v88, {L_W}, v88
    v_add_u32 v89, {L_W}, v89
    v_add_u32 v90, {L_W}, v90
    v_add_u32 v91, {L_W}, v91
    s_lshl_b32 s66, s{sW}, 12
    s_add_u32 s66, s66, {L_W}
    s_mov_b32 s70, 0x400000
    s_mov_b32 s71, 0x20000
    ''')
    def dma(c):
        mat = c >> 3; t = c & 7
        if t == 0:
            src = (14, 8, 10, 12)[mat]
            p(f's_mov_b32 s68, s{src}\ns_mov_b32 s69, s{src+1}')
            if mat == 0:
                p(f's_lshl_b32 s67, s{sH}, 17\ns_lshl_b32 s3, s{sW}, 12\ns_add_u32 s67, s67, s3')
            else:
                p(f's_lshl_b32 s67, s{sH}, 8\ns_lshl_b32 s3, s{sW}, 17\ns_add_u32 s67, s67, s3')
        for i in range(4):
            p(f's_add_u32 m0, s66, {t*16384 + i*1024}')
            if mat == 0:
                p(f's_add_u32 s3, s67, {(t^4)*16384 + i*1024}')
                p(f'buffer_load_dwordx4 v{82+i}, {SRDW}, s3 offen lds')
            else:
                p(f's_add_u32 s3, s67, {t*64*8192 + i*4*8192}')
                p(f'buffer_load_dwordx4 v{80+(i>>1)}, {SRDW}, s3 offen lds')
    for c in range(8): dma(c)
    p(f'''
    v_and_b32 v69, 1, v67
    v_mov_b32 v70, 0x4444
    v_mov_b32 v71, 0xeeee
    v_cmp_eq_u32 s[{sODD}:{sODD+1}], 1, v69
    v_cndmask_b32 v{IDX}, v70, v71, s[{sODD}:{sODD+1}]
    ; aTR: (d0 + r)*32 + 8c, d0 = 16*(g>>1) + 4*(g&1)
    v_lshrrev_b32 v69, 1, v68
    v_lshlrev_b32 v69, 4, v69
    v_and_b32 v70, 1, v68
    v_lshl_add_u32 v69, v70, 2, v69
    v_lshrrev_b32 v70, 2, v67
    v_add_u32 v69, v69, v70
    v_and_b32 v70, 3, v67
    v_and_b32 v71, {1 if qsw else 0}, v68
    v_lshlrev_b32 v71, 1, v71
    v_xor_b32 v70, v70, v71
    v_lshlrev_b32 v70, 3, v70
    v_mul_u32_u24 v69, {qs}, v69
    v_add_u32 v{ATR}, v69, v70
    ; aQKW: n*32 + 8g
    v_mul_u32_u24 v69, {qs}, v67
    v_lshrrev_b32 v70, 1, v67
    v_and_b32 v70, {2 if qsw else 0}, v70
    v_xor_b32 v70, v70, v68
    v_lshl_add_u32 v{AQKW}, v70, 3, v69
    v_lshrrev_b32 v69, 2, v67
    v_and_b32 v70, 1, v67
    v_lshl_add_u32 v69, v69, 1, v70
    v_lshrrev_b32 v70, 2, v69
    v_xor_b32 v70, v70, v68
    v_and_b32 v70, 1, v70
    v_lshlrev_b32 v69, 5, v69
    v_lshl_add_u32 v69, v70, 4, v69
    v_lshrrev_b32 v70, 1, v68
    v_lshl_add_u32 v69, v70, 3, v69
    v_add_u32 v70, {L_O}, v69
    v_xor_b32 v71, 8, v69
    v_add_u32 v71, {L_DUM}, v71
    v_and_b32 v69, 2, v67
    v_cmp_eq_u32 vcc, 0, v69
    s_lshl_b32 s3, s{sW}, 9               ; (w>>1)*1024 + (w&1)*512
    v_add_u32 v70, s3, v70
    v_cndmask_b32 v{AOW}, v71, v70, vcc
    v_lshrrev_b32 v69, 3, v67
    v_xor_b32 v69, v69, v67
    v_and_b32 v69, 7, v69                   ; e
    v_and_b32 v70, 3, v69
    v_cmp_eq_u32 vcc, 3, v70
    v_mov_b32 v71, 0x3f80
    v_mov_b32 v77, 0x3f800000
    v_cndmask_b32 v71, v71, v77, vcc
    v_cndmask_b32 v70, v70, 0, vcc
    v_or_b32 v70, 12, v70
    v_mul_u32_u24 v70, 0x1111, v70
    ds_write_b32 v{AP}, v70 offset:{L_DUM + 1024}
    v_cmp_gt_u32 vcc, 4, v69
    v_cndmask_b32 v92, 0, v71, vcc
    v_cndmask_b32 v93, v71, 0, vcc
    v_mov_b32 v94, v92
    v_mov_b32 v95, v93
    ds_write_b128 v{AL0}, v[92:95] offset:{L_SEL}
    s_waitcnt lgkmcnt(0)
    v_mov_b32 v92, 0x3f803f80
    v_mov_b32 v93, 0x3f803f80
    v_mov_b32 v94, 0x3f803f80
    v_mov_b32 v95, 0x3f803f80
    ds_write_b128 v{AL0}, v[92:95] offset:{L_ONE}
    s_mov_b32 s{sLIM}, 0x53800000          ; 2^40
    v_mov_b32 v{T1}, 0
    s_mov_b32 s{sVAL}, 0x33333333
    s_mov_b32 s{sVAL+1}, 0x33333333
    s_mov_b32 s{sODD}, 0
    s_mov_b32 s{sODD+1}, -1
    s_mov_b32 s{sC}, 0x3e0293ee           ; log2(e)/sqrt(128)
    ''')
    issued = 7
    def allowed(c): return 4 * (issued - c)
    c = 0
    while c < 32:
        mat = c >> 3; t = c & 7
        if mat == 0:
            first = t == 0
            p(f's_waitcnt vmcnt({allowed(c+3)})')
            if first:
                p(f'''@wait_reset
                v_min_u32 v76, -2, v76
                buffer_store_dword v76, v78, {SRD}, s{sPUB} offen
                buffer_store_dword v76, v78, {SRD}, s{sKVM} offen sc1
                v_mov_b32 v79, v0''')
            p('s_barrier')
            for tt in range(8):
                for q, o in enumerate((0, 2048, 32768, 34816)):
                    d = (0 if first else WO0) + tt*8 + 2*q
                    p(f'ds_read_b64_tr_b16 v[{d}:{d+1}], v{88 + (tt&1) + 2*(q&1)} offset:{o + (tt>>1)*256}')
                if tt & 1: p('s_waitcnt lgkmcnt(0)')
            p('s_barrier')
            if first: p('v_add_u32 v88, 0x10000, v88\nv_add_u32 v89, 0x10000, v89\nv_add_u32 v90, 0x10000, v90\nv_add_u32 v91, 0x10000, v91')
            for k in range(4): dma(c + 8 + k)
            issued += 4; c += 4
            continue
        p(f's_waitcnt vmcnt({allowed(c) + (3 if early and c >= 28 else 0)})')
        p('s_barrier')
        if early and c == 16: p(f'v_mov_b32 v69, {D_INIT}\n@junk global_load_dword v67, v69, s[30:31] sc1')
        if early and c == 23:
            p(f'''v_mov_b32 v69, {D_CHINIT}
            v_and_b32 v70, 63, v{AP}
            s_lshl_b32 s3, s{sH}, 6
            s_add_u32 s3, s3, {F_KV}
            @junk global_load_dword v66, v69, s[30:31] sc1
            @junk buffer_load_dword v68, v70, {SRD}, s3 offen sc1''')
        if early and c == 27:
            p(f'''v_lshlrev_b32 v69, 3, v{AL0}
            s_mul_i32 s3, s{sW}, {INBOX_SLOT}
            s_add_u32 s3, s3, s{sIN}
            s_cmp_eq_u32 s{sW}, 3
            s_cselect_b32 s3, {WS_MEMS}, s3
            @junk buffer_load_dword v65, v69, {SRD}, s3 offen sc1
            s_and_b32 s3, s{sW}, 1
            s_lshl_b32 s3, s3, 13
            s_add_u32 s3, s3, {WS_MEMS + 8192}
            @junk buffer_load_dword v65, v69, {SRD}, s3 offen sc1
            s_getpc_b64 s[34:35]
            C_pc:
            s_add_u32 s34, s34, C_code - C_pc
            s_addc_u32 s35, s35, 0
            s_lshl_b32 s3, s{sW}, 13
            v_add_u32 v69, s3, v69
            v_min_u32 v69, L_DONE - C_code - 4, v69
            @junk global_load_dword v65, v69, s[34:35]''')
        if early and c == 30:
            p(f'''s_mov_b32 s77, 0
            v_cmp_gt_u32 vcc, 32, v66
            s_cbranch_vccnz C_late
            v_cmp_gt_u32 vcc, 1, v67
            s_cbranch_vccnz C_late
            v_cmp_gt_u32 vcc, 1, v68
            s_cbranch_vccnz C_late
            s_mov_b32 s77, 1
            s_lshl_b32 s3, s{sH}, 14
            s_lshl_b32 s34, s{sW}, 11
            s_add_u32 s35, s3, {WS_KV + 8192}
            s_add_u32 s3, s3, s34
            s_add_u32 s3, s3, {WS_KV}
            s_add_u32 m0, s34, {L_K}
            v_lshlrev_b32 v69, 3, v{AL0}
            buffer_load_dwordx4 v{AL0}, {SRD}, s3 offen sc1 lds
            buffer_load_dwordx4 v{AL0}, {SRD}, s3 offen offset:1024 sc1 lds
            @junk buffer_load_dword v65, v69, {SRD}, s35 offen sc1
            C_late:''')
        if c == 9:
            p(f'''v_mov_b32 v69, {dbg_ctr_off}
            v_mov_b32 v70, 1
            v_cmp_eq_u32 vcc, 0, v79
            s_and_saveexec_b64 s[34:35], vcc
            s_cbranch_execz L_noinc
            global_atomic_add v69, v70, s[30:31]
            L_noinc:
            s_mov_b64 exec, s[34:35]''')
        for u in range(2):
            for q, o in enumerate((0, 1024, 8192, 9216)):
                if mat == 1 and presc:
                    p(f'ds_read_b64_tr_b16 v[{96 + 8*u + 2*q}:{97 + 8*u + 2*q}], v{86+u} offset:{o + (t&3)*16384}')
                elif mat < 3:
                    d = (mat-1)*128 + (u*8+t)*8 + 2*q
                    p(f'ds_read_b64_tr_b16 a[{d}:{d+1}], v{86+u} offset:{o + (t&3)*16384}')
                else:
                    d = (WV0 + 8*t if u == 0 else 96) + 2*q
                    p(f'ds_read_b64_tr_b16 v[{d}:{d+1}], v{86+u} offset:{o + (t&3)*16384}')
        p('s_waitcnt lgkmcnt(0)\ns_barrier')
        if t == 3: p('v_add_u32 v86, 0x10000, v86\nv_add_u32 v87, 0x10000, v87')
        if t == 7: p('v_subrev_u32 v86, 0x10000, v86\nv_subrev_u32 v87, 0x10000, v87')
        if mat == 3:
            if t == 0: p(f'v_add_u32 v90, s66, v{AL0}')
            if t == 4: p('v_add_u32 v90, 0x10000, v90')
            sw = swapa and t >= 6
            o1 = WV0 + 8*(t - 6) if sw else 8*t
            for k, r in enumerate((96, 100, o1, o1+4)):
                p(f'ds_write_b128 v90, v[{r}:{r+3}] offset:{(t&3)*16384 + k*1024}')
            p('s_waitcnt lgkmcnt(0)')
            if sw:
                for k in range(0, 8, 2): p(f'v_mov_b64 {vr(o1 + k, 2)}, {vr(8*t + k, 2)}')
        if c + 8 < 32:
            dma(c + 8); issued += 1
        if mat == 1 and presc:
            for i in range(16):
                p(f'v_lshlrev_b32 v112, 16, v{96+i}\nv_and_b32 v113, 0xffff0000, v{96+i}\nv_mul_f32 v112, s{sC}, v112\nv_mul_f32 v113, s{sC}, v113\nv_cvt_pk_bf16_f32 v112, v112, v113\nv_accvgpr_write_b32 a{((i >> 3)*8 + t)*8 + (i & 7)}, v112')
        c += 1
    p(f'''
    s_mov_b32 s{sSTEP}, 0
    s_mov_b32 s{sMEM}, {WS_MEMS}
    s_mov_b32 s{sMEM2}, {WS_MEMS + 4096}
    s_add_u32 s{sPUB}, s{sPUB}, 8192
    s_mov_b32 s{sSLOT}, 0
    s_mov_b32 s{sC2}, {INBOX_SLOT}
    s_lshl_b32 s3, s{sW}, 11
    s_add_u32 s3, s3, s{sIN}
    s_mov_b32 s{sC8}, 8192
    s_add_u32 s{sV2}, s3, {2*INBOX_SLOT}
    s_add_u32 s{sIN2}, s{sIN}, 4096
    s_mul_i32 s3, s{sW}, {INBOX_STRIDE}
    s_lshl_b32 s34, s{sH}, 8
    s_add_u32 s3, s3, s34
    s_add_u32 s{sPART}, s3, {WS_INBOX}
    ''')
    for t in range(1, 8): p(f's_add_u32 s{sPART+t}, s{sPART}, {4*t*INBOX_STRIDE}')
    p(f'''
    s_lshl_b32 s3, s{sH}, 14
    s_add_u32 s{sK}, s3, {WS_KV}
    s_add_u32 s{sK2}, s{sK}, 4096
    s_lshl_b32 s34, s{sW}, 11
    s_add_u32 s{sV}, s{sK}, 8192
    s_add_u32 s{sPF}, s{sK}, {opt_pf*32*16384}
    s_add_u32 s{sPF+1}, s{sV}, {32*16384}
    s_cmp_eq_u32 s{sW}, 2
    s_cselect_b32 s{sPF}, s{sPF+1}, s{sPF}
    s_add_u32 s{sV}, s{sV}, s34
    s_lshl_b32 s3, s{sH}, 6
    s_add_u32 s{sFKV}, s3, {F_KV}
    s_mov_b32 s{sRETRY}, 0
    s_mov_b32 s{sRB}, 0
    ''')
    for r in range(0, 24, 2): p(f'v_mov_b64 {vr(AQK+r,2)}, 0')

def kdma(p):
    L = []
    for half, so in ((0, sK), (1, sK2)):
        L.append(f's_mov_b32 m0, {L_K + half*4096}')
        for i in range(4): L.append(f'buffer_load_dwordx4 v{AL0}, {SRD}, s{so} offen offset:{i*1024} sc1 lds')
    return L
def vdma(p):
    L = []
    for half, so in ((0, sV), (1, sV2)):
        L.append(f's_mov_b32 m0, {L_V + half*4096}')
        for i in range(4): L.append(f'buffer_load_dwordx4 v{AL0}, {SRD}, s{so} offen offset:{i*1024} sc1 lds')
    return L

def step(w, nsteps, opt, var=0):
    p = Prog(); slow = Prog()
    QS = opt.get('qs', 32)
    L_KM, L_SB = L_Q + 6144, L_Q + 12288
    tag = f'{w}' if w else f'0v{var}'
    Q0, Q1, K0, K1 = AQK, AQK+4, AQK+8, AQK+12
    V0, V1 = ACCV, ACCV+4
    SX0, SX1, SM = S, S+4, S+8
    def wl(u, t): return L_W + t*16384 + w*4096 + u*2048
    def wrd(slot, u, t): return rd128(KW + 8*slot, wl(u, t)) + '\n' + rd128(KW + 8*slot + 4, wl(u, t) + 1024)
    nst = [0]; pastS7 = [False]
    def stamp():
        i = nst[0]; nst[0] += 1
        if opt.get('trace'):
            if opt.get('w0st') and i in (1, 2, 3) and not pastS7[0]: return
            if i in opt['trace']:
                p(f's_cmp_eq_u32 s{sSTEP}, {opt.get("at", 41)}\ns_cbranch_scc0 TR{tag}_{i}\ns_memrealtime s[96:97]\ns_waitcnt lgkmcnt(0)\ns_mov_b32 s{4+i}, s96\nTR{tag}_{i}:')
            return
        if i not in opt.get('stamps', ()): return
        if opt.get('w0st') and i in (1, 2, 3) and not pastS7[0]: return
        p(f's_memtime s[96:97]\ns_waitcnt lgkmcnt(0)\ns_sub_u32 s99, s96, s98\ns_mov_b32 s98, s96\ns_add_u32 s{4+i}, s{4+i}, s99')
    def backoff(cyc, why):
        if cyc <= 0: return
        if opt.get('slpmode', 0):
            if cyc >= 64: p(f's_sleep {cyc // 64}')
            cyc %= 64
        while cyc > 0:
            k = min(cyc // 4, 16); p(f's_nop {k-1}'); cyc -= 4*k
    def epi(acc): return [f'v_add_f32 v{acc}, v{acc}, v{acc+1}', f'v_add_f32 v{acc+2}, v{acc+2}, v{acc+3}', f'v_cvt_pk_bf16_f32 v{acc}, v{acc}, v{acc+2}']
    def epq(acc):
        e = epi(acc)
        return e[:2] + [f'v_mul_f32 v{acc}, s{sC}, v{acc}', f'v_mul_f32 v{acc+2}, s{sC}, v{acc+2}'] + e[2:]
    def qkw(base, u, acc): return f'ds_write_b32 v{AQKW}, v{acc} offset:{base + (32*w + 16*u)*QS}'
    def trd(dst, base, ks, h): return f'ds_read_b64_tr_b16 {vr(dst + 4*ks + 2*h, 2)}, v{ATR} offset:{base + ks*32*QS + h*8*QS}'
    def mloc(t): return L_Q + t*1024 if t < 4 else L_SB + (t-4)*1024
    def gld(dst, t): return f'buffer_load_dwordx4 {vr(dst,4)}, v{AL0}, {SRD}, s{sMEM if t < 4 else sMEM2} offen offset:{(t&3)*1024} sc1'
    def mwr(src, t): return f'ds_write_b128 v{AL0}, {vr(src,4)} offset:{mloc(t)}'
    def mx(first, m, k):
        if first: return f'v_max3_u32 v{T0}, v{m}, v{m+1}, v{m+2}' if k == 0 else f'v_max_u32 v{T0}, v{T0}, v{m+3}'
        return f'v_max3_u32 v{T0}, v{T0}, v{m+2*k}, v{m+2*k+1}'
    CMP = f'v_cmp_eq_u32 vcc, -1, v{T0}'
    TMO = lambda r: f's_add_u32 s{r}, s{r}, 1\ns_cmp_gt_u32 s{r}, {LIMIT}\ns_cbranch_scc1 L_ABORT'
    own = (w + 3) & 3
    fb = (own + 4,)
    LB, NEG = QT + 4, QT + 12
    D = opt.get('D', 2)
    def v1s(t): return smf(V1, MEMA + 4*t, vr(KW + 8*(t & 3), 8))
    swapa = opt.get('swapa', 0)
    def v0s(t): return smf(V0, MEMA + 4*t, vr(MEMA + 16 + 8*t, 8) if swapa and t < 2 else wv0(t))
    xpre = [rd128(MEMA + 16 + 8*i + 4*j, wl(1, 6 + i) + 1024*j) for i in range(2) for j in range(2)] if swapa else []
    def qs(u, t): return smf(Q0 + 4*u, MEMA + 4*t, wq(u, t))
    def ks_(u, t): return smf(K0 + 4*u, MEMA + 4*t, wk(u, t))
    full = not opt.get('proto')
    adv0 = [f's_add_u32 s{sV2}, s{sIN}, 0', f's_add_u32 s{sIN}, s{sIN}, s{sDLT}', f's_add_u32 s{sIN2}, s{sIN2}, s{sDLT}', f's_mov_b32 s{sPUB}, s{sJIT}', f's_mov_b32 s{sJIT}, s{sKB}']
    rb2 = opt.get('rb2') and w == 0 and var in opt.get('rb2v', (0, 1, 2))
    p(f'HA{tag}:')
    sp = opt.get('sp', 0)
    PS = [S, S + 4, S + 8, QT + 8, LB]
    backoff(opt.get('pdc', [32*x for x in opt.get('pd', (0, 0))])[1 if w else 0], 'the new memory rows are still on their way to L2')
    for i in range(D - 1):
        p(gld(PS[i], own))
        if i == 0 and not opt.get('lean', 0): p(TMO(sRETRY))
        if rb2 and i == 0:
            p('\n'.join(adv0)); p('s_waitcnt vmcnt(2)')
            for k in range(4): p(wrd(k, 0, k))
            for x in xpre: p(x)
            continue
        backoff(opt['spl'][i] if 'spl' in opt else opt.get('spc', 32*sp) + (12 if i else 0), 'spread the polls in flight over one round trip')
    rf = lambda t: wrd(t & 3, 0, t).split('\n')
    def head(q):
        jit = f'buffer_store_dword v{NEG}, v{AP}, {SRD}, s{sJIT} offen'
        lbp = opt.get('lbp', 1)
        if not lbp:
            q(gld(LB, own + 4))
            if w == 0: q(jit)
        if wl8:
            q(qs(0, own)); q(mwr(MEMA + 4*own, own)); q(v1s(own)); q(gld(LB, own + 4)); q(qs(1, own)); q(rf(own + 4)[0])
            q(ownl[0]); q(rf(own + 4)[1])
            for x in ownl[1:nb4]: q(x)
            return
        q(qs(0, own))
        if lbp: q(gld(LB, own + 4))
        q(v1s(own)); q(rf(own + 4)[0]); q(qs(1, own)); q(rf(own + 4)[1])
        for x in ownl[:nb4]: q(x)
    spec = opt.get('spec', 0)
    wl8 = opt.get('wl8', 0)
    ownl = [ks_(0, own), ks_(1, own), v0s(own)]
    nb4 = opt.get('nb4', 1)
    def chk1(q, m):
        if not wl8: q(mwr(m, own))
        q(mx(1, m, 0)); q(mx(1, m, 1)); q(CMP)
        q(f'v_mov_b64 {vr(MEMA + 4*own, 2)}, {vr(m, 2)}'); q(f'v_mov_b64 {vr(MEMA + 4*own + 2, 2)}, {vr(m + 2, 2)}')
    if opt.get('lean', 0):
        p('@nowait ' + gld(PS[D - 1], own))
        for i in range(D):
            p(f's_waitcnt vmcnt({D-1-i})'); chk1(p, PS[i])
            p(f's_cbranch_vccz HK{tag}' if i < D - 1 else f's_cbranch_vccnz HR{tag}')
        slow(f'HR{tag}:')
        for i in range(D - 1): slow('@nowait ' + gld(PS[i], own)); slow('s_sleep 1')
        slow(f'HL{tag}:')
        for i in range(D):
            slow('@nowait ' + gld(PS[(i + D - 1) % D], own)); slow(f's_waitcnt vmcnt({D-1})'); chk1(slow, PS[i]); slow(f's_cbranch_vccz HK{tag}')
        slow(TMO(sRETRY)); slow(f's_branch HL{tag}')
    else:
        p(f'HL{tag}:')
        for i in range(D):
            p('@nowait ' + gld(PS[(i + D - 1) % D], own))
            p(f's_waitcnt vmcnt({D-1})'); chk1(p, PS[i])
            p(f's_cbranch_vccz HK{tag}' if i < D - 1 else f's_cbranch_vccnz HR{tag}')
        slow(f'HR{tag}:'); slow(TMO(sRETRY)); slow(f's_branch HL{tag}')
    if spec:
        slow(f'HK{tag}:'); slow('s_waitcnt lgkmcnt(1)\n@wait_reset'); head(slow); slow(f's_branch HJ{tag}')
    else:
        p(f'HK{tag}:')
        p(f'@vm {D-1}')
        p(f's_waitcnt lgkmcnt({0 if wl8 else 1})')
        head(p)
    if opt.get('trace'):
        nst[0] = 9; stamp(); nst[0] = 0
    p('s_waitcnt lgkmcnt(2)')
    p('s_barrier')
    stamp()
    if opt.get('first'):
        p('s_memtime s[96:97]\ns_waitcnt lgkmcnt(0)\ns_sub_u32 s96, s96, s94')
        for i, st_ in enumerate((0, 1, 2, 3, 4, 5, 10, 20, 40, 62)): p(f's_cmp_eq_u32 s{sSTEP}, {st_}\ns_cselect_b32 s{4+i}, s96, s{4+i}')
    oth = [t for t in range(4) if t != own]
    for t in oth: p(rd128(MEMA + 4*t, mloc(t)))
    if opt.get('log') and w == 1:
        p(f's_{"memrealtime" if opt["log"] == 2 else "memtime"} s[96:97]\ns_waitcnt lgkmcnt(0)\ns_mov_b32 m0, s{sSTEP}\nv_writelane_b32 v{T3}, s96, m0')
    for x in ownl[nb4:]: p(x)
    if w == 0 and opt.get('lbp', 1): p(f'buffer_store_dword v{NEG}, v{AP}, {SRD}, s{sJIT} offen')
    vm = []
    pub = f'buffer_store_dword v{QT}, v{T3}, {SRD}, s{sKVM} offen sc1' if full and w == 0 else None
    if w == 3 and full:
        vm.append((0, f'v_and_b32 v{T2}, 63, v{AP}\n@junk buffer_load_dword v{T3}, v{T2}, {SRD}, s{sFKV} offen sc1'))
    if w in (1, 2):
        p(f'v_lshlrev_b32 v{T2}, 3, v{AL0}')
        vm.append((opt.get('gg', (4, 8))[w-1], f'@junk buffer_load_dword v{T3}, v{T2}, {SRD}, s{sPF} offen sc1'))
    seq = []
    xa = opt.get('xa', 2)
    v0l = [v0s(t) for t in oth + [4, 5, 6, 7]]
    if swapa:
        defer = []
        for i, t in enumerate(oth):
            seq += [qs(0, t), v1s(t), qs(1, t), ks_(0, t)]
            if i < xa and t < 2: seq.append(v0l[i]); defer.append(ks_(1, t))
            else:
                seq.append(ks_(1, t))
                if i < xa: defer.append(v0l[i])
        seq += defer
    else:
        for t in oth: seq += [qs(0, t), v1s(t), qs(1, t), ks_(0, t), ks_(1, t)]
        seq += v0l[:xa]
    B0 = len(seq)
    for t in range(4, 8): seq += [qs(0, t), v1s(t), qs(1, t)]
    P2 = len(seq)
    rest = v0l[xa:]
    nmid_ = len(rest) - 4
    seq += [ks_(0, t) for t in range(4, 8)] + rest[:nmid_] + [ks_(1, t) for t in range(4, 8)] + rest[nmid_:]
    NP = len(seq) - P2
    gap = [[] for _ in seq]
    def put(g, *ins):
        for x in ins: gap[g] += x.split('\n')
    sbw, sbb = opt.get('sbw', 8), opt.get('sbb', 13)
    put(1, rf(oth[0] + 4)[0]); put(2, rf(oth[0] + 4)[1]); put(6, rf(oth[1] + 4)[0]); put(7, rf(oth[1] + 4)[1])
    put(sbw, mwr(LB, own + 4))
    for i, x in enumerate((mx(1, LB, 0), mx(1, LB, 1), CMP)): put(sbw + 1 + i, x)
    put(sbb, f's_cbranch_vccnz SB{tag}\nSBR{tag}:', 's_waitcnt lgkmcnt(0)', 's_barrier', rd128(MEMA + 16, mloc(4)))
    g = sbb + 1
    for x in [rd128(MEMA + 4*tt, mloc(tt)) for tt in range(5, 8)] + rf(oth[2] + 4):
        put(g, x); g += 1
    VX0, VX1, OA0, OA1 = (MEMA + 4*t for t in [own] + oth)
    LACC, ONES, PX, E0 = MEMA+16, MEMA+20, MEMA+24, MEMA+28
    assert xa >= 1
    gv = max(sbb + 1, B0 - 1)
    put(gv, f'buffer_load_dwordx4 {vr(VX0,4)}, v{AL0}, {SRD}, s{sV} offen sc1')
    put(gv + 1, f'buffer_load_dwordx4 {vr(VX1,4)}, v{AL0}, {SRD}, s{sV} offen offset:1024 sc1')
    kpos, rpos = opt.get('kpos', 'S7'), opt.get('rpos', 'B4')
    rst = [f'buffer_store_dwordx4 {vr(NEG,4)}, v{AL0}, {SRD}, s{sV2} offen offset:{i*1024}' for i in range(2)]
    kdm = []
    for f in {0: (), 1: (0, 1, 2), 2: (3, 4, 5), 3: (6, 7)}[w]:
        if not kdm or f == 4: kdm.append(f's_mov_b32 m0, {L_K + (f >> 2)*4096}')
        kdm.append(f'buffer_load_dwordx4 v{AL0}, {SRD}, s{sK if f < 4 else sK2} offen offset:{(f & 3)*1024} sc1 lds')
    if rpos == 'P1':
        rg = opt.get('rg', ((0, 4), (3, 5), (4, 0), (5, 3)))[w]
        for i in range(2): put(rg[i], rst[i])
    gk = gv + 2
    if kpos == 'P1': put(gk, kdm[0]); put(gk + 1, kdm[1])
    else: gk = gv
    assert kpos != 'P1'
    gs = gk + opt.get('gsl', 2)
    for i, x in vm: put(min(gs + i, P2 - 1), x)
    if pub: put(gs + opt.get('pg', (0, 1, 2, 3))[w], pub)
    kr = [rd128(KW + 4*f, L_K + f*1024) for f in range(8)]
    for i in range(4):
        g0 = max(B0 + 3*i + 1, g)
        put(g0, kr[2*i]); put(min(g0 + 1, P2 - 1) if i < 3 else P2 - 1, kr[2*i + 1])
    e0, e1 = epq(Q0), epq(Q1)
    qtr = [trd(QT, L_Q, ks, h) for ks in range(4) for h in range(2)]
    ek0, ek1, ev0, ev1 = epi(K0), epi(K1), epi(V0), epi(V1)
    G = lambda k: min(P2 + k, len(seq) - 1)
    kend = P2 + 4 + nmid_ + 3
    if opt.get('presc', 0):
        e0, e1 = epi(Q0), epi(Q1)
        put(G(0), e0[0], e0[1]); put(G(1), e0[2], e1[0]); put(G(2), qkw(L_Q, 0, Q0)); put(G(3), e1[1], e1[2]); put(G(4), qkw(L_Q, 1, Q1))
        put(G(5), ek0[0]); put(G(6), ek0[1]); put(G(7), ek0[2])
        gb = opt.get('gb', 8)
        put(G(gb), 's_waitcnt lgkmcnt(0)', 's_barrier')
        put(G(gb + 1), qtr[0], qtr[1])
        put(G(10), ek1[0], ek1[1]); put(G(11), ek1[2], qkw(L_KM, 1, K1))
        put(G(gb), qkw(L_KM, 0, K0)); put(G(10), qtr[2]); put(G(12), qtr[3], qtr[4])
        late_q = qtr[5:]
        assert kend + 2 - P2 == 10
    else:
        put(G(0), e0[0], e0[1]); put(G(1), e0[2], e0[3]); put(G(2), e0[4], e1[0]); put(G(3), qkw(L_Q, 0, Q0), e1[1])
        put(G(4), e1[2], e1[3]); put(G(5), e1[4]); put(G(6), qkw(L_Q, 1, Q1))
        put(G(7), ek0[0], ek0[1]); put(G(8), ek0[2]); put(G(9), qkw(L_KM, 0, K0))
        gb = opt.get('gb', 10)
        put(G(gb), 's_waitcnt lgkmcnt(1)', 's_barrier')
        e1g = kend + 2 - P2
        put(G(e1g), ek1[0], ek1[1])
        put(G(gb + 1), qtr[0], qtr[1])
        put(G(max(e1g + 1, gb + 1)), ek1[2], qkw(L_KM, 1, K1))
        put(G(gb + 2), qtr[2], qtr[3])
        put(len(seq) - 1, qtr[4], qtr[5])
        late_q = qtr[6:]
    for i, (m_, gg) in enumerate(zip(seq, gap)):
        p(m_)
        for x in gg: p(x)
        if i == B0 - 1 or i == G(gb): stamp()
    PM = T0
    def sx(tile, ks): return mf32(S + 4*tile, KW + 16*tile + 4*ks, QT + 4*ks, '0' if ks == 0 else S + 4*tile)
    def sm(ks): return mf32(SM, AQK + 4*ks, QT + 4*ks, '0' if ks == 0 else SM)
    def ex(d, r): return f'v_exp_f32 v{d}, v{r}'
    def cv(d, a_): return f'v_cvt_pk_bf16_f32 v{d}, v{a_}, v{a_+1}'
    ktr = [trd(AQK, L_KM, ks, h) for ks in range(4) for h in range(2)]
    lq = list(late_q)
    p(sx(0, 0)); p(lq.pop(0))
    p(sx(1, 0)); p(lq.pop(0))
    p(sx(0, 1))
    if lq: p(lq.pop(0))
    else: p(ev1[0]); p(ev1[1])
    p(sx(1, 1))
    p(f's_waitcnt lgkmcnt({5 if len(late_q) == 3 else 6})'); p('s_barrier'); stamp()
    p(sx(0, 2)); p(ktr[0]); p(ktr[1])
    p(sx(0, 3)); p(ktr[2]); p(ktr[3])
    p(sx(1, 2)); p(ktr[4]); p(ktr[5])
    p(sx(1, 3)); p(ktr[6]); p(ktr[7])
    p(rd128(ONES, L_ONE))
    p(sm(0)); p(ex(E0, SX0))
    p(sm(1)); p(ex(E0+1, SX0+1))
    p(sm(2)); p(ex(E0+2, SX0+2))
    p(sm(3)); p(ex(E0+3, SX0+3))
    p(cv(PX, E0)); p(ex(E0, SX1)); p(cv(PX+1, E0+2)); p(ex(E0+1, SX1+1))
    p(ex(E0+2, SX1+2)); p(ex(E0+3, SX1+3)); p(cv(PX+2, E0)); p(ex(E0, SM)); p(cv(PX+3, E0+2)); p(ex(E0+1, SM+1))
    if len(late_q) == 3: p(ev1[0]); p(ev1[1])
    stamp()
    p(ev1[2])
    p(mf32(LACC, ONES, PX, '0')); p(cv(PM, E0)); p(ev0[0])
    p(mf32(OA0, VX0, PX, '0')); p(ev0[1]); p(f'v_mov_b32 v{V1+1}, 0')
    p(mf32(OA1, VX1, PX, '0')); p(ev0[2]); p(f'v_mov_b32 v{V0+1}, 0')
    p(mf16(LACC, ONES, PM, LACC))
    p(f'v_mov_b64 {vr(AQK+2,2)}, 0\nv_mov_b64 {vr(AQK+4,2)}, 0')
    p(mf16(OA0, V0, PM, OA0))
    p(f'v_mov_b64 {vr(AQK+6,2)}, 0\nv_mov_b64 {vr(AQK+8,2)}, 0')
    p(mf16(OA1, V1, PM, OA1))
    p(f'v_rcp_f32 v{T2}, v{LACC}')
    p(f'v_mov_b64 {vr(AQK,2)}, 0')
    p(f'v_max_f32 v{E0}, v{T2}, v{LACC}')
    p(f'v_cmp_nge_f32 vcc, s{sLIM}, v{E0}')
    for r in range(4): p(f'v_mul_f32 v{OA0+r}, v{OA0+r}, v{T2}')
    fbr = f's_and_b64 s[34:35], vcc, s[{sVAL}:{sVAL+1}]\ns_cbranch_scc1 FB{tag}'
    p(f'FBC{tag}:')
    if not opt.get('fbl', 0): p(fbr)
    p(cv(OA0, OA0)); p(cv(OA0+1, OA0+2))
    p(f'ds_write_b64 v{AOW}, {vr(OA0,2)}')
    if opt.get('fbl', 0): p(fbr)
    for r in (0, 2): p(f'v_pk_mul_f32 {vr(OA1+r,2)}, {vr(OA1+r,2)}, {vr(T2,2)} op_sel_hi:[1,0]')
    p(cv(OA1, OA1)); p(cv(OA1+1, OA1+2))
    p(f'ds_write_b64 v{AOW}, {vr(OA1,2)} offset:256')
    slow(f'FB{tag}:')
    slow(f"""s_nop 7
    v_max3_f32 v{T2}, v{SX0}, v{SX0+1}, v{SX0+2}
    v_max3_f32 v{T2}, v{T2}, v{SX0+3}, v{SX1}
    v_max3_f32 v{T2}, v{T2}, v{SX1+1}, v{SX1+2}
    v_max3_f32 v{T2}, v{T2}, v{SX1+3}, v{SM}
    v_max_f32 v{T2}, v{T2}, v{SM+1}
    v_mov_b32 v{E0}, v{T2}
    v_permlane16_swap_b32 v{T2}, v{E0}
    v_max_f32 v{T2}, v{T2}, v{E0}
    v_mov_b32 v{E0}, v{T2}
    v_permlane32_swap_b32 v{T2}, v{E0}
    v_max_f32 v{T2}, v{T2}, v{E0}""")
    for k in range(5):
        for j in range(2): slow(f'v_sub_f32 v{E0+j}, v{S+2*k+j}, v{T2}')
        for j in range(2): slow(ex(E0+j, E0+j))
        slow(cv(PX + k if k < 4 else PM, E0))
    slow(mf32(LACC, ONES, PX, '0')); slow(mf32(OA0, VX0, PX, '0')); slow(mf32(OA1, VX1, PX, '0'))
    slow(mf16(LACC, ONES, PM, LACC)); slow(mf16(OA0, V0, PM, OA0)); slow(mf16(OA1, V1, PM, OA1))
    slow(f'v_rcp_f32 v{T2}, v{LACC}')
    for r in range(4): slow(f'v_mul_f32 v{OA0+r}, v{OA0+r}, v{T2}')
    slow(f's_mov_b64 vcc, 0\ns_nop 7\ns_branch FBC{tag}')
    stamp()
    acc = [AQK, AQK+4, AQK+8, AQK+12, MEMA+16, MEMA+20, MEMA+24, MEMA+28]
    land = [KW, KW+8, KW+16, KW+24, MEMA, QT+8, S, ACCV]
    for r in list(range(AQK+10, AQK+16, 2)) + list(range(MEMA+16, MEMA+32, 2)): p(f'v_mov_b64 {vr(r,2)}, 0')
    p(f'v_lshrrev_b32 v{T0}, 3, v{AL0}\nv_bitop3_b32 v{T0}, v{AL0}, v{T0}, 16 bitop3:0x78')
    w1 = []
    if swapa: land[6], land[7] = WV0, WV0 + 8
    for t in range(6 if swapa else 8): w1 += [rd128(land[t], wl(1, t)), rd128(land[t] + 4, wl(1, t) + 1024)]
    npre = opt.get('w1pre', 0)
    for x in w1[:npre]: p(x)
    p(f's_waitcnt lgkmcnt({npre})'); p('s_barrier')
    stamp()
    OP = QT
    p(f'ds_read_b128 {vr(OP,4)}, v{T0} offset:{L_O}\nds_read_b128 {vr(OP+4,4)}, v{T0} offset:{L_O + 1024}')
    nmid = opt.get('w1mid', 6)
    for x in w1[npre:npre+nmid]: p(x)
    w1 = w1[npre+nmid:]
    assert npre + nmid >= 7 or (swapa and npre + nmid >= 3)
    def pst(t): return f'buffer_store_dword v{acc[t]}, v{AP}, {SRD}, s{sPART+t} offen'
    book = [f's_add_u32 s{sSTEP}, s{sSTEP}, 1', f's_add_u32 s{sSLOT}, s{sSLOT}, 1', f's_cmp_eq_u32 s{sSLOT}, 3', f's_cselect_b32 s{sDLT}, {(-2*INBOX_SLOT) & 0xffffffff}, s{sC2}',
            f's_cselect_b32 s{sDM}, {(-16384) & 0xffffffff}, s{sC8}', f's_cselect_b32 s{sSLOT}, 0, s{sSLOT}']
    if w == 0: book += [f's_lshl_b32 s3, s{sH}, 8\ns_add_u32 s{sKB}, s3, s{sMEM}']
    book += [f's_add_u32 s{sMEM}, s{sMEM}, s{sDM}', f's_add_u32 s{sMEM2}, s{sMEM2}, s{sDM}']
    book += [f's_add_u32 s{sV}, s{sV}, {32*16384}']
    if w in (1, 2): book += [f's_add_u32 s{sPF}, s{sPF}, {32*16384}']
    es = [epi(acc[t]) for t in range(8)]
    for t in range(8):
        p(smf(acc[t], OP, wo0(t)))
        if w1: p(w1.pop(0))
        elif book: p(book.pop(0))
        if t >= 2: p(es[t-2][2])
        p(smf(acc[t], OP+4, vr(land[t], 8)))
        if t >= 2: p(pst(t-2))
        if w1 and (t < 1 or opt.get('w1both', 1)): p(w1.pop(0))
        elif book: p(book.pop(0))
        if t >= 1: p(es[t-1][0]); p(es[t-1][1])
    p(es[6][2]); p(pst(6))
    p(es[7][0]); p(es[7][1]); p(es[7][2]); p(pst(7))
    pastS7[0] = True
    stamp()
    if kpos == 'S7': p('\n'.join(kdm))
    if rpos == 'S7': p('\n'.join(rst))
    if full:
        if w == 0: book.append(f's_lshl_b32 s3, s{sSTEP}, 13\ns_add_u32 s{sKVM}, s3, s{sFCH}')
        if w == 3:
            p(f"""s_add_u32 s{sNEED}, s{sSTEP}, 2
            s_lshr_b32 s{sNEED}, s{sNEED}, 2
            s_add_u32 s{sNEED}, s{sNEED}, 1
            s_min_u32 s{sNEED}, s{sNEED}, 16""")
            slow(f'KVW:\nv_and_b32 v{T2}, 63, v{AP}')
            common.wait_flags(slow, 'KVL', T2, f's{sFKV}', f's{sNEED}', T3)
            slow('s_branch KVR')
    if w == 0: p(rd128(S, L_SEL)); p(f'ds_read_b32 v{S+4}, v{AP} offset:{L_DUM + 1024}\nv_mov_b64 {vr(S+8,2)}, 0\nv_mov_b64 {vr(S+10,2)}, 0')
    adv = [f's_add_u32 s{sV2}, s{sIN}, {w*2048}', f's_add_u32 s{sIN}, s{sIN}, s{sDLT}'] + ([f's_add_u32 s{sIN2}, s{sIN2}, s{sDLT}'] if w == 0 else [])
    late = (kdm if kpos == 'B4' or (w == 0 and kpos in ('mid', 'end')) else []) + ([] if rpos != 'B4' else rst)
    if w: adv += [f's_add_u32 s{sK}, s{sK}, {32*16384}', f's_add_u32 s{sK2}, s{sK2}, {32*16384}']
    adv = late + adv
    hk1 = []
    for t in range(8): hk1 += [f's_add_u32 s{sPART+t}, s{sPART+t}, s{sDLT}', f'v_mov_b64 {vr(AQK+2*t,2)}, 0']
    pre = [x for i in range(4) for x in wrd(i, 0, i).split('\n')] + xpre
    z2 = [f'v_mov_b64 {vr(AQK+r,2)}, 0' for r in range(16, 24, 2)] + [f'v_mov_b64 {vr(NEG,2)}, -1', f'v_mov_b64 {vr(NEG+2,2)}, -1']
    hk2 = []
    for i, x in enumerate(pre): hk2 += [x] + ([z2[i]] if i < len(z2) else [])
    for b_ in book: p(b_)
    if w == 0:
        R0, R = S + 4, S + 8
        def ibl(base): return [f'buffer_load_dwordx4 {vr(base+4*u,4)}, v{AL0}, {SRD}, s{sIN if u < 4 else sIN2} offen offset:{(u&3)*1024} sc1' for u in range(8)]
        def red(q, base): q(f'v_smfmac_f32_16x16x64_bf16 {vr(R,4)}, {vr(S,4)}, {vr(base, 8)}, v{S+4}')
        loads = ibl(MEMA)
        if rb2:
            pre_hk = opt.get('hkfirst', 0)
            if pre_hk: p('\n'.join(hk1))
            backoff(16*opt.get('dly', (0, 0, 0))[var] - 64*pre_hk, 'the other heads' + "'" + ' partial sums are still on their way to L2')
            p('\n'.join(loads))
            p('\n'.join(z2 if pre_hk else hk1 + z2))
            backoff(16*(opt['rb2'] - 1) + 64*pre_hk, 'second read of the inbox half a round trip behind the first')
            p('\n'.join('@junk ' + l for l in ibl(KW)))
        else:
            if var >= 1: p('\n'.join(hk1))
            if var >= 2: p('\n'.join(hk2))
            backoff(16*opt.get('dly', (0, 0, 0))[var], 'partial sums still on their way to L2')
            if opt.get('w0st'): sv = nst[0]; nst[0] = 1; stamp(); nst[0] = sv
            p('\n'.join(loads))
            if var < 1: p('\n'.join(hk1))
            if var < 2: p('\n'.join(hk2))
        p(f'RBR{tag}:')
        for u in range(4):
            red(p, MEMA + 8*u)
            if opt.get('w0st') and u in (0, 3): sv = nst[0]; nst[0] = 2 if u == 0 else 3; stamp(); nst[0] = sv
        p(f'v_cmp_u_f32 vcc, v{R}, v{R}')
        p(f'v_cvt_pk_bf16_f32 v{R}, v{R}, v{R+2}')
        p(f's_cbranch_vccnz RBC{tag}\nRBD{tag}:')
        if opt.get('b4') == 2: p('s_barrier')
        p(f'buffer_store_dword v{R}, v{T3}, {SRD}, s{sPUB} offen')
        if opt.get('b4') == 1: p(f's_barrier\nRBX{tag}:')
        if full: p(f'v_mov_b32 v{QT}, v{R}')
        if not rb2: p('\n'.join(adv0))
        if opt.get('hist'):
            p(f's_lshl_b32 s3, s{sSTEP}, 13\ns_add_u32 s3, s3, {WS_G}\ns_lshl_b32 s34, s{sH}, 8\ns_add_u32 s3, s3, s34\nbuffer_store_dword v{R}, v{T3}, {SRD}, s3 offen')
        zr = f'v_mov_b64 {vr(R,2)}, 0\nv_mov_b64 {vr(R+2,2)}, 0'
        if rb2 and opt.get('eb4', 1):
            slow(f'RBC{tag}:\ns_barrier')
            if not opt.get('rei', 0):
                slow(zr)
                for u in range(4):
                    slow(f's_waitcnt vmcnt({6 - 2*u})'); red(slow, KW + 8*u)
                slow(f'v_cmp_u_f32 vcc, v{R}, v{R}\nv_cvt_pk_bf16_f32 v{R}, v{R}, v{R+2}\ns_cbranch_vccz RBP{tag}')
                slow('\n'.join('@nowait ' + l for l in ibl(KW))); slow('s_sleep 1')
            slow(f'RB{tag}:')
            for cur, oth_ in ((KW, MEMA), (MEMA, KW)):
                slow('\n'.join('@nowait ' + l for l in ibl(oth_))); slow(zr)
                for u in range(4):
                    slow(f's_waitcnt vmcnt({14 - 2*u})'); red(slow, cur + 8*u)
                slow(f'v_cmp_u_f32 vcc, v{R}, v{R}\nv_cvt_pk_bf16_f32 v{R}, v{R}, v{R+2}\ns_cbranch_vccz RBP{tag}')
                for u in range(8): slow(mx(u == 0, cur + 4*u, 0)); slow(mx(u == 0, cur + 4*u, 1))
                slow(CMP); slow(f's_cbranch_vccz RBP{tag}')
                slow(TMO(sRB))
            slow(f's_branch RB{tag}\nRBP{tag}:\nbuffer_store_dword v{R}, v{T3}, {SRD}, s{sPUB} offen\ns_add_u32 s{sRB}, s{sRB}, 1\ns_branch RBX{tag}')
        else:
            slow(f'RBC{tag}:')
            if not rb2:
                for u in range(8): slow(mx(u == 0, MEMA + 4*u, 0)); slow(mx(u == 0, MEMA + 4*u, 1))
                slow(CMP); slow(f's_cbranch_vccz RBD{tag}')
            zr = f'v_mov_b64 {vr(R,2)}, 0\nv_mov_b64 {vr(R+2,2)}, 0'
            slow(f'RB{tag}:'); slow('\n'.join('@nowait ' + l for l in loads)); slow(TMO(sRB)); slow(zr)
            if rb2:
                for u in range(4):
                    slow(f's_waitcnt vmcnt({14 - 2*u})'); red(slow, KW + 8*u)
                slow(f'v_cmp_u_f32 vcc, v{R}, v{R}\nv_cvt_pk_bf16_f32 v{R}, v{R}, v{R+2}\ns_cbranch_vccz RBD{tag}')
                for u in range(8): slow(mx(u == 0, KW + 4*u, 0)); slow(mx(u == 0, KW + 4*u, 1))
                slow(CMP); slow(f's_cbranch_vccz RBD{tag}')
                slow('\n'.join('@nowait ' + l for l in ibl(KW))); slow(zr)
            slow(f's_branch RBR{tag}')
    else:
        p('\n'.join(hk1))
        if kpos == 'mid': p('\n'.join(kdm))
        p('\n'.join(hk2))
        if kpos == 'end':
            backoff(32*opt.get('kdl', 0), 'bulk copy goes behind the inbox reads')
            p('\n'.join(kdm))
        if full and w == 3: p(f's_waitcnt vmcnt({8 + 2*(kpos in ("S7", "mid", "end")) + 2*(rpos == "S7")})\nv_cmp_gt_u32 vcc, s{sNEED}, v{T3}\ns_cbranch_vccnz KVW\nKVR:')
        if opt.get('b4'): p('s_barrier')
        p('\n'.join(adv))
        slp = opt.get('slp3', opt.get('slp')) if w == 3 else opt.get('slp')
        if slp: p(f's_sleep {slp}')
        for _ in range(opt.get('slpn', 0)): p('s_nop 7')
    stamp()
    p(f's_cmp_lt_u32 s{sSTEP}, {nsteps}\ns_cbranch_scc1 HA{tag}')
    if True:
        n = len(fb)
        sets = (LB, S)
        slow(f'SB{tag}:')
        slow('@wait_reset')
        for i, t in enumerate(fb): slow('@nowait ' + gld(sets[0] + 4*i, t))
        slow(TMO(sRB)); slow('s_nop 15')
        slow(f'SL{tag}:')
        for k in range(2):
            for i, t in enumerate(fb): slow('@nowait ' + gld(sets[1-k] + 4*i, t))
            slow(f's_waitcnt vmcnt({n})')
            for i, t in enumerate(fb): slow('@nowait ' + mwr(sets[k] + 4*i, t))
            for i, t in enumerate(fb): slow('@nowait ' + mx(i == 0, sets[k] + 4*i, 0)); slow('@nowait ' + mx(i == 0, sets[k] + 4*i, 1))
            slow(CMP); slow(f's_cbranch_vccz SK{tag}')
        slow(TMO(sRB)); slow(f's_branch SL{tag}')
        slow(f'SK{tag}:'); slow(f's_waitcnt lgkmcnt(0) vmcnt(0)\ns_branch SBR{tag}')
    slow(f'CE{tag}:')
    if w == 0: slow(f's_mov_b32 s{sFCH}, s{sKVM}\ns_mov_b32 s{sKVM}, 0x7f000000')
    slow(''); slow('\n'.join(z2 if rb2 else hk2))
    if rb2: slow(f's_mov_b32 s{sDLT}, {(-2*INBOX_SLOT) & 0xffffffff}\ns_add_u32 s{sIN}, s{sIN}, {2*INBOX_SLOT}\ns_add_u32 s{sIN2}, s{sIN2}, {2*INBOX_SLOT}\ns_mov_b32 s{sKB}, s{sJIT}\ns_mov_b32 s{sJIT}, s{sPUB}')
    slow(f's_branch HA{tag}')
    fin = Prog()
    if var == 0:
        fin(f'FIN{w}:')
        if w == 0: fin(pub)
        if opt.get('wb') and w == 0:
            fin(f's_cmp_lg_u32 s{sH}, 0\ns_cbranch_scc1 FINX\nbuffer_wbl2 sc1\nFINX:' if opt['wb'] == 1 else 'buffer_wbl2 sc1')
        if opt.get('log') and w == 1:
            fin(f's_lshl_b32 s3, s{sH}, 8\ns_add_u32 s3, s3, {WS_DBG + 0x10000}\nbuffer_store_dword v{T3}, v{AP}, {SRD}, s3 offen')
        if opt.get('stamps') or opt.get('trace') or opt.get('first'):
            fin(f's_lshl_b32 s3, s{sH}, 2\ns_add_u32 s3, s3, {w}\ns_lshl_b32 s3, s3, 6\ns_add_u32 s3, s3, {WS_DBG + 0x20000}')
            for i in range(12): fin(f'v_mov_b32 v{i}, s{4+i}')
            fin('s_mov_b64 exec, 1')
            for i in range(3): fin(f'buffer_store_dwordx4 {vr(4*i,4)}, v{AL0}, {SRD}, s3 offen offset:{16*i}')
            fin('s_mov_b64 exec, -1')
        if opt.get('dbgstart'): fin(f's_mul_i32 s{sRETRY}, s77, 63')
        if opt.get('time'): fin(f's_mov_b32 s85, s{sRETRY}\ns_mov_b32 s86, s{sRB}')
        fin('s_branch L_DONE')
    return p.lines, slow.lines, fin.lines

DEF = dict(D=3, spl=(84, 96), pdc=(0, 96), dly=(4, 0, 0), hkfirst=1, slpmode=1, vb=(32, 32), rb2=4, w1pre=2, w1mid=4, swapa=1, sbw=9, sbb=14, b4=1, rpos='P1', gg=(1, 5), pg=(4, 5, 6, 8), kpos='end', kdl=7, rg=((3, 5), (0, 4), (10, 12), (9, 11)))
def role(out, opt):
    from main import stamp
    o2 = dict(DEF); o2.update(opt); opt = o2
    T = opt.get('time')
    p = Prog()
    p('R_CHAIN:')
    startup(p, D_CHINIT, 2 if opt.get('kpos') == 'P1' else 1, opt.get('early', 1), opt.get('presc', 0), opt.get('swapa', 0), opt.get('qs', 32), opt.get('qsw', 1))
    if not opt.get('early', 1): p('s_mov_b32 s77, 0')
    if T: stamp(p, 2)
    p(f's_cmp_eq_u32 s77, 1\ns_cbranch_scc1 C_go')
    common.wait_dbg(p, 'C_init', D_CHINIT, 32)
    common.wait_dbg(p, 'C_init2', D_INIT, 1)
    p(f'v_and_b32 v{T2}, 63, v{AP}')
    common.wait_flags(p, 'C_kv', T2, f's{sFKV}', 1, T0)
    p(f'''s_lshl_b32 s3, s{sW}, 11
    s_add_u32 m0, s3, {L_K}
    s_add_u32 s3, s3, s{sK}
    buffer_load_dwordx4 v{AL0}, {SRD}, s3 offen sc1 lds
    buffer_load_dwordx4 v{AL0}, {SRD}, s3 offen offset:1024 sc1 lds
    s_waitcnt vmcnt(0)
    C_go:
    s_waitcnt vmcnt(1)
    s_barrier
    s_add_u32 s{sK}, s{sK}, {32*16384}
    s_add_u32 s{sK2}, s{sK}, 4096''')
    if T: stamp(p, 3); p('s_memtime s[94:95]\ns_waitcnt lgkmcnt(0)\ns_mov_b32 s98, s94')
    if opt.get('stamps') or opt.get('trace') or opt.get('first'):
        for i in range(12): p(f's_mov_b32 s{4+i}, 0')
    vb = opt.get('vb', (12, 20))
    p(f"""s_cmp_eq_u32 s{sW}, 1
    s_cbranch_scc1 CE1
    s_cmp_eq_u32 s{sW}, 2
    s_cbranch_scc1 CE2
    s_cmp_eq_u32 s{sW}, 3
    s_cbranch_scc1 CE3""")
    if vb[0] >= 32: p('s_branch CE0v0')
    else: p(f's_cmp_lt_u32 s{sH}, {vb[0]}\ns_cbranch_scc1 CE0v0\ns_cmp_lt_u32 s{sH}, {vb[1]}\ns_cbranch_scc1 CE0v1\ns_branch CE0v2')
    o, st = process(p.lines); out += o + ['.p2align 7', 'C_code:']
    for w, var in ((0, 0), (0, 1), (0, 2), (1, 0), (2, 0), (3, 0)):
        if var and vb[0] >= 32: continue
        body, slow, fin = step(w, 63, opt, var)
        import re
        for pat in opt.get('drop', ()): body = [l for l in body if not re.search(pat, l)]
        o, st = loop(body, State())
        o = hoist_waits(o)
        o_, st = loop(o, State())
        assert o_ == o
        if T:
            q = Prog(); stamp(q, 4); q('s_memtime s[96:97]\ns_waitcnt lgkmcnt(0)\ns_sub_u32 s82, s96, s94' if not opt.get('dbgstart') else ''); o += process(q.lines)[0]
        out += ['.p2align 6'] + o + [f's_branch FIN{w}'] + process(slow)[0]
        if fin: out += process(['s_waitcnt lgkmcnt(0)', 's_nop 7'] + fin)[0][2:]
```

```python
from common import *
def mf32(d, a, b, c): return f'v_mfma_f32_16x16x32_bf16 {vr(d,4)}, {a if isinstance(a,str) else vr(a,4)}, {vr(b,4)}, {c if isinstance(c,str) else vr(c,4)}'
def mf16(d, a, b, c): return f'v_mfma_f32_16x16x16_bf16 {vr(d,4)}, {vr(a,2)}, {vr(b,2)}, {vr(c,4)}'
def cv(d, a): return f'v_cvt_pk_bf16_f32 v{d}, v{a}, v{a+1}'

def s3(out, opt):
    from main import stamp
    T = opt.get('time')
    AL, ATR, AVM, AW, ZERO, NINF, ONE1, IDX = 1, 2, 3, 4, 5, 6, 7, 16
    T0 = 8
    K, Q, V, MA, LA = 20, 52, 68, 84, 116
    KM, VM, AC = 124, 140, 148
    SX, SM, PX, PM, O = 164, 172, 176, 180, 184
    sH, sS, sKV, sQ, sV, sO, sFO, sM = 41, 42, 43, 44, 45, 46, 48, 49
    MASK = 52
    sSC, sL2E = 50, 51
    SRDW = 's[68:71]'
    L_M, L_I = 0, 8192
    p = Prog()
    p(f"""R_S3:
    s_barrier
    s_mov_b32 s{sH}, s{sRANK}
    s_sub_u32 s{sS}, s{sXCC}, 2
    s_mov_b32 s{sSC}, 0x3db504f3
    s_mov_b32 s{sL2E}, 0x3fb8aa3b
    v_and_b32 v8, 63, v0
    v_lshlrev_b32 v{AL}, 4, v8
    v_and_b32 v9, 15, v8               ; n
    v_lshrrev_b32 v10, 4, v8           ; g
    v_lshlrev_b32 v11, 1, v10
    v_xor_b32 v11, v11, v9
    v_lshlrev_b32 v11, 4, v11
    v_lshl_add_u32 v20, v10, 13, v11
    v_xor_b32 v21, 0x80, v20
    v_lshrrev_b32 v11, 2, v9           ; r
    v_and_b32 v12, 3, v9               ; c
    v_and_b32 v13, 1, v10
    v_lshl_add_u32 v13, v13, 2, v11
    v_lshlrev_b32 v13, 5, v13
    v_lshl_add_u32 v13, v12, 3, v13
    v_lshl_add_u32 v11, v10, 3, v11
    v_lshl_add_u32 v22, v11, 8, v13
    s_lshl_b32 s3, s{sW}, 6
    v_xor_b32 v22, s3, v22
    v_xor_b32 v23, 0x20, v22
    v_add_u32 v24, 0x10000, v22
    v_add_u32 v25, 0x10000, v23
    s_lshl_b32 s74, s{sW}, 12
    s_lshl_b32 s75, s{sH}, 8
    s_lshl_b32 s3, s{sW}, 17
    s_add_u32 s75, s75, s3
    s_mov_b32 s70, 0x400000
    s_mov_b32 s71, 0x20000
    """)
    def dma(c):
        if c % 8 == 0: p(f's_mov_b32 s68, s{10 + 2*(c >> 3)}\ns_mov_b32 s69, s{11 + 2*(c >> 3)}')
        for i in range(4):
            p(f's_add_u32 m0, s74, {(c & 7)*16384 + i*1024}\ns_add_u32 s3, s75, {(c & 7)*64*8192 + i*4*8192}\nbuffer_load_dwordx4 v{20 + (i >> 1)}, {SRDW}, s3 offen lds')
    for c in range(8): dma(c)
    p(f"""
    v_and_b32 v11, 1, v9
    v_mov_b32 v12, 0x4444
    v_mov_b32 v13, 0xeeee
    v_cmp_eq_u32 vcc, 1, v11
    v_cndmask_b32 v{IDX}, v12, v13, vcc
    v_lshrrev_b32 v11, 1, v10
    v_lshlrev_b32 v11, 4, v11
    v_and_b32 v12, 1, v10
    v_lshl_add_u32 v11, v12, 2, v11
    v_lshrrev_b32 v12, 2, v9
    v_add_u32 v11, v11, v12
    v_and_b32 v12, 3, v9
    v_lshlrev_b32 v12, 3, v12
    v_lshl_add_u32 v{ATR}, v11, 5, v12
    v_lshlrev_b32 v11, 5, v9
    v_lshl_add_u32 v11, v10, 3, v11
    s_lshl_b32 s3, s{sW}, 10
    v_add_u32 v{AW}, s3, v11
    s_lshr_b32 s3, s{sW}, 1
    s_lshl_b32 s3, s3, 11
    v_add_u32 v{AVM}, s3, v11
    s_and_b32 s3, s{sW}, 1
    s_lshl_b32 s3, s3, 4
    v_add_u32 v12, s3, v9
    v_lshlrev_b32 v11, 2, v10
    """)
    for i in range(8):
        p(f'v_cmp_le_u32 s[{MASK+2*i}:{MASK+2*i+1}], v11, v12\nv_add_u32 v11, {1 if i != 3 else 13}, v11')
    p(f"""v_mov_b32 v{ZERO}, 0
    v_mov_b32 v{NINF}, 0xff800000
    v_mov_b32 v{ONE1}, 1
    v_mov_b32 v{PM+1}, 0
    v_lshlrev_b32 v14, 2, v9
    v_and_b32 v15, 7, v8
    v_lshlrev_b32 v15, 2, v15""")
    for d in range(4): p(f'v_mov_b32 v{VM+2*d+1}, 0')
    for c in range(16):
        p(f's_waitcnt vmcnt({4*min(7, 15 - c)})\ns_barrier')
        t = c & 7
        for u in range(2):
            for q, o in enumerate((0, 1024, 8192, 9216)):
                d = (c >> 3)*128 + (u*8 + t)*8 + 2*q
                p(f'ds_read_b64_tr_b16 a[{d}:{d+1}], v{22 + u + 2*(t >> 2)} offset:{o + (t & 3)*16384}')
        p('s_waitcnt lgkmcnt(0)\ns_barrier')
        if c + 8 < 16: dma(c + 8)
    p(f's_lshl_b32 s74, s{sH}, 6\ns_add_u32 s74, s74, {F_KV}\ns_lshl_b32 s75, s{sH}, 5\ns_add_u32 s75, s75, {F_Q}')
    wait_flags(p, 'S3_kv', 14, 's74', 16, 13, sleep=4)
    wait_flags(p, 'S3_q', 15, 's75', 16, 13, sleep=4)
    wait_dbg(p, 'S3_ci', D_CHINIT, 32, vt=12)
    if T: stamp(p, 5)
    o, st = process(p.lines); out += o
    b = Prog()
    b(f"""S3_L:
    s_lshl_b32 s3, s{sS}, 5
    s_add_u32 s3, s3, s{sH}
    s_lshl_b32 s{sKV}, s3, 14
    s_add_u32 s{sKV}, s{sKV}, {WS_KV}
    s_lshr_b32 s34, s{sW}, 1
    s_lshl_b32 s35, s34, 12
    s_add_u32 s{sV}, s{sKV}, s35
    s_add_u32 s{sV}, s{sV}, 8192
    s_lshl_b32 s{sQ}, s3, 13
    s_and_b32 s35, s{sW}, 1
    s_lshl_b32 s74, s35, 12
    s_add_u32 s{sQ}, s{sQ}, s74
    s_add_u32 s{sQ}, s{sQ}, {WS_Q}
    s_lshl_b32 s{sFO}, s3, 2
    s_add_u32 s{sFO}, s{sFO}, {F_O}
    s_lshl_b32 s3, s{sS}, 1
    s_add_u32 s3, s3, s35
    s_lshl_b32 s3, s3, 5
    s_add_u32 s3, s3, s{sH}
    s_lshl_b32 s{sO}, s3, 12
    s_lshl_b32 s34, s34, 11
    s_add_u32 s{sO}, s{sO}, s34
    s_add_u32 s{sO}, s{sO}, {WS_O}
    s_lshl_b32 s{sM}, s{sS}, 13
    s_lshl_b32 s3, s{sW}, 11
    s_add_u32 s{sM}, s{sM}, s3
    s_add_u32 s{sM}, s{sM}, {WS_MEMH}
    v_add_u32 v{T0+7}, s3, v{AL}""")
    def ld(dst, sb, n):
        for f in range(n):
            if f == 4: b(f's_add_u32 s{sb}, s{sb}, 4096')
            b(f'buffer_load_dwordx4 {vr(dst+4*f,4)}, v{AL}, {SRD}, s{sb} offen offset:{(f&3)*1024} sc1')
    ld(Q, sQ, 4); ld(K, sKV, 8); ld(V, sV, 4)
    for r in range(0, 16, 2): b(f'v_mov_b64 {vr(AC+r,2)}, 0')
    for kt in range(2):
        for ks in range(4): b(mf32(SX + 4*kt, K + 16*kt + 4*ks, Q + 4*ks, '0' if ks == 0 else SX + 4*kt))
    def scale(a_):
        rnd2(b, a_, a_ + 1)
        b(f'v_mul_f32 v{a_}, s{sSC}, v{a_}\nv_mul_f32 v{a_+1}, s{sSC}, v{a_+1}')
        rnd2(b, a_, a_ + 1)
    for a_ in range(SX, SX + 8, 2): scale(a_)
    for r in range(8): b(f'v_cndmask_b32 v{SX+r}, v{NINF}, v{SX+r}, s[{MASK+2*r}:{MASK+2*r+1}]')
    b(f"""v_max3_f32 v{T0}, v{SX}, v{SX+1}, v{SX+2}
    v_max3_f32 v{T0}, v{T0}, v{SX+3}, v{SX+4}
    v_max3_f32 v{T0}, v{T0}, v{SX+5}, v{SX+6}
    v_max_f32 v{T0}, v{T0}, v{SX+7}
    s_mov_b32 s3, 0
    s_branch S3_m_go
    S3_m:
    s_sleep {opt.get('s3slp', 1)}
    S3_m_go:
    buffer_load_dwordx4 {vr(LA,4)}, v{AL}, {SRD}, s{sM} offen sc1
    buffer_load_dwordx4 {vr(LA+4,4)}, v{AL}, {SRD}, s{sM} offen offset:1024 sc1
    {tmo(3)}
    v_max3_u32 v{T0+1}, v{LA}, v{LA+1}, v{LA+2}
    v_max3_u32 v{T0+1}, v{T0+1}, v{LA+3}, v{LA+4}
    v_max3_u32 v{T0+1}, v{T0+1}, v{LA+5}, v{LA+6}
    v_max_u32 v{T0+1}, v{T0+1}, v{LA+7}
    v_cmp_eq_u32 vcc, -1, v{T0+1}
    s_cbranch_vccnz S3_m""")
    if opt.get('tt'): stamp(b, 2)
    b(f"""ds_write_b128 v{T0+7}, {vr(LA,4)} offset:{L_M}
    ds_write_b128 v{T0+7}, {vr(LA+4,4)} offset:{L_M + 1024}
    s_waitcnt lgkmcnt(0)
    s_barrier""")
    for t in range(8): b(f'ds_read_b128 {vr(MA+4*t,4)}, v{AL} offset:{L_M + t*1024}')
    def smf(j, t): return f'v_smfmac_f32_16x16x64_bf16 {vr(AC+4*j,4)}, {vr(MA+4*t,4)}, {ar((j*8+t)*8, 8)}, v{IDX}'
    def epi(j):
        a_ = AC + 4*j
        return [f'v_add_f32 v{a_}, v{a_}, v{a_+1}', f'v_add_f32 v{a_+2}, v{a_+2}, v{a_+3}', f'v_cvt_pk_bf16_f32 v{a_}, v{a_}, v{a_+2}',
                f'ds_write_b32 v{AW}, v{a_} offset:{L_I + (j & 1)*512 + (j >> 1)*4}']
    pend = []
    for j in range(4):
        for t in range(8):
            b(smf(j, t))
            if t >= 1 and pend: b(pend.pop(0))
        pend = epi(j)
    for x in pend: b(x)
    b('s_waitcnt lgkmcnt(0)\ns_barrier')
    if opt.get('tt'): stamp(b, 3)
    for ks in range(4):
        for h in range(2): b(f'ds_read_b64_tr_b16 {vr(KM + 4*ks + 2*h, 2)}, v{ATR} offset:{L_I + ks*1024 + h*256}')
    for d in range(4): b(f'ds_read_b32 v{VM+2*d}, v{AVM} offset:{L_I + d*512 + 4}')
    for ks in range(4): b(mf32(SM, KM + 4*ks, Q + 4*ks, '0' if ks == 0 else SM))
    scale(SM)
    b(f'v_max3_f32 v{T0}, v{T0}, v{SM}, v{SM+1}')
    def xlane(op):
        for sw in ('16', '32'):
            b(f'v_mov_b32 v{T0+2}, v{T0}\nv_permlane{sw}_swap_b32 v{T0}, v{T0+2}\n{op} v{T0}, v{T0}, v{T0+2}')
    xlane('v_max_f32')
    regs = [SM, SM+1] + list(range(SX, SX+8))
    b(f'v_mul_f32 v{T0}, s{sL2E}, v{T0}')
    for r in regs: b(f'v_fma_f32 v{r}, v{r}, s{sL2E}, -v{T0}')
    for r in regs: b(f'v_exp_f32 v{r}, v{r}')
    b(f'v_add_f32 v{T0}, v{regs[0]}, v{regs[1]}')
    for r in regs[2:]: b(f'v_add_f32 v{T0}, v{T0}, v{r}')
    xlane('v_add_f32')
    b(f'v_rcp_f32 v{T0}, v{T0}')
    for r in regs: b(f'v_mul_f32 v{r}, v{r}, v{T0}')
    for i in range(4): b(cv(PX+i, SX+2*i))
    b(cv(PM, SM))
    for d in range(4): b(mf32(O + 4*d, V + 4*d, PX, '0'))
    for d in range(4): b(mf16(O + 4*d, VM + 2*d, PM, O + 4*d))
    for kk in range(2):
        A = O + 8*kk
        for i in range(4): b(cv(A+i, A+2*i))
        b(f'buffer_store_dwordx4 {vr(A,4)}, v{AL}, {SRD}, s{sO} offen offset:{kk*1024} sc1')
    if opt.get('tt'): stamp(b, 4)
    b(f's_waitcnt vmcnt(0)\ns_barrier\ns_cmp_lg_u32 s{sW}, 0\ns_cbranch_scc1 S3_nf')
    if opt.get('tt'): stamp(b, 5)
    set_flag(b, ONE1, f's{sFO}', ZERO)
    b(f'S3_nf:\ns_add_u32 s{sS}, s{sS}, 2\ns_cmp_lt_u32 s{sS}, 64\ns_cbranch_scc1 S3_L')
    o, st = loop(b.lines, st); out += ['.p2align 6'] + o + ['s_branch L_DONE']

def s4(out, opt):
    from main import stamp
    T = opt.get('time')
    AL, AF, AX, AG, ZERO, AR = 1, 2, 3, 4, 5, 6
    X, G, ACC, PR, B = 8, 10, 12, 24, 64
    sCS, sQT, sS, sO, sFO, sX, sGo, sFG, sLD, sPB = 41, 42, 43, 44, 45, 46, 48, 49, 66, 50
    SRDW, SRDX, SRDO = 's[68:71]', 's[52:55]', 's[56:59]'
    L_P = 131072
    p = Prog()
    p(f'''R_S4:
    s_barrier
    s_and_b32 s{sCS}, s{sRANK}, 15
    s_lshr_b32 s{sQT}, s{sRANK}, 4
    s_sub_u32 s{sS}, s{sXCC}, 4
    s_mov_b32 s68, s14
    s_mov_b32 s69, s15
    s_mov_b32 s70, 0x400000
    s_mov_b32 s71, 0x20000
    s_mov_b32 s52, s4
    s_mov_b32 s53, s5
    s_mov_b32 s54, 0x200000
    s_mov_b32 s55, 0x20000
    s_mov_b32 s56, s28
    s_mov_b32 s57, s29
    s_mov_b32 s58, 0x200000
    s_mov_b32 s59, 0x20000
    s_lshl_b32 s{sLD}, s{sW}, 15
    s_lshl_b32 s67, s{sW}, 20
    s_lshl_b32 s3, s{sCS}, 6
    s_add_u32 s67, s67, s3
    v_and_b32 v8, 63, v0
    v_lshlrev_b32 v{AL}, 4, v8
    v_lshrrev_b32 v9, 2, v8
    v_and_b32 v10, 3, v8
    v_lshlrev_b32 v10, 4, v10
    v_lshl_add_u32 v20, v9, 10, v10
    v_and_b32 v9, 15, v8                  ; n
    v_lshrrev_b32 v10, 4, v8              ; g
    v_lshrrev_b32 v11, 2, v9
    v_lshl_add_u32 v11, v10, 2, v11       ; row = 4g + r
    v_and_b32 v12, 3, v9
    v_lshlrev_b32 v12, 3, v12
    v_lshl_add_u32 v11, v11, 6, v12
    v_add_u32 v21, s{sLD}, v11
    ''')
    def dma(c):
        for i in range(16):
            p(f's_add_u32 m0, s{sLD}, {(c & 1)*16384 + i*1024}\ns_add_u32 s3, s67, {(c*256 + i*16)*1024}\nbuffer_load_dwordx4 v20, {SRDW}, s3 offen lds')
    dma(0); dma(1)
    p(f'''
    v_and_b32 v11, 7, v8
    v_lshlrev_b32 v{AF}, 2, v11
    v_mov_b32 v{ZERO}, 0
    s_and_b32 s3, s{sW}, 1
    s_lshl_b32 s34, s{sCS}, 1
    s_add_u32 s34, s34, s3
    s_lshl_b32 s35, s{sQT}, 4
    v_add_u32 v11, s35, v9
    v_lshlrev_b32 v12, 10, v11
    v_lshl_add_u32 v12, v10, 3, v12
    s_lshl_b32 s60, s34, 5
    v_add_u32 v{AX}, s60, v12
    v_and_b32 v12, 1, v10
    v_lshl_add_u32 v12, v12, 5, v11
    v_lshlrev_b32 v12, 4, v12
    v_lshrrev_b32 v13, 1, v10
    v_lshl_add_u32 v12, v13, 3, v12
    s_lshl_b32 s60, s34, 10
    v_add_u32 v{AG}, s60, v12
    s_lshl_b32 s3, s3, 10
    s_add_u32 s3, s3, {L_P}
    v_add_u32 v{AR}, s3, v{AL}
    s_lshl_b32 s3, s{sW}, 11
    s_add_u32 s3, s3, {L_P}
    v_add_u32 v7, s3, v{AL}
    ''')
    for c in range(4):
        p(f's_waitcnt vmcnt({16 if c < 3 else 0})')
        for ct in range(2):
            for jj in range(8):
                for h in range(2):
                    d = (ct*32 + 8*c + jj)*4 + 2*h
                    p(f'ds_read_b64_tr_b16 a[{d}:{d+1}], v21 offset:{(c & 1)*16384 + (32*jj + 16*h)*64 + ct*32}')
                if jj & 3 == 3: p('s_waitcnt lgkmcnt(0)')
        if c + 2 < 4: dma(c + 2)
    if T: stamp(p, 5)
    o, st = process(p.lines); out += o
    sGR, sCNT, sI, sT0 = 60, 61, 62, 63
    AS, AG32 = 20, 21
    L_ST = 147456
    def finish(q, sp, x, g, t, soff):
        for i in range(2):
            q(f"""v_lshlrev_b32 v{t}, 16, v{sp+i}
            v_and_b32 v{t+1}, 0xffff0000, v{sp+i}
            v_lshlrev_b32 v{t+2}, 16, v{g+i}
            v_and_b32 v{t+3}, 0xffff0000, v{g+i}
            v_mul_f32 v{t}, v{t}, v{t+2}
            v_mul_f32 v{t+1}, v{t+1}, v{t+3}
            v_cvt_pk_bf16_f32 v{t+1}, v{t}, v{t+1}
            v_lshlrev_b32 v{t}, 16, v{t+1}
            v_and_b32 v{t+1}, 0xffff0000, v{t+1}
            v_lshlrev_b32 v{t+2}, 16, v{x+i}
            v_and_b32 v{t+3}, 0xffff0000, v{x+i}
            v_add_f32 v{t}, v{t}, v{t+2}
            v_add_f32 v{t+1}, v{t+1}, v{t+3}
            v_cvt_pk_bf16_f32 v{sp+i}, v{t}, v{t+1}""")
        q(f"buffer_store_dwordx2 {vr(sp,2)}, v{AX}, {SRDO}, {soff} offen {opt.get('omod', 'nt')}")
    def flush(q, lab):
        q(f's_mov_b32 s{sGR}, 1\ns_mov_b32 s{sI}, 0\ns_cmp_eq_u32 s{sCNT}, 0\ns_cbranch_scc1 {lab}_e\n{lab}:')
        for k in range(4):
            q(f"""s_add_u32 s3, s{sI}, {k}
            s_sub_u32 s34, s{sCNT}, 1
            s_min_u32 s3, s3, s34
            s_lshl_b32 s34, s3, 10
            v_add_u32 v{40+k}, s34, v{AS}
            ds_read_b64 {vr(B + 8*k + 4, 2)}, v{40+k}
            s_lshl_b32 s3, s3, 2
            s_add_u32 s3, s3, s{sT0}
            s_lshl_b32 s{74+k}, s3, 15
            s_add_u32 s34, s{74+k}, {WS_G}
            buffer_load_dwordx2 {vr(B + 8*k, 2)}, v{AX}, {SRDX}, s{74+k} offen
            buffer_load_dwordx2 {vr(B + 8*k + 2, 2)}, v{AG}, {SRD}, s34 offen sc1""")
        for k in range(4): finish(q, B + 8*k + 4, B + 8*k, B + 8*k + 2, PR + 4, f's{74+k}')
        q(f's_add_u32 s{sI}, s{sI}, 4\ns_cmp_lt_u32 s{sI}, s{sCNT}\ns_cbranch_scc1 {lab}\ns_waitcnt vmcnt(0)\n{lab}_e:')
    p = Prog()
    p(f"""s_mov_b32 s{sGR}, 0
    s_mov_b32 s{sCNT}, 0
    s_mov_b32 s{sT0}, s{sS}
    s_mov_b32 s{sFG}, {F_G}
    v_and_b32 v14, 63, v0
    v_and_b32 v15, 31, v14
    v_lshlrev_b32 v{AG32}, 2, v15
    s_and_b32 s3, s{sW}, 1
    s_lshl_b32 s3, s3, 9
    s_add_u32 s3, s3, {L_ST}
    v_lshl_add_u32 v{AS}, v14, 3, s3""")
    o, st = process(p.lines, carry=st); out += o
    b = Prog()
    b(f"""S4_L:
    s_lshl_b32 s3, s{sS}, 1
    s_add_u32 s3, s3, s{sQT}
    s_lshl_b32 s3, s3, 2
    s_add_u32 s3, s3, s{sW}
    s_lshl_b32 s{sO}, s3, 15
    s_add_u32 s{sO}, s{sO}, {WS_O}
    s_lshl_b32 s{sFO}, s{sS}, 7
    s_lshl_b32 s3, s{sW}, 5
    s_add_u32 s{sFO}, s{sFO}, s3
    s_add_u32 s{sFO}, s{sFO}, {F_O}
    s_lshl_b32 s{sX}, s{sS}, 15
    s_add_u32 s{sGo}, s{sX}, {WS_G}
    s_cmp_ge_u32 s{sW}, 2
    s_cbranch_scc1 S4_nog
    s_cmp_eq_u32 s{sGR}, 1
    s_cbranch_scc1 S4_gok
    buffer_load_dword v14, v{AG32}, {SRD}, s{sFG} offen sc1
    s_waitcnt vmcnt(0)
    v_cmp_gt_u32 vcc, 1, v14
    s_cbranch_vccnz S4_nog""")
    flush(b, 'S4_f1')
    b(f"""S4_gok:
    buffer_load_dwordx2 {vr(X,2)}, v{AX}, {SRDX}, s{sX} offen
    buffer_load_dwordx2 {vr(G,2)}, v{AG}, {SRD}, s{sGo} offen sc1
    S4_nog:""")
    wait_flags(b, 'S4_o', AF, f's{sFO}', 1, 14, sleep=opt.get('s4slp', 2))
    if opt.get('tt'): stamp(b, 2)
    for j in range(32):
        b(f'buffer_load_dwordx4 {vr(B+4*j,4)}, v{AL}, {SRD}, s{sO} offen offset:{(j&3)*1024} sc1')
        if j & 3 == 3: b(f's_add_u32 s{sO}, s{sO}, 4096')
    for j in range(32):
        for ct in range(2): b(mf32(ACC + 4*ct, ar((ct*32 + j)*4, 4), B + 4*j, '0' if j == 0 else ACC + 4*ct))
    if opt.get('tt'): stamp(b, 3)
    b(f"""ds_write_b128 v7, {vr(ACC,4)}
    ds_write_b128 v7, {vr(ACC+4,4)} offset:1024
    s_waitcnt lgkmcnt(0)
    s_barrier
    s_cmp_ge_u32 s{sW}, 2
    s_cbranch_scc1 S4_next""")
    for w_ in range(4): b(f'ds_read_b128 {vr(PR+4*w_,4)}, v{AR} offset:{w_*2048}')
    for r in range(4):
        b(f'v_add_f32 v{PR+r}, v{PR+r}, v{PR+4+r}\nv_add_f32 v{PR+8+r}, v{PR+8+r}, v{PR+12+r}\nv_add_f32 v{PR+r}, v{PR+r}, v{PR+8+r}')
    b(f"""v_cvt_pk_bf16_f32 v{PR+12}, v{PR}, v{PR+1}
    v_cvt_pk_bf16_f32 v{PR+13}, v{PR+2}, v{PR+3}
    s_cmp_eq_u32 s{sGR}, 1
    s_cbranch_scc1 S4_fin
    s_lshl_b32 s3, s{sCNT}, 10
    v_add_u32 v14, s3, v{AS}
    ds_write_b64 v14, {vr(PR+12,2)}
    s_add_u32 s{sCNT}, s{sCNT}, 1
    s_waitcnt lgkmcnt(0)
    s_branch S4_next
    S4_fin:""")
    finish(b, PR + 12, X, G, PR + 4, f's{sX}')
    b(f"""S4_next:
    v_xor_b32 v7, 0x2000, v7
    v_xor_b32 v{AR}, 0x2000, v{AR}
    s_add_u32 s{sS}, s{sS}, 4
    s_cmp_lt_u32 s{sS}, 64
    s_cbranch_scc1 S4_L""")
    o, st = loop(b.lines, st); out += ['.p2align 6'] + o
    e = Prog()
    e(f's_cmp_ge_u32 s{sW}, 2\ns_cbranch_scc1 L_DONE\ns_cmp_eq_u32 s{sGR}, 1\ns_cbranch_scc1 L_DONE')
    wait_flags(e, 'S4_g', AG32, f's{sFG}', 1, 14, sleep=4)
    flush(e, 'S4_f2')
    e('s_branch L_DONE')
    out += process(e.lines)[0]
```

```python
from common import *
def mf32(d, a, b, c): return f'v_mfma_f32_16x16x32_bf16 {vr(d,4)}, {a if isinstance(a,str) else vr(a,4)}, {vr(b,4)}, {c if isinstance(c,str) else vr(c,4)}'
def mf16(d, a, b, c): return f'v_mfma_f32_16x16x16_bf16 {vr(d,4)}, {vr(a,2)}, {vr(b,2)}, {vr(c,4)}'
def cv(d, a): return f'v_cvt_pk_bf16_f32 v{d}, v{a}, v{a+1}'

def s3(out, opt):
    from main import stamp
    T = opt.get('time')
    AL, ATR, AVM, AW, ZERO, NINF, ONE1, IDX = 1, 2, 3, 4, 5, 6, 7, 16
    T0 = 8
    K, Q, V, MA, LA = 20, 52, 68, 84, 116
    KM, VM, AC = 124, 140, 148
    SX, SM, PX, PM, O = 164, 172, 176, 180, 184
    sH, sS, sKV, sQ, sV, sO, sFO, sM = 41, 42, 43, 44, 45, 46, 48, 49
    MASK = 52
    sSC, sL2E = 50, 51
    SRDW = 's[68:71]'
    L_M, L_I = 0, 8192
    p = Prog()
    p(f"""R_S3:
    s_barrier
    s_mov_b32 s{sH}, s{sRANK}
    s_sub_u32 s{sS}, s{sXCC}, 2
    s_mov_b32 s{sSC}, 0x3db504f3
    s_mov_b32 s{sL2E}, 0x3fb8aa3b
    v_and_b32 v8, 63, v0
    v_lshlrev_b32 v{AL}, 4, v8
    v_and_b32 v9, 15, v8               ; n
    v_lshrrev_b32 v10, 4, v8           ; g
    v_lshlrev_b32 v11, 1, v10
    v_xor_b32 v11, v11, v9
    v_lshlrev_b32 v11, 4, v11
    v_lshl_add_u32 v20, v10, 13, v11
    v_xor_b32 v21, 0x80, v20
    v_lshrrev_b32 v11, 2, v9           ; r
    v_and_b32 v12, 3, v9               ; c
    v_and_b32 v13, 1, v10
    v_lshl_add_u32 v13, v13, 2, v11
    v_lshlrev_b32 v13, 5, v13
    v_lshl_add_u32 v13, v12, 3, v13
    v_lshl_add_u32 v11, v10, 3, v11
    v_lshl_add_u32 v22, v11, 8, v13
    s_lshl_b32 s3, s{sW}, 6
    v_xor_b32 v22, s3, v22
    v_xor_b32 v23, 0x20, v22
    v_add_u32 v24, 0x10000, v22
    v_add_u32 v25, 0x10000, v23
    s_lshl_b32 s74, s{sW}, 12
    s_lshl_b32 s75, s{sH}, 8
    s_lshl_b32 s3, s{sW}, 17
    s_add_u32 s75, s75, s3
    s_mov_b32 s70, 0x400000
    s_mov_b32 s71, 0x20000
    """)
    def dma(c):
        if c % 8 == 0: p(f's_mov_b32 s68, s{10 + 2*(c >> 3)}\ns_mov_b32 s69, s{11 + 2*(c >> 3)}')
        for i in range(4):
            p(f's_add_u32 m0, s74, {(c & 7)*16384 + i*1024}\ns_add_u32 s3, s75, {(c & 7)*64*8192 + i*4*8192}\nbuffer_load_dwordx4 v{20 + (i >> 1)}, {SRDW}, s3 offen lds')
    for c in range(8): dma(c)
    p(f"""
    v_and_b32 v11, 1, v9
    v_mov_b32 v12, 0x4444
    v_mov_b32 v13, 0xeeee
    v_cmp_eq_u32 vcc, 1, v11
    v_cndmask_b32 v{IDX}, v12, v13, vcc
    v_lshrrev_b32 v11, 1, v10
    v_lshlrev_b32 v11, 4, v11
    v_and_b32 v12, 1, v10
    v_lshl_add_u32 v11, v12, 2, v11
    v_lshrrev_b32 v12, 2, v9
    v_add_u32 v11, v11, v12
    v_and_b32 v12, 3, v9
    v_lshlrev_b32 v12, 3, v12
    v_lshl_add_u32 v{ATR}, v11, 5, v12
    v_lshlrev_b32 v11, 5, v9
    v_lshl_add_u32 v11, v10, 3, v11
    s_lshl_b32 s3, s{sW}, 10
    v_add_u32 v{AW}, s3, v11
    s_lshr_b32 s3, s{sW}, 1
    s_lshl_b32 s3, s3, 11
    v_add_u32 v{AVM}, s3, v11
    s_and_b32 s3, s{sW}, 1
    s_lshl_b32 s3, s3, 4
    v_add_u32 v12, s3, v9
    v_lshlrev_b32 v11, 2, v10
    """)
    for i in range(8):
        p(f'v_cmp_le_u32 s[{MASK+2*i}:{MASK+2*i+1}], v11, v12\nv_add_u32 v11, {1 if i != 3 else 13}, v11')
    p(f"""v_mov_b32 v{ZERO}, 0
    v_mov_b32 v{NINF}, 0xff800000
    v_mov_b32 v{ONE1}, 1
    v_mov_b32 v{PM+1}, 0
    v_lshlrev_b32 v14, 2, v9
    v_and_b32 v15, 7, v8
    v_lshlrev_b32 v15, 2, v15""")
    for d in range(4): p(f'v_mov_b32 v{VM+2*d+1}, 0')
    for c in range(16):
        p(f's_waitcnt vmcnt({4*min(7, 15 - c)})\ns_barrier')
        t = c & 7
        for u in range(2):
            for q, o in enumerate((0, 1024, 8192, 9216)):
                d = (c >> 3)*128 + (u*8 + t)*8 + 2*q
                p(f'ds_read_b64_tr_b16 a[{d}:{d+1}], v{22 + u + 2*(t >> 2)} offset:{o + (t & 3)*16384}')
        p('s_waitcnt lgkmcnt(0)\ns_barrier')
        if c + 8 < 16: dma(c + 8)
    p(f's_lshl_b32 s74, s{sH}, 6\ns_add_u32 s74, s74, {F_KV}\ns_lshl_b32 s75, s{sH}, 5\ns_add_u32 s75, s75, {F_Q}')
    wait_flags(p, 'S3_kv', 14, 's74', 16, 13, sleep=4)
    wait_flags(p, 'S3_q', 15, 's75', 16, 13, sleep=4)
    wait_dbg(p, 'S3_ci', D_CHINIT, 32, vt=12)
    if T: stamp(p, 5)
    o, st = process(p.lines); out += o
    b = Prog()
    b(f"""S3_L:
    s_lshl_b32 s3, s{sS}, 5
    s_add_u32 s3, s3, s{sH}
    s_lshl_b32 s{sKV}, s3, 14
    s_add_u32 s{sKV}, s{sKV}, {WS_KV}
    s_lshr_b32 s34, s{sW}, 1
    s_lshl_b32 s35, s34, 12
    s_add_u32 s{sV}, s{sKV}, s35
    s_add_u32 s{sV}, s{sV}, 8192
    s_lshl_b32 s{sQ}, s3, 13
    s_and_b32 s35, s{sW}, 1
    s_lshl_b32 s74, s35, 12
    s_add_u32 s{sQ}, s{sQ}, s74
    s_add_u32 s{sQ}, s{sQ}, {WS_Q}
    s_lshl_b32 s{sFO}, s3, 2
    s_add_u32 s{sFO}, s{sFO}, {F_O}
    s_lshl_b32 s3, s{sS}, 1
    s_add_u32 s3, s3, s35
    s_lshl_b32 s3, s3, 5
    s_add_u32 s3, s3, s{sH}
    s_lshl_b32 s{sO}, s3, 12
    s_lshl_b32 s34, s34, 11
    s_add_u32 s{sO}, s{sO}, s34
    s_add_u32 s{sO}, s{sO}, {WS_O}
    s_lshl_b32 s{sM}, s{sS}, 13
    s_lshl_b32 s3, s{sW}, 11
    s_add_u32 s{sM}, s{sM}, s3
    s_add_u32 s{sM}, s{sM}, {WS_MEMH}
    v_add_u32 v{T0+7}, s3, v{AL}""")
    def ld(dst, sb, n):
        for f in range(n):
            if f == 4: b(f's_add_u32 s{sb}, s{sb}, 4096')
            b(f'buffer_load_dwordx4 {vr(dst+4*f,4)}, v{AL}, {SRD}, s{sb} offen offset:{(f&3)*1024} sc1')
    ld(Q, sQ, 4); ld(K, sKV, 8); ld(V, sV, 4)
    for r in range(0, 16, 2): b(f'v_mov_b64 {vr(AC+r,2)}, 0')
    for kt in range(2):
        for ks in range(4): b(mf32(SX + 4*kt, K + 16*kt + 4*ks, Q + 4*ks, '0' if ks == 0 else SX + 4*kt))
    def scale(a_):
        rnd2(b, a_, a_ + 1)
        b(f'v_mul_f32 v{a_}, s{sSC}, v{a_}\nv_mul_f32 v{a_+1}, s{sSC}, v{a_+1}')
        rnd2(b, a_, a_ + 1)
    for a_ in range(SX, SX + 8, 2): scale(a_)
    for r in range(8): b(f'v_cndmask_b32 v{SX+r}, v{NINF}, v{SX+r}, s[{MASK+2*r}:{MASK+2*r+1}]')
    b(f"""v_max3_f32 v{T0}, v{SX}, v{SX+1}, v{SX+2}
    v_max3_f32 v{T0}, v{T0}, v{SX+3}, v{SX+4}
    v_max3_f32 v{T0}, v{T0}, v{SX+5}, v{SX+6}
    v_max_f32 v{T0}, v{T0}, v{SX+7}
    s_mov_b32 s3, 0
    s_branch S3_m_go
    S3_m:
    s_sleep {opt.get('s3slp', 1)}
    S3_m_go:
    buffer_load_dwordx4 {vr(LA,4)}, v{AL}, {SRD}, s{sM} offen sc1
    buffer_load_dwordx4 {vr(LA+4,4)}, v{AL}, {SRD}, s{sM} offen offset:1024 sc1
    {tmo(3)}
    v_max3_u32 v{T0+1}, v{LA}, v{LA+1}, v{LA+2}
    v_max3_u32 v{T0+1}, v{T0+1}, v{LA+3}, v{LA+4}
    v_max3_u32 v{T0+1}, v{T0+1}, v{LA+5}, v{LA+6}
    v_max_u32 v{T0+1}, v{T0+1}, v{LA+7}
    v_cmp_eq_u32 vcc, -1, v{T0+1}
    s_cbranch_vccnz S3_m""")
    if opt.get('tt'): stamp(b, 2)
    b(f"""ds_write_b128 v{T0+7}, {vr(LA,4)} offset:{L_M}
    ds_write_b128 v{T0+7}, {vr(LA+4,4)} offset:{L_M + 1024}
    s_waitcnt lgkmcnt(0)
    s_barrier""")
    for t in range(8): b(f'ds_read_b128 {vr(MA+4*t,4)}, v{AL} offset:{L_M + t*1024}')
    def smf(j, t): return f'v_smfmac_f32_16x16x64_bf16 {vr(AC+4*j,4)}, {vr(MA+4*t,4)}, {ar((j*8+t)*8, 8)}, v{IDX}'
    def epi(j):
        a_ = AC + 4*j
        return [f'v_add_f32 v{a_}, v{a_}, v{a_+1}', f'v_add_f32 v{a_+2}, v{a_+2}, v{a_+3}', f'v_cvt_pk_bf16_f32 v{a_}, v{a_}, v{a_+2}',
                f'ds_write_b32 v{AW}, v{a_} offset:{L_I + (j & 1)*512 + (j >> 1)*4}']
    pend = []
    for j in range(4):
        for t in range(8):
            b(smf(j, t))
            if t >= 1 and pend: b(pend.pop(0))
        pend = epi(j)
    for x in pend: b(x)
    b('s_waitcnt lgkmcnt(0)\ns_barrier')
    if opt.get('tt'): stamp(b, 3)
    for ks in range(4):
        for h in range(2): b(f'ds_read_b64_tr_b16 {vr(KM + 4*ks + 2*h, 2)}, v{ATR} offset:{L_I + ks*1024 + h*256}')
    for d in range(4): b(f'ds_read_b32 v{VM+2*d}, v{AVM} offset:{L_I + d*512 + 4}')
    for ks in range(4): b(mf32(SM, KM + 4*ks, Q + 4*ks, '0' if ks == 0 else SM))
    scale(SM)
    b(f'v_max3_f32 v{T0}, v{T0}, v{SM}, v{SM+1}')
    def xlane(op):
        for sw in ('16', '32'):
            b(f'v_mov_b32 v{T0+2}, v{T0}\nv_permlane{sw}_swap_b32 v{T0}, v{T0+2}\n{op} v{T0}, v{T0}, v{T0+2}')
    xlane('v_max_f32')
    regs = [SM, SM+1] + list(range(SX, SX+8))
    b(f'v_mul_f32 v{T0}, s{sL2E}, v{T0}')
    for r in regs: b(f'v_fma_f32 v{r}, v{r}, s{sL2E}, -v{T0}')
    for r in regs: b(f'v_exp_f32 v{r}, v{r}')
    b(f'v_add_f32 v{T0}, v{regs[0]}, v{regs[1]}')
    for r in regs[2:]: b(f'v_add_f32 v{T0}, v{T0}, v{r}')
    xlane('v_add_f32')
    b(f'v_rcp_f32 v{T0}, v{T0}')
    for r in regs: b(f'v_mul_f32 v{r}, v{r}, v{T0}')
    for i in range(4): b(cv(PX+i, SX+2*i))
    b(cv(PM, SM))
    for d in range(4): b(mf32(O + 4*d, V + 4*d, PX, '0'))
    for d in range(4): b(mf16(O + 4*d, VM + 2*d, PM, O + 4*d))
    for kk in range(2):
        A = O + 8*kk
        for i in range(4): b(cv(A+i, A+2*i))
        b(f'buffer_store_dwordx4 {vr(A,4)}, v{AL}, {SRD}, s{sO} offen offset:{kk*1024} sc1')
    if opt.get('tt'): stamp(b, 4)
    b(f's_waitcnt vmcnt(0)\ns_barrier\ns_cmp_lg_u32 s{sW}, 0\ns_cbranch_scc1 S3_nf')
    if opt.get('tt'): stamp(b, 5)
    set_flag(b, ONE1, f's{sFO}', ZERO)
    b(f'S3_nf:\ns_add_u32 s{sS}, s{sS}, 2\ns_cmp_lt_u32 s{sS}, 64\ns_cbranch_scc1 S3_L')
    o, st = loop(b.lines, st); out += ['.p2align 6'] + o + ['s_branch L_DONE']

def s4(out, opt):
    from main import stamp
    T = opt.get('time')
    AL, AF, AX, AG, ZERO, AR = 1, 2, 3, 4, 5, 6
    X, G, ACC, PR, B = 8, 10, 12, 24, 64
    sCS, sQT, sS, sO, sFO, sX, sGo, sFG, sLD, sPB = 41, 42, 43, 44, 45, 46, 48, 49, 66, 50
    SRDW, SRDX, SRDO = 's[68:71]', 's[52:55]', 's[56:59]'
    L_P = 131072
    NT = opt.get('nteam', 4)
    p = Prog()
    p(f'''R_S4:
    s_barrier
    s_and_b32 s{sCS}, s{sRANK}, 15
    s_lshr_b32 s{sQT}, s{sRANK}, 4
    s_sub_u32 s{sS}, s{sXCC}, {8 - NT}
    s_mov_b32 s68, s14
    s_mov_b32 s69, s15
    s_mov_b32 s70, 0x400000
    s_mov_b32 s71, 0x20000
    s_mov_b32 s52, s4
    s_mov_b32 s53, s5
    s_mov_b32 s54, 0x200000
    s_mov_b32 s55, 0x20000
    s_mov_b32 s56, s28
    s_mov_b32 s57, s29
    s_mov_b32 s58, 0x200000
    s_mov_b32 s59, 0x20000
    s_lshl_b32 s{sLD}, s{sW}, 15
    s_lshl_b32 s67, s{sW}, 20
    s_lshl_b32 s3, s{sCS}, 6
    s_add_u32 s67, s67, s3
    v_and_b32 v8, 63, v0
    v_lshlrev_b32 v{AL}, 4, v8
    v_lshrrev_b32 v9, 2, v8
    v_and_b32 v10, 3, v8
    v_lshlrev_b32 v10, 4, v10
    v_lshl_add_u32 v20, v9, 10, v10
    v_and_b32 v9, 15, v8                  ; n
    v_lshrrev_b32 v10, 4, v8              ; g
    v_lshrrev_b32 v11, 2, v9
    v_lshl_add_u32 v11, v10, 2, v11       ; row = 4g + r
    v_and_b32 v12, 3, v9
    v_lshlrev_b32 v12, 3, v12
    v_lshl_add_u32 v11, v11, 6, v12
    v_add_u32 v21, s{sLD}, v11
    ''')
    def dma(c):
        for i in range(16):
            p(f's_add_u32 m0, s{sLD}, {(c & 1)*16384 + i*1024}\ns_add_u32 s3, s67, {(c*256 + i*16)*1024}\nbuffer_load_dwordx4 v20, {SRDW}, s3 offen lds')
    dma(0); dma(1)
    p(f'''
    v_and_b32 v11, 7, v8
    v_lshlrev_b32 v{AF}, 2, v11
    v_mov_b32 v{ZERO}, 0
    s_and_b32 s3, s{sW}, 1
    s_lshl_b32 s34, s{sCS}, 1
    s_add_u32 s34, s34, s3
    s_lshl_b32 s35, s{sQT}, 4
    v_add_u32 v11, s35, v9
    v_lshlrev_b32 v12, 10, v11
    v_lshl_add_u32 v12, v10, 3, v12
    s_lshl_b32 s60, s34, 5
    v_add_u32 v{AX}, s60, v12
    v_and_b32 v12, 1, v10
    v_lshl_add_u32 v12, v12, 5, v11
    v_lshlrev_b32 v12, 4, v12
    v_lshrrev_b32 v13, 1, v10
    v_lshl_add_u32 v12, v13, 3, v12
    s_lshl_b32 s60, s34, 10
    v_add_u32 v{AG}, s60, v12
    s_lshl_b32 s3, s3, 10
    s_add_u32 s3, s3, {L_P}
    v_add_u32 v{AR}, s3, v{AL}
    s_lshl_b32 s3, s{sW}, 11
    s_add_u32 s3, s3, {L_P}
    v_add_u32 v7, s3, v{AL}
    ''')
    for c in range(4):
        p(f's_waitcnt vmcnt({16 if c < 3 else 0})')
        for ct in range(2):
            for jj in range(8):
                for h in range(2):
                    d = (ct*32 + 8*c + jj)*4 + 2*h
                    p(f'ds_read_b64_tr_b16 a[{d}:{d+1}], v21 offset:{(c & 1)*16384 + (32*jj + 16*h)*64 + ct*32}')
                if jj & 3 == 3: p('s_waitcnt lgkmcnt(0)')
        if c + 2 < 4: dma(c + 2)
    if T: stamp(p, 5)
    o, st = process(p.lines); out += o
    sGR, sCNT, sI, sT0 = 60, 61, 62, 63
    AS, AG32 = 20, 21
    L_ST = 0
    def finish(q, sp, x, g, t, soff):
        for i in range(2):
            q(f"""v_lshlrev_b32 v{t}, 16, v{sp+i}
            v_and_b32 v{t+1}, 0xffff0000, v{sp+i}
            v_lshlrev_b32 v{t+2}, 16, v{g+i}
            v_and_b32 v{t+3}, 0xffff0000, v{g+i}
            v_mul_f32 v{t}, v{t}, v{t+2}
            v_mul_f32 v{t+1}, v{t+1}, v{t+3}
            v_cvt_pk_bf16_f32 v{t+1}, v{t}, v{t+1}
            v_lshlrev_b32 v{t}, 16, v{t+1}
            v_and_b32 v{t+1}, 0xffff0000, v{t+1}
            v_lshlrev_b32 v{t+2}, 16, v{x+i}
            v_and_b32 v{t+3}, 0xffff0000, v{x+i}
            v_add_f32 v{t}, v{t}, v{t+2}
            v_add_f32 v{t+1}, v{t+1}, v{t+3}
            v_cvt_pk_bf16_f32 v{sp+i}, v{t}, v{t+1}""")
        q(f"buffer_store_dwordx2 {vr(sp,2)}, v{AX}, {SRDO}, {soff} offen {opt.get('omod', 'nt')}")
    def flush(q, lab):
        q(f's_mov_b32 s{sGR}, 1\ns_mov_b32 s{sI}, 0\ns_cmp_eq_u32 s{sCNT}, 0\ns_cbranch_scc1 {lab}_e\n{lab}:')
        for k in range(4):
            q(f"""s_add_u32 s3, s{sI}, {k}
            s_sub_u32 s34, s{sCNT}, 1
            s_min_u32 s3, s3, s34
            s_lshl_b32 s34, s3, 10
            v_add_u32 v{40+k}, s34, v{AS}
            ds_read_b64 {vr(B + 8*k + 4, 2)}, v{40+k}
            s_mul_i32 s3, s3, {NT}
            s_add_u32 s3, s3, s{sT0}
            s_lshl_b32 s{74+k}, s3, 15
            s_add_u32 s34, s{74+k}, {WS_G}
            buffer_load_dwordx2 {vr(B + 8*k, 2)}, v{AX}, {SRDX}, s{74+k} offen
            buffer_load_dwordx2 {vr(B + 8*k + 2, 2)}, v{AG}, {SRD}, s34 offen sc1""")
        for k in range(4): finish(q, B + 8*k + 4, B + 8*k, B + 8*k + 2, PR + 4, f's{74+k}')
        q(f's_add_u32 s{sI}, s{sI}, 4\ns_cmp_lt_u32 s{sI}, s{sCNT}\ns_cbranch_scc1 {lab}\ns_waitcnt vmcnt(0)\n{lab}_e:')
    p = Prog()
    p(f"""s_mov_b32 s{sGR}, 0
    s_mov_b32 s{sCNT}, 0
    s_mov_b32 s{sT0}, s{sS}
    s_mov_b32 s{sFG}, {F_G}
    v_and_b32 v14, 63, v0
    v_and_b32 v15, 31, v14
    v_lshlrev_b32 v{AG32}, 2, v15
    s_and_b32 s3, s{sW}, 1
    s_lshl_b32 s3, s3, 9
    s_add_u32 s3, s3, {L_ST}
    v_lshl_add_u32 v{AS}, v14, 3, s3""")
    o, st = process(p.lines, carry=st); out += o
    b = Prog()
    b(f"""S4_L:
    s_lshl_b32 s3, s{sS}, 1
    s_add_u32 s3, s3, s{sQT}
    s_lshl_b32 s3, s3, 2
    s_add_u32 s3, s3, s{sW}
    s_lshl_b32 s{sO}, s3, 15
    s_add_u32 s{sO}, s{sO}, {WS_O}
    s_lshl_b32 s{sFO}, s{sS}, 7
    s_lshl_b32 s3, s{sW}, 5
    s_add_u32 s{sFO}, s{sFO}, s3
    s_add_u32 s{sFO}, s{sFO}, {F_O}
    s_lshl_b32 s{sX}, s{sS}, 15
    s_add_u32 s{sGo}, s{sX}, {WS_G}
    s_cmp_ge_u32 s{sW}, 2
    s_cbranch_scc1 S4_nog
    s_cmp_eq_u32 s{sGR}, 1
    s_cbranch_scc1 S4_gok
    buffer_load_dword v14, v{AG32}, {SRD}, s{sFG} offen sc1
    s_waitcnt vmcnt(0)
    v_cmp_gt_u32 vcc, 1, v14
    s_cbranch_vccnz S4_nog""")
    flush(b, 'S4_f1')
    b(f"""S4_gok:
    buffer_load_dwordx2 {vr(X,2)}, v{AX}, {SRDX}, s{sX} offen
    buffer_load_dwordx2 {vr(G,2)}, v{AG}, {SRD}, s{sGo} offen sc1
    S4_nog:""")
    wait_flags(b, 'S4_o', AF, f's{sFO}', 1, 14, sleep=opt.get('s4slp', 2))
    if opt.get('tt'): stamp(b, 2)
    for j in range(32):
        b(f'buffer_load_dwordx4 {vr(B+4*j,4)}, v{AL}, {SRD}, s{sO} offen offset:{(j&3)*1024} sc1')
        if j & 3 == 3: b(f's_add_u32 s{sO}, s{sO}, 4096')
    for j in range(32):
        for ct in range(2): b(mf32(ACC + 4*ct, ar((ct*32 + j)*4, 4), B + 4*j, '0' if j == 0 else ACC + 4*ct))
    if opt.get('tt'): stamp(b, 3)
    b(f"""ds_write_b128 v7, {vr(ACC,4)}
    ds_write_b128 v7, {vr(ACC+4,4)} offset:1024
    s_waitcnt lgkmcnt(0)
    s_barrier
    s_cmp_ge_u32 s{sW}, 2
    s_cbranch_scc1 S4_next""")
    for w_ in range(4): b(f'ds_read_b128 {vr(PR+4*w_,4)}, v{AR} offset:{w_*2048}')
    for r in range(4):
        b(f'v_add_f32 v{PR+r}, v{PR+r}, v{PR+4+r}\nv_add_f32 v{PR+8+r}, v{PR+8+r}, v{PR+12+r}\nv_add_f32 v{PR+r}, v{PR+r}, v{PR+8+r}')
    b(f"""v_cvt_pk_bf16_f32 v{PR+12}, v{PR}, v{PR+1}
    v_cvt_pk_bf16_f32 v{PR+13}, v{PR+2}, v{PR+3}
    s_cmp_eq_u32 s{sGR}, 1
    s_cbranch_scc1 S4_fin
    s_lshl_b32 s3, s{sCNT}, 10
    v_add_u32 v14, s3, v{AS}
    ds_write_b64 v14, {vr(PR+12,2)}
    s_add_u32 s{sCNT}, s{sCNT}, 1
    s_waitcnt lgkmcnt(0)
    s_branch S4_next
    S4_fin:""")
    finish(b, PR + 12, X, G, PR + 4, f's{sX}')
    b(f"""S4_next:
    v_xor_b32 v7, 0x2000, v7
    v_xor_b32 v{AR}, 0x2000, v{AR}
    s_add_u32 s{sS}, s{sS}, {NT}
    s_cmp_lt_u32 s{sS}, 64
    s_cbranch_scc1 S4_L""")
    o, st = loop(b.lines, st); out += ['.p2align 6'] + o
    e = Prog()
    e(f's_cmp_ge_u32 s{sW}, 2\ns_cbranch_scc1 L_DONE\ns_cmp_eq_u32 s{sGR}, 1\ns_cbranch_scc1 L_DONE')
    wait_flags(e, 'S4_g', AG32, f's{sFG}', 1, 14, sleep=4)
    flush(e, 'S4_f2')
    e('s_branch L_DONE')
    out += process(e.lines)[0]
```
